```python
import torch

def _softmax(x, axis=-1):
    return torch.softmax(x, dim=axis)
def _gelu(x):
    return torch.nn.functional.gelu(x, approximate="tanh")
def _silu(x):
    return torch.nn.functional.silu(x)
def _sigmoid(x):
    return torch.sigmoid(x)
def _layernorm(x, axis=-1, eps=1e-5):
    m = x.mean(dim=axis, keepdim=True)
    v = x.var(dim=axis, keepdim=True, unbiased=False)
    return (x - m) / torch.sqrt(v + eps)
def _scatter_add(tgt, idx, src, axis=0):
    return tgt.clone().index_add_(axis, idx, src)
def _segment_sum(src, seg, n):
    out = torch.zeros((n,) + src.shape[1:], dtype=src.dtype)
    return out.index_add_(0, seg, src)
def _pad(x, pw):
    flat = tuple(v for pair in reversed(pw) for v in pair)
    return torch.nn.functional.pad(x, flat)

kernel_name = 'recurrent_scan__mha_block_cached__dense_activation_relu__prompt'

def setup_inputs():

    _w = (lambda a: (lambda t: t.to(torch.bfloat16) if t.is_floating_point() else t)(torch.as_tensor(a)))
    def _A_setup():
        B, Sq, D = 1, 2048, 1024
        H, Sk, Dh = 32, 2048, 128
        return {
            "x": _w((lambda *s: torch.randn(*s, dtype=torch.bfloat16) * 0.05)(B, Sq, D)),
            "k_cache": _w((lambda *s: torch.randn(*s, dtype=torch.bfloat16) * 0.8)(B, H, Sk, Dh)),
            "v_cache": _w((lambda *s: torch.randn(*s, dtype=torch.bfloat16) * 0.2)(B, H, Sk, Dh)),
            "wq": _w((lambda *s: torch.randn(*s, dtype=torch.bfloat16) * 0.8)(D, H * Dh) * (D ** -0.5)),
            "wo": _w((lambda *s: torch.randn(*s, dtype=torch.bfloat16) * 0.2)(H * Dh, D) * ((H * Dh) ** -0.5)),
        }
    _A_in = _A_setup()

    def _B_setup():
        B, S, D, Dff = 1, 2048, 1024, 3584
        return {
            "x": _w((lambda *s: torch.randn(*s, dtype=torch.bfloat16) * 0.05)(B, S, D)),
            "w1": _w((lambda *s: torch.randn(*s, dtype=torch.bfloat16) * 0.1)(D, Dff)),
            "w2": _w((lambda *s: torch.randn(*s, dtype=torch.bfloat16) * 0.1)(Dff, D)),
        }
    _B_in = _B_setup()

    return {
        "A_x": _A_in["x"],
        "A_k_cache": _A_in["k_cache"],
        "A_v_cache": _A_in["v_cache"],
        "A_wq": _A_in["wq"],
        "A_wo": _A_in["wo"],
        "B_x": _B_in["x"],
        "B_w1": _B_in["w1"],
        "B_w2": _B_in["w2"],
    }

def reference(A_x, A_k_cache, A_v_cache, A_wq, A_wo, B_x, B_w1, B_w2):
    def _A_ref(x, k_cache, v_cache, wq, wo):
        B, Sq, D = x.shape
        H, Dh = 32, 128
        q = (lambda x, *d: x.permute(*d))((x @ wq).reshape(B, Sq, H, Dh), 0, 2, 1, 3)
        scores = torch.einsum("bhqd,bhkd->bhqk", q, k_cache) * (Dh ** -0.5)
        p = _softmax(scores, axis=-1)
        o = torch.einsum("bhqk,bhkd->bhqd", p, v_cache)
        return (lambda x, *d: x.permute(*d))(o, 0, 2, 1, 3).reshape(B, Sq, H * Dh) @ wo

    def _B_ref(x, w1, w2):
        h = torch.einsum("bsd,df->bsf", x, w1)
        zero = torch.zeros_like(h)
        h = torch.maximum(h, zero)
        return torch.einsum("bsf,fd->bsd", h, w2)

    x = A_x
    xn = _layernorm(x, axis=-1)
    s = _A_ref(xn, A_k_cache, A_v_cache, A_wq, A_wo)
    g = _silu(_B_ref(xn, B_w1, B_w2))
    return x + s * g
```

```python
import re

REG_RE = re.compile(r'^(-?)(abs\()?([vas])(?:(\d+)|\[(\d+):(\d+)\])\)?$')


def regs_of(tok):
    tok = tok.strip()
    m = REG_RE.match(tok)
    if m:
        f = m.group(3)
        if m.group(4) is not None:
            return {(f, int(m.group(4)))}
        return {(f, i) for i in range(int(m.group(5)), int(m.group(6)) + 1)}
    if tok == 'vcc':
        return {('s', 'vcc')}
    if tok in ('vcc_lo', 'vcc_hi'):
        return {('s', 'vcc')}
    if tok in ('exec', 'exec_lo', 'exec_hi'):
        return {('s', 'exec')}
    if tok == 'm0':
        return {('s', 'm0')}
    return set()


TRANS = ('v_exp_f32', 'v_log_f32', 'v_rcp_f32', 'v_rsq_f32', 'v_sqrt_f32', 'v_sin_f32', 'v_cos_f32',
         'v_rcp_iflag_f32')


class Ins:
    __slots__ = ('text', 'op', 'ops', 'mods', 'dst', 'src', 'kind', 'passes', 'srcC', 'srcAB', 'line')

    def __init__(self, text):
        self.text = text
        t = text.split(';')[0].strip()
        parts = t.split(None, 1)
        self.op = parts[0]
        rest = parts[1] if len(parts) > 1 else ''
        ops, depth, cur = [], 0, ''
        for ch in rest:
            if ch in '[(':
                depth += 1
            if ch in '])':
                depth -= 1
            if ch == ',' and depth == 0:
                ops.append(cur.strip())
                cur = ''
            else:
                cur += ch
        last = cur.strip()
        mods = []
        if last:
            lp = last.split()
            ops.append(lp[0])
            mods = lp[1:]
        self.ops, self.mods = ops, mods
        self.dst, self.src = set(), set()
        self.srcC, self.srcAB = set(), set()
        self.passes = 0
        op = self.op
        R = [regs_of(o) for o in ops]
        U = lambda l: set().union(*l) if l else set()
        base = re.sub(r'_(e32|e64|dpp|sdwa)$', '', op)
        if op.startswith('v_mfma'):
            self.kind = 'mfma'
            self.dst = R[0]
            self.srcAB = R[1] | R[2]
            self.srcC = R[3]
            self.src = self.srcAB | self.srcC
            if '32x32x16' in op:
                self.passes = 8
            elif '16x16x32' in op:
                self.passes = 4
            else:
                raise ValueError('unknown mfma ' + op)
        elif op.startswith('v_'):
            self.kind = 'valu'
            if base in TRANS:
                self.kind = 'trans'
            if base.startswith('v_cmpx'):
                raise ValueError('avoid v_cmpx')
            if base.startswith('v_permlane') and 'swap' in base:
                self.dst = R[0] | R[1]
                self.src = R[0] | R[1]
            elif base in ('v_add_co_u32', 'v_sub_co_u32', 'v_addc_co_u32', 'v_subb_co_u32', 'v_subrev_co_u32'):
                self.dst = R[0] | R[1]
                self.src = U(R[2:])
            else:
                self.dst = R[0]
                self.src = U(R[1:])
                if base in ('v_fmac_f32', 'v_dot2c_f32_bf16', 'v_writelane_b32') or op.endswith('_dpp'):
                    self.src |= R[0]
        elif op.startswith('ds_'):
            self.kind = 'ds'
            if op.startswith('ds_write') or op.startswith('ds_add') or op.startswith('ds_or') or op.startswith('ds_max'):
                if '_rtn' in op:
                    self.dst = R[0]
                    self.src = U(R[1:])
                else:
                    self.src = U(R)
            else:
                self.dst = R[0]
                self.src = U(R[1:])
        elif op.startswith('buffer_') or op.startswith('global_'):
            self.kind = 'vmem'
            if op in ('buffer_wbl2', 'buffer_inv'):
                pass
            elif 'load' in op:
                if 'lds' in self.mods or '_lds_' in op:
                    self.src = U(R) | {('s', 'm0')}
                    self.kind = 'vmem_lds'
                else:
                    self.dst = R[0]
                    self.src = U(R[1:])
            elif 'store' in op:
                self.src = U(R)
                self.kind = 'vmem_st'
            elif 'atomic' in op:
                self.src = U(R)
                if 'sc0' in self.mods:
                    self.dst = R[0]
                    if op.startswith('global_'):
                        self.src = U(R[1:])
            else:
                raise ValueError(op)
        elif op.startswith('s_'):
            self.kind = 'salu'
            if op.startswith('s_load') or op.startswith('s_buffer_load') or op in ('s_memtime', 's_memrealtime'):
                self.kind = 'smem'
                self.dst = R[0]
                self.src = U(R[1:])
            elif op.startswith('s_cmp') or op.startswith('s_bitcmp'):
                self.src = U(R)
            elif op in ('s_waitcnt', 's_nop', 's_barrier', 's_endpgm', 's_setprio', 's_sleep', 's_branch') \
                    or op.startswith('s_cbranch'):
                pass
            else:
                self.dst = R[0]
                self.src = U(R[1:])
                if 'saveexec' in op:
                    self.dst |= {('s', 'exec')}
                    self.src |= {('s', 'exec')}
                if op in ('s_addk_i32', 's_mulk_i32'):
                    self.src |= R[0]
        else:
            raise ValueError('unknown instr ' + text)

    def states(self):
        if self.op == 's_nop':
            return int(self.ops[0], 0) + 1
        return 1


def _vec(rs):
    return {r for r in rs if r[0] in 'va'}


def _sca(rs):
    return {r for r in rs if r[0] == 's'}


def check_trace(trace, name=''):
    probs = []
    hist = []
    pos = 0
    vmq, lgq = [], []
    for ins in trace:
        start = pos
        if ins.op == 's_waitcnt':
            txt = ins.text.split(';')[0]
            m = re.search(r'vmcnt\((\d+)\)', txt)
            if m:
                n = int(m.group(1))
                assert n <= 63
                while len(vmq) > n:
                    vmq.pop(0)
            m = re.search(r'lgkmcnt\((\d+)\)', txt)
            if m:
                n = int(m.group(1))
                assert n <= 15
                if any(p[0].kind == 'smem' for p in lgq) and n != 0:
                    probs.append(f'{name}: counted lgkmcnt with SMEM outstanding: {ins.text}')
                while len(lgq) > n:
                    lgq.pop(0)
        touched = ins.src | ins.dst
        for q, qn in ((vmq, 'vm'), (lgq, 'lgkm')):
            for pi, pd in q:
                if pd & touched:
                    probs.append(f'{name}: [{qn} pending] {ins.text}   <- {pi.text}')
        isvalu = ins.kind in ('valu', 'trans')
        for pend, p in reversed(hist):
            d = start - pend
            if d >= 20:
                break
            pvalu = p.kind in ('valu', 'trans')

            def need(n, why):
                if d < n:
                    probs.append(f'{name}: hazard {why} need {n} have {d}: {p.text}  ->  {ins.text}')
            if pvalu and ins.kind == 'mfma' and _vec(p.dst) & ins.src:
                need(2, 'valu->mfma')
            if p.kind == 'mfma':
                tb = {4: (0, 6, 8, 8, 3), 8: (0, 10, 12, 12, 7)}[p.passes]
                if ins.kind == 'mfma':
                    if p.dst & ins.srcC:
                        if p.dst == ins.srcC and p.passes == ins.passes:
                            pass
                        else:
                            need(tb[1], 'mfmaD->srcC overlap')
                    if p.dst & ins.srcAB:
                        need(tb[2], 'mfmaD->srcAB')
                    if (p.dst & ins.dst) and not (p.dst == ins.srcC):
                        need(tb[1], 'mfmaD->mfmaD WAW')
                elif p.dst & touched:
                    need(tb[3], 'mfmaD->other')
                if isvalu and (p.srcC & ins.dst):
                    need(tb[4], 'mfma srcC WAR')
                if ins.kind in ('ds', 'vmem') and (p.srcC & ins.dst):
                    need(tb[4], 'mfma srcC WAR(load)')
            if p.kind == 'trans' and isvalu and ins.kind != 'trans' and p.dst & ins.src:
                need(1, 'trans->valu')
            if p.kind == 'trans' and ins.kind == 'trans' and p.dst & ins.src:
                need(1, 'trans->trans(conservative)')
            if pvalu and _sca(p.dst):
                if ins.kind.startswith('vmem') and _sca(p.dst) & ins.src:
                    need(5, 'valu sgpr->vmem')
                if isvalu and _sca(p.dst) & ins.src:
                    need(4 if ins.op.startswith('v_readlane') or ins.op.startswith('v_writelane') else 2,
                         'valu sgpr->valu')
                if isvalu and ins.op.startswith('v_cndmask') and len(ins.ops) == 3 and ('s', 'vcc') in p.dst:
                    need(2, 'vcc->cndmask')
                if ins.kind in ('salu', 'smem') and _sca(p.dst) & ins.src:
                    need(1, 'valu sgpr->salu (conservative)')
                if ins.op in ('s_cbranch_vccz', 's_cbranch_vccnz') and ('s', 'vcc') in p.dst:
                    need(1, 'valu vcc->branch (conservative)')
            if pvalu and _vec(p.dst) & ins.src:
                if ins.op.startswith('v_readfirstlane') or ins.op.startswith('v_readlane'):
                    need(1, 'valu->readlane')
                if ins.op.startswith('v_permlane'):
                    need(2, 'valu->permlane')
                if ins.op.endswith('_dpp'):
                    need(2, 'valu->dpp')
            if p.kind == 'salu' and ('s', 'm0') in p.dst and ins.kind == 'vmem_lds':
                need(1, 'm0->ldsdma')
            if p.kind == 'vmem_st' and ('x4' in p.op or 'x3' in p.op):
                data = regs_of(p.ops[0]) if p.op.startswith('buffer') else regs_of(p.ops[1])
                if data & ins.dst:
                    need(2, 'store data WAR')
            if p.kind == 'ds' and p.op.startswith('ds_write') and ('b128' in p.op or 'b96' in p.op):
                data = regs_of(p.ops[1])
                if data & ins.dst:
                    need(2, 'dswrite data WAR (conservative)')
        pos += ins.states()
        hist.append((pos, ins))
        if len(hist) > 40:
            hist.pop(0)
        if ins.kind in ('vmem', 'vmem_lds', 'vmem_st'):
            vmq.append((ins, set(ins.dst)))
            if len(vmq) > 63:
                probs.append(f'{name}: more than 63 vmem outstanding at {ins.text}')
        elif ins.kind == 'ds':
            lgq.append((ins, set(ins.dst)))
        elif ins.kind == 'smem':
            lgq.append((ins, set(ins.dst)))
    return probs


def check_lds(trace, rings, name=''):
    probs = []
    rot = {r: 0 for r in rings}
    wstate = {}
    rstate = {}
    vmq, lgq = [], []

    def gran(ring, off):
        n, fn = rings[ring]
        lo, hi = fn((rot[ring] + off) % n)
        return range(lo // 4096, (hi + 4095) // 4096)
    for ins in trace:
        c = ins.text.split(';', 1)[1] if ';' in ins.text else ''
        m = re.search(r'@ROT (\w+)', c)
        if m:
            rot[m.group(1)] += 1
        m = re.search(r'@SET (\w+) (\d+)', c)
        if m:
            rot[m.group(1)] = int(m.group(2))
        if ins.op == 's_waitcnt':
            txt = ins.text.split(';')[0]
            m = re.search(r'vmcnt\((\d+)\)', txt)
            if m:
                while len(vmq) > int(m.group(1)):
                    g = vmq.pop(0)
                    for x in g:
                        if not any(x in o for o in vmq) and wstate.get(x) == 'issued':
                            wstate[x] = 'waited'
            m = re.search(r'lgkmcnt\((\d+)\)', txt)
            if m:
                while len(lgq) > int(m.group(1)):
                    k, g = lgq.pop(0)
                    for x in g:
                        if k == 'R' and not any(kk == 'R' and x in o for kk, o in lgq) and rstate.get(x) == 'issued':
                            rstate[x] = 'waited'
                        if k == 'W' and not any(kk == 'W' and x in o for kk, o in lgq) and wstate.get(x) == 'issued':
                            wstate[x] = 'waited'
        if ins.op == 's_barrier':
            for x, v in wstate.items():
                if v == 'waited':
                    wstate[x] = 'visible'
            for x, v in rstate.items():
                if v == 'waited':
                    rstate[x] = 'done'
        mw = re.search(r'@W (\w+) ([+-]?\d+)', c)
        mr = re.search(r'@R (\w+) ([+-]?\d+)', c)
        g = []
        if mw:
            g = list(gran(mw.group(1), int(mw.group(2))))
            for x in g:
                if rstate.get(x, 'done') != 'done':
                    probs.append(f'{name}: LDS WAR granule {x} reads {rstate[x]}: {ins.text}')
                    break
            for x in g:
                wstate[x] = 'issued'
        if mr:
            g = list(gran(mr.group(1), int(mr.group(2))))
            for x in g:
                if wstate.get(x) != 'visible':
                    probs.append(f'{name}: LDS RAW granule {x} write {wstate.get(x)}: {ins.text}')
                    break
            for x in g:
                rstate[x] = 'issued'
        if ins.kind in ('vmem', 'vmem_lds', 'vmem_st'):
            vmq.append(g if mw else [])
        elif ins.kind in ('ds', 'smem'):
            lgq.append(('W' if mw else 'R', g))
        if ins.kind == 'vmem_lds' and not mw:
            probs.append(f'{name}: untagged LDS-DMA {ins.text}')
    seen, out = set(), []
    for p in probs:
        if p not in seen:
            seen.add(p)
            out.append(p)
    return out


class Lin:
    def __init__(self, lg=None, vm=None):
        self.lg = list(lg or [])
        self.vm = list(vm or [])
        self.out = []

    def add(self, item):
        if isinstance(item, tuple):
            if item[0] == 'vmwait':
                tag = item[1]
                last = -1
                for i, (t, _) in enumerate(self.vm):
                    if t in tag:
                        last = i
                if last >= 0:
                    n = len(self.vm) - 1 - last
                    n = min(n, 63)
                    extra = item[2] if len(item) > 2 else ''
                    self.out.append(f's_waitcnt vmcnt({n}){extra}')
                    self.vm = self.vm[len(self.vm) - n:] if n else []
                    if 'lgkmcnt(0)' in extra:
                        self.lg = []
                elif len(item) > 2:
                    self.out.append(f's_waitcnt{item[2]}')
                    if 'lgkmcnt(0)' in item[2]:
                        self.lg = []
                return
            raise ValueError(item)
        t = item.strip()
        if t.endswith(':') or t.startswith(';') or t.startswith('.'):
            self.out.append(t)
            return
        ins = Ins(t)
        touched = ins.src | ins.dst
        last = -1
        for i, d in enumerate(self.lg):
            if d & touched:
                last = i
        lastv = -1
        for i, (tg, d) in enumerate(self.vm):
            if d & touched:
                lastv = i
        w = ''
        if last >= 0:
            n = min(len(self.lg) - 1 - last, 15)
            w += f' lgkmcnt({n})'
            self.lg = self.lg[len(self.lg) - n:] if n else []
        if lastv >= 0:
            n = min(len(self.vm) - 1 - lastv, 63)
            w = f' vmcnt({n})' + w
            self.vm = self.vm[len(self.vm) - n:] if n else []
        if w:
            self.out.append('s_waitcnt' + w)
        if ins.op == 's_waitcnt':
            m = re.search(r'lgkmcnt\((\d+)\)', t)
            if m:
                n = int(m.group(1))
                self.lg = self.lg[max(0, len(self.lg) - n):] if n else []
            m = re.search(r'vmcnt\((\d+)\)', t)
            if m:
                n = int(m.group(1))
                self.vm = self.vm[max(0, len(self.vm) - n):] if n else []
        self.out.append(t)
        if ins.kind == 'ds':
            self.lg.append(set(ins.dst))
        elif ins.kind in ('vmem', 'vmem_lds', 'vmem_st'):
            m = re.search(r'#(\S+)', t)
            self.vm.append((m.group(1) if m else '', set(ins.dst)))

    def run(self, items):
        for it in items:
            self.add(it)
        return self


def steady(items, retag=None):
    l = Lin().run(items)
    for _ in range(2):
        vm = [((retag(t) if retag else t), d) for t, d in l.vm]
        l = Lin(l.lg, vm).run(items)
    return l


class Kernel:
    def __init__(self, name):
        self.name = name
        self.lines = []

    def __call__(self, text):
        for t in text.strip().split('\n'):
            t = t.strip()
            if not t:
                continue
            if t.startswith(';'):
                self.lines.append(('C', t))
            elif t.endswith(':'):
                self.lines.append(('L', t[:-1]))
            elif t.startswith('.'):
                self.lines.append(('D', t))
            else:
                self.lines.append(('I', Ins(t)))

    def label(self, l):
        self.lines.append(('L', l))

    def text(self):
        out = []
        for k, v in self.lines:
            if k == 'L':
                out.append(v + ':')
            elif k == 'I':
                out.append('  ' + v.text)
            else:
                out.append('  ' + v)
        return '\n'.join(out)

    def trace(self, policy=None, back=2, maxlen=400000):
        policy = {k: list(v) for k, v in (policy or {}).items()}
        labels = {v: i for i, (k, v) in enumerate(self.lines) if k == 'L'}
        cnt = {}
        pc, tr = 0, []
        while pc < len(self.lines):
            k, v = self.lines[pc]
            if k != 'I':
                pc += 1
                continue
            tr.append(v)
            assert len(tr) < maxlen, 'trace too long'
            if v.op == 's_endpgm':
                break
            if v.op == 's_branch':
                pc = labels[v.ops[0]]
                continue
            if v.op.startswith('s_cbranch'):
                tgt = v.ops[0]
                if tgt in policy and policy[tgt]:
                    take = policy[tgt].pop(0)
                elif labels[tgt] < pc:
                    c = cnt.get(pc, 0)
                    take = c < back
                    cnt[pc] = c + 1 if take else 0
                else:
                    take = False
                if take:
                    pc = labels[tgt]
                    continue
            pc += 1
        return tr

    def check(self, policies=({},), back=2, rings=None):
        probs = []
        for p in policies:
            tr = self.trace(p, back)
            probs += check_trace(tr, self.name)
            if rings:
                probs += check_lds(tr, rings, self.name)
        seen, out = set(), []
        for p in probs:
            if p not in seen:
                seen.add(p)
                out.append(p)
        return out

    def max_regs(self):
        mv = ma = ms = -1
        for k, v in self.lines:
            if k == 'I':
                for f, i in v.src | v.dst:
                    if isinstance(i, int):
                        if f == 'v':
                            mv = max(mv, i)
                        elif f == 'a':
                            ma = max(ma, i)
                        else:
                            ms = max(ms, i)
        return mv, ma, ms


def descriptor(k, extra=''):
    mv, ma, ms = k.max_regs()
    acc = ((mv + 1 + 3) // 4) * 4
    acc = max(acc, 4)
    nfv = acc + ma + 1 if ma >= 0 else mv + 1
    return f""".p2align 6
.amdhsa_kernel {k.name}
  .amdhsa_next_free_vgpr {nfv}
  .amdhsa_next_free_sgpr {max(ms + 1, 16)}
  .amdhsa_accum_offset {acc}
  .amdhsa_group_segment_fixed_size 0
  .amdhsa_kernarg_size 88
  .amdhsa_user_sgpr_count 2
  .amdhsa_user_sgpr_kernarg_segment_ptr 1
  .amdhsa_system_sgpr_workgroup_id_x 1
{extra}.end_amdhsa_kernel
"""


def build_file(header, kernels, launches, extras=None):
    out = [header.rstrip()]
    for n, g, b, lds in launches:
        out.append(f'; @launch kernel={n} grid=({g},1,1) block=({b},1,1) lds={lds}')
    out.append('.amdgcn_target "amdgcn-amd-amdhsa--gfx950"')
    out.append('.text')
    for k in kernels:
        out.append(f'.globl {k.name}\n.p2align 8\n.type {k.name},@function\n{k.name}:')
        out.append(k.text())
    out.append('.section .rodata,"a"')
    for k in kernels:
        out.append(descriptor(k, (extras or {}).get(k.name, '')))
    return '\n'.join(out) + '\n'
```

```python
import math
import struct
import sys

sys.path.insert(0, 'work')
from asmlib import *

NAME = 'recurrent_scan__mha_block_cached__dense_activation_relu__prompt'
XN_OFF, H_OFF, O_OFF, G_OFF, S_OFF, F_OFF = 0, 0x400000, 0x1400000, 0x2400000, 0x2800000, 0x3000000
MF = 'v_mfma_f32_32x32x16_bf16'
OPT = dict(stamp=0)


def f32(x):
    return '0x%08x' % struct.unpack('<I', struct.pack('<f', x))[0]


def vr(b, n=1):
    return f'v{b}' if n == 1 else f'v[{b}:{b + n - 1}]'


def ar(b, n=1):
    return f'a{b}' if n == 1 else f'a[{b}:{b + n - 1}]'


def srd(k, d, lo, hi, nbytes):
    k(f"""s_mov_b32 s{d}, {lo}
    s_mov_b32 s{d + 1}, {hi}
    s_mov_b32 s{d + 2}, {nbytes}
    s_mov_b32 s{d + 3}, 0x20000""")


def srd_off(k, d, lo, hi, off, nbytes):
    k(f"""s_add_u32 s{d}, {lo}, {off}
    s_addc_u32 s{d + 1}, {hi}, 0
    s_mov_b32 s{d + 2}, {nbytes}
    s_mov_b32 s{d + 3}, 0x20000""")


def weave(mfmas, fill):
    out = []
    for g, m in enumerate(mfmas):
        out += fill.get(('pre', g), [])
        out.append(m)
        out += fill.get(g, [])
    return out


def stamp(k, idx, sreg=90):
    if not OPT['stamp']:
        return
    k(f"""s_memtime s[{sreg}:{sreg + 1}]
    s_waitcnt lgkmcnt(0)
    s_mov_b32 s{92 + idx}, s{sreg}""")


def gen_ln():
    k = Kernel('ln_kernel')
    k("""
    s_cmp_ge_u32 s2, 256
    s_cbranch_scc1 L_ln_end
    s_load_dwordx2 s[4:5], s[0:1], 0
    s_load_dwordx2 s[6:7], s[0:1], 80
    v_lshrrev_b32 v1, 6, v0
    v_and_b32 v2, 63, v0
    s_nop 0
    v_readfirstlane_b32 s3, v1
    s_lshl_b32 s16, s2, 3
    s_nop 1
    s_add_u32 s16, s16, s3            ; token T
    s_lshl_b32 s17, s16, 11
    v_lshlrev_b32 v3, 4, v2           ; lane*16
    s_waitcnt lgkmcnt(0)
    """)
    srd(k, 8, 's4', 's5', 0x400000)
    srd(k, 12, 's6', 's7', 0x400000)
    k("""
    buffer_load_dwordx4 v[4:7], v3, s[8:11], s17 offen
    buffer_load_dwordx4 v[8:11], v3, s[8:11], s17 offen offset:1024
    s_lshr_b32 s18, s16, 5
    s_lshl_b32 s18, s18, 16
    s_and_b32 s19, s16, 31
    s_lshl_b32 s19, s19, 4
    s_add_u32 s18, s18, s19
    s_add_u32 s19, s18, 32768         ; chunk 64..127
    v_lshlrev_b32 v40, 9, v2          ; lane*512
    """)
    k(f"""
    s_cmp_ge_u32 s2, 128
    s_cbranch_scc1 L_ln_noflag
    s_cmp_lg_u32 s3, 0
    s_cbranch_scc1 L_ln_noflag
    """)
    srd_off(k, 20, 's6', 's7', F_OFF, 16384)
    k("""
    s_lshl_b32 s24, s2, 7
    v_and_b32 v41, 31, v2
    v_lshlrev_b32 v41, 2, v41
    v_mov_b32 v42, 0
    buffer_store_dword v42, v41, s[20:23], s24 offen
    L_ln_noflag:
    s_waitcnt vmcnt(0)
    """)
    for i in range(8):
        k(f'v_lshlrev_b32 v{12 + 2 * i}, 16, v{4 + i}')
        k(f'v_and_b32 v{13 + 2 * i}, 0xffff0000, v{4 + i}')

    def tree(dst, src, n):
        cur = list(range(src, src + n))
        t = dst
        while len(cur) > 1:
            nxt = []
            for i in range(0, len(cur), 2):
                k(f'v_add_f32 v{t}, v{cur[i]}, v{cur[i + 1]}')
                nxt.append(t)
                t += 1
            cur = nxt
        return cur[0]

    def wave_sum(r, tmp):
        for mode in ('quad_perm:[1,0,3,2]', 'quad_perm:[2,3,0,1]', 'row_half_mirror', 'row_mirror'):
            k('s_nop 1')
            k(f'v_add_f32_dpp v{r}, v{r}, v{r} {mode} row_mask:0xf bank_mask:0xf')
        for sw in ('v_permlane16_swap_b32', 'v_permlane32_swap_b32'):
            k(f'v_mov_b32 v{tmp}, v{r}')
            k('s_nop 1')
            k(f'{sw} v{r}, v{tmp}')
            k(f'v_add_f32 v{r}, v{r}, v{tmp}')
    r = tree(44, 12, 16)
    wave_sum(r, 43)
    k(f'v_mul_f32 v28, {f32(1 / 1024)}, v{r}')
    for i in range(16):
        k(f'v_sub_f32 v{44 + i}, v{12 + i}, v28')
    k('v_mul_f32 v30, v44, v44')
    k('v_mul_f32 v31, v45, v45')
    for i in range(2, 16):
        k(f'v_fmac_f32 v{30 + (i & 1)}, v{44 + i}, v{44 + i}')
    k('v_add_f32 v30, v30, v31')
    wave_sum(30, 43)
    k(f"""
    v_mul_f32 v30, {f32(1 / 1024)}, v30
    v_cvt_pk_bf16_f32 v29, v28, v30
    v_lshlrev_b32 v28, 16, v29             ; m_bf
    v_and_b32 v30, 0xffff0000, v29         ; var_bf
    v_add_f32 v30, {f32(1e-5)}, v30
    v_cvt_pk_bf16_f32 v30, v30, v30
    v_and_b32 v30, 0xffff0000, v30
    v_sqrt_f32 v30, v30
    s_nop 0
    v_cvt_pk_bf16_f32 v30, v30, v30
    v_and_b32 v30, 0xffff0000, v30
    v_rcp_f32 v30, v30
    """)
    for i in range(16):
        k(f'v_sub_f32 v{12 + i}, v{12 + i}, v28')
    for i in range(8):
        k(f'v_cvt_pk_bf16_f32 v{4 + i}, v{12 + 2 * i}, v{13 + 2 * i}')
    for i in range(8):
        k(f'v_lshlrev_b32 v{12 + 2 * i}, 16, v{4 + i}')
        k(f'v_and_b32 v{13 + 2 * i}, 0xffff0000, v{4 + i}')
    for i in range(16):
        k(f'v_mul_f32 v{12 + i}, v{12 + i}, v30')
    for i in range(8):
        k(f'v_cvt_pk_bf16_f32 v{4 + i}, v{12 + 2 * i}, v{13 + 2 * i}')
    k("""
    buffer_store_dwordx4 v[4:7], v40, s[12:15], s18 offen
    buffer_store_dwordx4 v[8:11], v40, s[12:15], s19 offen
    L_ln_end:
    s_endpgm
    """)
    return k


def tr_pattern(k, dst, lane, rowstride, t0, t1, swz):
    k(f"""
    v_lshrrev_b32 v{t0}, 5, v{lane}
    v_lshlrev_b32 v{t0}, 3, v{t0}
    v_bfe_u32 v{t1}, v{lane}, 2, 2
    v_add_u32 v{t0}, v{t0}, v{t1}
    v_mul_u32_u24 v{dst}, {rowstride}, v{t0}
    v_bfe_u32 v{t0}, v{lane}, 4, 1
    v_lshlrev_b32 v{t0}, 5, v{t0}
    v_add_u32 v{dst}, v{dst}, v{t0}
    v_and_b32 v{t0}, 1, v{lane}
    v_lshlrev_b32 v{t0}, 4, v{t0}
    v_add_u32 v{dst}, v{dst}, v{t0}
    v_bfe_u32 v{t0}, v{lane}, 1, 1
    v_lshlrev_b32 v{t0}, 3, v{t0}
    v_add_u32 v{dst}, v{dst}, v{t0}
    """)


GSLOT = 45056
ABASE = 32768
KSLOT = lambda i: 4 + ((i + 3) & 3)
VSLOT = lambda i: (i + 1) & 3
S_ = lambda b, u, t: b * 64 + (u * 2 + t) * 16
NEGM = lambda t: 128 + 16 * t
VKA = 160
VVA = 168
VKD = 172
VVD = 176
VL = 177
VLN = 179
VMT = 180
VT = 208
HACC = [64, 80, 96, 112, 128, 144, 192]
PWQ = 2
PW1 = 6
PP1 = 13
PCQ = 14
PC1 = 18
OACC = lambda dt, t: (dt * 2 + t) * 16
QF = lambda t, s: 128 + (t * 8 + s) * 4
XN = lambda b, t, s: 128 + b * 32 + (t * 4 + s) * 4
RING = 192


def p1_dma_items(tag, wtag):
    g = []
    for j in range(4):
        it = []
        if j == 0:
            it += ['s_add_u32 m0, s40, s45', 's_nop 0']
        it.append(f'buffer_load_dwordx4 v{PWQ + j}, s[8:11], s38 offen offset:{j * 1024} lds')
        g.append(it)
    for j in range(7):
        it = []
        if j == 0:
            it += ['s_add_u32 m0, s40, s46', 's_nop 0']
        if j == 4:
            it += ['s_add_u32 m0, s40, s47', 's_nop 0']
        it.append(f'buffer_load_dwordx4 v{PW1 + j}, s[12:15], s39 offen offset:{(j & 3) * 1024} lds')
        g.append(it)
    return g


def p1_dma_advance():
    return ['s_add_u32 s38, s38, 0x80000', 's_add_u32 s39, s39, 0x70000',
            f's_add_u32 s40, s40, {GSLOT}', f's_cmp_ge_u32 s40, {3 * GSLOT}', f's_cselect_b32 s48, {3 * GSLOT}, 0',
            's_sub_u32 s40, s40, s48']


def xn_load(b, t, s, tag):
    return f'buffer_load_dwordx4 {ar(XN(b, t, s), 4)}, v{VLN}, s[4:7], s{36 + t} offen offset:{s * 1024} ;#{tag}'


def kdma(i, tag):
    g = []
    for j in range(4):
        it = []
        if j == 0:
            it += [f's_add_u32 m0, s45, {ABASE + KSLOT(i) * 16384}', 's_nop 0']
        it.append(f'buffer_load_dwordx4 v{VKD + j}, s[16:19], s43 offen offset:{j * 1024} lds')
        if j == 3:
            it.append('s_add_u32 s43, s43, 16384')
        g.append(it)
    return g


def vdma(i, tag):
    g = []
    for j in range(4):
        it = []
        if j == 0:
            it += [f's_add_u32 m0, s45, {ABASE + VSLOT(i) * 16384}', 's_nop 0']
        it.append(f'buffer_load_dwordx4 v{VVD}, s[20:23], s44 offen offset:{j * 1024} lds')
        if j == 3:
            it.append('s_add_u32 s44, s44, 16384')
        g.append(it)
    return g


NR1 = 11


def p1_frag_reads(f, ridx, rel):
    s, i = divmod(f, 11)
    d = RING + (ridx % NR1) * 4
    if i < 4:
        o = 16 * s * 256
        return [f'ds_read_b64_tr_b16 {ar(d, 2)}, v{PCQ + i} offset:{o} ;@R G {rel}',
                f'ds_read_b64_tr_b16 {ar(d + 2, 2)}, v{PCQ + i} offset:{o + 1024} ;@R G {rel}']
    o = 16384 + 16 * s * 448 + (i - 4) * 64
    return [f'ds_read_b64_tr_b16 {ar(d, 2)}, v{PC1} offset:{o} ;@R G {rel}',
            f'ds_read_b64_tr_b16 {ar(d + 2, 2)}, v{PC1} offset:{o + 4 * 448} ;@R G {rel}']


def p1_addr_update():
    it = [f's_add_u32 s41, s41, {GSLOT} ;@ROT G', f's_cmp_ge_u32 s41, {3 * GSLOT}', f's_cselect_b32 s48, {3 * GSLOT}, 0',
          's_sub_u32 s41, s41, s48', f's_sub_u32 s49, s41, {ABASE}']
    for i in range(4):
        it.append(f'v_add_u32 v{PCQ + i}, s49, v{VVA + i}')
    it.append(f'v_add_u32 v{PC1}, s41, v{PP1}')
    return it


P1_NPRE = 6
P1_GB = 52


def p1_tile(b, mode):
    mf, fu, lu = [], [], []
    for s in range(4):
        for dt in range(4):
            f = s * 11 + dt
            a = ar(RING + (f % NR1) * 4, 4)
            fu.append(len(mf))
            for t in range(2):
                mf.append(f'{MF} {ar(OACC(dt, t), 16)}, {a}, {ar(XN(b, t, s), 4)}, {ar(OACC(dt, t), 16)}')
            lu.append(len(mf) - 1)
        for nt in range(7):
            f = s * 11 + 4 + nt
            a = ar(RING + (f % NR1) * 4, 4)
            fu.append(len(mf))
            mf.append(f'{MF} {vr(HACC[nt], 16)}, {a}, {ar(XN(b, 0, s), 4)}, {vr(HACC[nt], 16)}')
            lu.append(len(mf) - 1)
    fill = {}
    add = lambda g, it: fill.setdefault(g, []).extend(it)
    first = P1_GB + 1 - 60
    span = (P1_GB - 4) - first
    gap_of = lambda f: first + (f * span) // 43
    npre = sum(1 for f in range(44) if gap_of(f) < 0)
    for f in range(44):
        g = gap_of(f)
        prev = f - NR1
        lastuse = lu[prev] if prev >= 0 else lu[prev + 44] - 60
        assert g >= lastuse, (f, g, lastuse)
        assert g <= fu[f] - 5, (f, g, fu[f])
        if g >= 0:
            add(g, p1_frag_reads(f, f, 0))
    tag = f'G{b}'
    if mode == 'loop':
        groups = p1_dma_items(tag, '+2')
        for gi, g in zip([1, 5, 10, 14, 19, 24, 28, 33, 37, 42, 46], groups):
            add(gi, g)
        add(47, p1_dma_advance())
        for s in range(4):
            add(15 * s + 8, [xn_load(b, 1, s, tag)])
            add(15 * s + 14, [xn_load(b, 0, s, tag)])
        add(59, ['s_add_u32 s36, s36, 4096', 's_add_u32 s37, s37, 4096'])
    elif mode == 't14':
        groups = vdma(0, 'V0') + vdma(1, 'V1')
        for gi, g in zip([1, 5, 10, 14, 19, 24, 28, 33], groups):
            add(gi, g)
    else:
        groups = kdma(1, 'K1') + kdma(2, 'K2') + kdma(3, 'K3')
        for gi, g in zip([1, 5, 10, 14, 19, 24, 28, 33, 37, 42, 46, 50], groups):
            add(gi, g)
    if mode != 't15':
        add(P1_GB, [('vmwait', [f'G{1 - b}'], ' lgkmcnt(0)'), 's_barrier'] + p1_addr_update())
        for f in range(npre):
            add(gap_of(f) + 60, p1_frag_reads(f, f, 0))
    return weave(mf, fill), npre


def k_read(i, f, d):
    u, s = divmod(f, 8)
    return [f'ds_read_b128 {ar(d, 4)}, v{VKA + s} offset:{(KSLOT(i) - 4) * 16384 + u * 8192} ;@R A {KSLOT(i)}']


def v_read(i, f, d):
    g, dt = divmod(f, 4)
    o = VSLOT(i) * 16384 + g * 4096
    return [f'ds_read_b64_tr_b16 {ar(d, 2)}, v{VVA + dt} offset:{o} ;@R A {VSLOT(i)}',
            f'ds_read_b64_tr_b16 {ar(d + 2, 2)}, v{VVA + dt} offset:{o + 1024} ;@R A {VSLOT(i)}']


def elem_reg(b, e):
    g, t, r = e >> 4, (e >> 3) & 1, e & 7
    return S_(b, g >> 1, t) + 8 * (g & 1) + r, t


def sm_exp(b, e):
    r, t = elem_reg(b, e)
    return f'v_exp_f32 v{r}, v{r}'


def sm_add(b, e):
    r, t = elem_reg(b, e)
    return f'v_add_f32 v{VL + t}, v{VL + t}, v{r}'


def sm_cvt(b, e):
    r, t = elem_reg(b, e)
    base = r - (e & 7)
    return f'v_cvt_pk_bf16_f32 v{base + (e & 7) // 2}, v{r - 1}, v{r}'


X_OFF = 16
LA = 4


def qk_mfmas(bS, c0=None):
    mf = []
    for u in range(2):
        for s in range(8):
            f = u * 8 + s
            for t in range(2):
                c = vr(S_(bS, u, t), 16) if s else (c0 if c0 is not None else vr(NEGM(t), 16))
                mf.append(f'{MF} {vr(S_(bS, u, t), 16)}, {ar(RING + (f & 7) * 4, 4)}, {ar(QF(t, s), 4)}, {c}')
    return mf


def pv_mfmas(bS):
    mf = []
    for g in range(4):
        for dt in range(4):
            f = 16 + g * 4 + dt
            for t in range(2):
                p = S_(bS, g >> 1, t) + 8 * (g & 1)
                mf.append(f'{MF} {ar(OACC(dt, t), 16)}, {ar(RING + (f & 7) * 4, 4)}, {vr(p, 4)}, {ar(OACC(dt, t), 16)}')
    return mf


def att_iter(i):
    b, nb = i & 1, (i + 1) & 1
    mf = qk_mfmas(nb) + pv_mfmas(b)
    fill = {}
    add = lambda g, it: fill.setdefault(g, []).extend(it)
    for g in range(64):
        e = g + X_OFF
        bb, ee = (b, e) if e < 64 else (nb, e - 64)
        add(g, [sm_exp(bb, ee)])
        pe = e - 1
        pb, pee = (b, pe) if pe < 64 else (nb, pe - 64)
        add(g, [sm_add(pb, pee)])
        if pee & 1:
            add(g, [sm_cvt(pb, pee)])
    for f in range(LA, 32 + LA):
        g = 2 * (f - LA)
        d = RING + (f & 7) * 4
        if f < 16:
            add(g, k_read(i + 1, f, d))
        elif f < 32:
            r = v_read(i, f - 16, d)
            add(g, r[:1])
            add(g + 1, r[1:])
        else:
            add(g, k_read(i + 2, f - 32, d))
    groups = vdma(i + 2, f'V{(i + 2) & 3}') + kdma(i + 4, f'K{i & 3}')
    for n, gr in enumerate(groups):
        add(1 + 2 * n + (n >= 4) * 2, gr)
    gb = 2 * (32 - LA) - 1
    add(gb, [('vmwait', [f'V{(i + 1) & 3}', f'K{(i + 2) & 3}']), 's_barrier'])
    return weave(mf, fill)


def att_tail():
    i, b = 3, 1
    items = []
    for f in range(16, 16 + LA):
        items += v_read(i, f - 16, RING + (f & 7) * 4)
    seq = []
    for e in range(X_OFF, 65):
        it = []
        if e < 64:
            it.append(sm_exp(b, e))
        it.append(sm_add(b, e - 1))
        if (e - 1) & 1:
            it.append(sm_cvt(b, e - 1))
        seq.append(it)
    npre = 24 - X_OFF + 1 if X_OFF < 24 else 1
    for it in seq[:npre]:
        items += it
    rest = seq[npre:]
    mf = pv_mfmas(b)
    fill = {}
    add = lambda g, it: fill.setdefault(g, []).extend(it)
    for n, it in enumerate(rest):
        add(n // 2, it)
    for f in range(16 + LA, 32):
        g = 2 * (f - 16 - LA)
        r = v_read(i, f - 16, RING + (f & 7) * 4)
        add(g, r[:1])
        add(g + 1, r[1:])
    return items + weave(mf, fill)


def gen_k2():
    k = Kernel('att_kernel')
    C = math.log2(math.e) / math.sqrt(128.0)
    k("""
    s_cmp_ge_u32 s2, 256
    s_cbranch_scc1 L_k2_end
    s_load_dwordx4 s[52:55], s[0:1], 8      ; K, V
    s_load_dwordx2 s[56:57], s[0:1], 24     ; wq
    s_load_dwordx2 s[58:59], s[0:1], 48     ; w1
    s_load_dwordx2 s[60:61], s[0:1], 80     ; ws
    s_load_dwordx2 s[62:63], s[0:1], 72     ; dbg
    v_lshrrev_b32 v1, 6, v0
    v_and_b32 v0, 63, v0
    s_and_b32 s32, s2, 7
    v_readfirstlane_b32 s3, v1
    s_lshl_b32 s32, s32, 2
    s_lshr_b32 s33, s2, 3
    s_and_b32 s34, s33, 3
    s_add_u32 s32, s32, s34                 ; head
    s_lshr_b32 s33, s33, 2                  ; q block
    s_and_b32 s34, s32, 1                   ; parity
    s_lshl_b32 s45, s3, 12                  ; w*4096
    s_mul_i32 s46, s3, 7168
    s_add_u32 s46, s46, 16384
    s_add_u32 s47, s46, 4096
    s_lshl_b32 s35, s33, 3
    s_lshl_b32 s50, s3, 1
    s_add_u32 s35, s35, s50
    s_add_u32 s50, s35, s34
    s_xor_b32 s51, s34, 1
    s_add_u32 s51, s35, s51
    s_lshl_b32 s36, s50, 16
    s_lshl_b32 s37, s51, 16
    s_mov_b32 s38, 0
    s_mov_b32 s39, 0
    s_mov_b32 s40, 0
    s_mov_b32 s41, 0
    s_mov_b32 s43, 0
    s_mov_b32 s44, 0
    s_mov_b32 s64, 0
    """)
    stamp(k, 0)
    T0, T1, T2, T3 = VT, VT + 1, VT + 2, VT + 3
    k(f"""
    v_lshlrev_b32 v{VLN}, 4, v0
    v_lshrrev_b32 v{T0}, 4, v0              ; l>>4
    v_and_b32 v{T1}, 15, v0                 ; l&15
    v_lshlrev_b32 v{T2}, 2, v{T0}
    v_xor_b32 v{T2}, v{T2}, v{T1}
    v_lshlrev_b32 v{T2}, 4, v{T2}
    s_lshl_b32 s48, s3, 4
    v_add_u32 v{T3}, s48, v{T0}             ; row = 16w + (l>>4)
    v_lshl_add_u32 v{VVD}, v{T3}, 8, v{T2}
    v_lshl_add_u32 v{PWQ}, v{T3}, 13, v{T2}
    """)
    for j in range(1, 4):
        k(f'v_add_u32 v{PWQ + j}, {j * 31744}, v{PWQ}')
    for j in range(4):
        k(f"""v_add_u32 v{T2}, {4 * j}, v{T0}
        v_xor_b32 v{T2}, v{T2}, v{T1}
        v_lshlrev_b32 v{T2}, 4, v{T2}
        v_lshl_add_u32 v{VKD + j}, v{T3}, 8, v{T2}""")
    k('s_mul_i32 s48, s3, 114688')
    for j in range(7):
        k(f"""v_add_u32 v{T2}, {64 * j}, v0
        v_mul_u32_u24 v{T3}, 2341, v{T2}
        v_lshrrev_b32 v{T3}, 16, v{T3}          ; row = x/28
        v_mul_u32_u24 v{PW1 + j}, {7168 - 448}, v{T3}
        v_lshl_add_u32 v{PW1 + j}, v{T2}, 4, v{PW1 + j}
        v_add_u32 v{PW1 + j}, s48, v{PW1 + j}""")
        if j & 3:
            k(f'v_subrev_u32 v{PW1 + j}, {(j & 3) * 1024}, v{PW1 + j}')
    k('s_waitcnt lgkmcnt(0)')
    srd_off(k, 4, 's60', 's61', XN_OFF, 0x400000)
    k('s_lshl_b32 s48, s32, 8')
    srd_off(k, 8, 's56', 's57', 's48', 0x800000 - 31 * 256)
    k('s_mov_b32 s10, 0x800000\ns_sub_u32 s10, s10, s48')
    k('s_lshr_b32 s48, s32, 1\ns_mul_i32 s48, s48, 448')
    srd_off(k, 12, 's58', 's59', 's48', 0)
    k('s_sub_u32 s14, 0x700000, s48')
    k('s_lshl_b32 s48, s32, 19')
    srd_off(k, 16, 's52', 's53', 's48', 0x80000)
    srd_off(k, 20, 's54', 's55', 's48', 0x80000)
    lin = Lin()
    for T in range(2):
        for g in p1_dma_items(f'G{T}', f'+{T}'):
            lin.run(g)
        lin.run(p1_dma_advance())
        for s in range(4):
            for t in range(2):
                lin.add(xn_load(T, t, s, f'G{T}'))
        lin.run(['s_add_u32 s36, s36, 4096', 's_add_u32 s37, s37, 4096'])
    for g in kdma(0, 'K0'):
        lin.run(g)
    k('\n'.join(lin.out))
    lin.out = []
    srd_off(k, 24, 's60', 's61', H_OFF, 0xE00000)
    srd_off(k, 28, 's60', 's61', O_OFF, 0x1000000)
    tr_pattern(k, T2, 0, 256, T0, T1, True)
    k(f'v_bfe_u32 v{T3}, v0, 2, 2')
    for dt in range(4):
        k(f"""v_xor_b32 v{T0}, {dt}, v{T3}
        v_lshl_add_u32 v{VVA + dt}, v{T0}, 6, v{T2}
        v_add_u32 v{VVA + dt}, {ABASE}, v{VVA + dt}
        v_subrev_u32 v{PCQ + dt}, {ABASE}, v{VVA + dt}""")
    tr_pattern(k, PP1, 0, 448, T0, T1, False)
    k(f'v_mov_b32 v{PC1}, v{PP1}')
    k(f"""
    v_and_b32 v{T0}, 19, v0
    v_bfe_u32 v{T1}, v0, 2, 1
    v_lshl_or_b32 v{T0}, v{T1}, 3, v{T0}
    v_bfe_u32 v{T1}, v0, 3, 1
    v_lshl_or_b32 v{T0}, v{T1}, 2, v{T0}    ; row
    v_and_b32 v{T1}, 15, v{T0}
    v_lshrrev_b32 v{T2}, 5, v0
    v_xor_b32 v{T1}, v{T1}, v{T2}           ; (row&15)^h
    v_lshlrev_b32 v{T0}, 8, v{T0}
    v_add_u32 v{T0}, {ABASE + 4 * 16384}, v{T0}
    """)
    for s in range(8):
        k(f"""v_xor_b32 v{T2}, {2 * s}, v{T1}
        v_lshl_add_u32 v{VKA + s}, v{T2}, 4, v{T0}""")
    for i in range(128):
        k(f'v_accvgpr_write_b32 a{i}, 0')
    for nt in range(7):
        for i in range(16):
            k(f'v_mov_b32 v{HACC[nt] + i}, 0')
    body0, npre = p1_tile(0, 'loop')
    body1, _ = p1_tile(1, 'loop')
    lin.add(('vmwait', ['G0']))
    lin.add('s_barrier')
    for f in range(npre):
        lin.run(p1_frag_reads(f, f, 0))
    k('\n'.join(lin.out))
    k('s_mov_b32 s42, 7')
    stamp(k, 1)
    st = steady(body0 + body1)
    k('L_p1:')
    k('\n'.join(st.out))
    k('s_sub_u32 s42, s42, 1\ns_cmp_lg_u32 s42, 0\ns_cbranch_scc1 L_p1')
    lin = Lin(st.lg, st.vm)
    lin.run(p1_tile(0, 't14')[0])
    lin.run(p1_tile(1, 't15')[0])
    k('\n'.join(lin.out))
    lin.out = []
    stamp(k, 2)
    k(f's_mov_b32 s66, {f32(C)}\ns_mov_b32 s67, {f32(C)}')
    k('s_nop 3')
    for f in range(LA):
        lin.run(k_read(0, f, RING + (f & 7) * 4))
    n = 0
    for t in range(2):
        for dt in range(4):
            for hf in range(2):
                tb = VT + (n & 1) * 8
                n += 1
                src = OACC(dt, t) + 8 * hf
                for i in range(8):
                    lin.add(f'v_accvgpr_read_b32 v{tb + i}, a{src + i}')
                for i in range(0, 8, 2):
                    lin.add(f'v_pk_mul_f32 {vr(tb + i, 2)}, {vr(tb + i, 2)}, s[66:67]')
                for i in range(4):
                    lin.add(f'v_cvt_pk_bf16_f32 v{tb + i}, v{tb + 2 * i}, v{tb + 2 * i + 1}')
                for i in range(4):
                    lin.add(f'v_accvgpr_write_b32 a{QF(t, 2 * dt + hf) + i}, v{tb + i}')
    k('\n'.join(lin.out))
    lin.out = []
    k("""s_mul_i32 s48, s50, 229376
    s_lshr_b32 s49, s32, 1
    s_mul_i32 s49, s49, 14336
    s_add_u32 s48, s48, s49""")
    hep = []
    for nt in range(7):
        for hf in range(2):
            b = HACC[nt] + 8 * hf
            for i in range(4):
                hep.append(f'v_cvt_pk_bf16_f32 v{b + i}, v{b + 2 * i}, v{b + 2 * i + 1}')
            for i in range(4):
                hep.append(f'v_pk_max_i16 v{b + i}, v{b + i}, 0')
            ks = nt * 2 + hf
            if ks % 4 == 0 and ks:
                hep.append('s_add_u32 s48, s48, 4096')
            hep.append(f'buffer_store_dwordx4 {vr(b, 4)}, v{VLN}, s[24:27], s48 offen offset:{(ks & 3) * 1024} ;#H')

    def qk0(extra):
        mf = qk_mfmas(0, c0='0')
        fill = {}
        add = lambda g, it: fill.setdefault(g, []).extend(it)
        per = (len(extra) + 31) // 32
        for n, it in enumerate(extra):
            add(n // per, [it])
        for f in range(LA, 16):
            add(2 * (f - LA), k_read(0, f, RING + (f & 7) * 4))
        return weave(mf, fill)
    zero_o = [f'v_accvgpr_write_b32 a{i}, 0' for i in range(128)]
    mix = []
    for i in range(max(len(hep), len(zero_o))):
        if i < len(hep):
            mix.append(hep[i])
        if i < len(zero_o):
            mix.append(zero_o[i])
    lin.run(qk0(mix))
    k('\n'.join(lin.out))
    lin.out = []
    k('L_att_go:')
    lin.add(('vmwait', ['K1', 'V0']))
    lin.add('s_barrier')
    for f in range(LA):
        lin.run(k_read(1, f, RING + (f & 7) * 4))
    k('\n'.join(lin.out))
    lin.out = []
    k('s_nop 4')
    for t in range(2):
        m = VT + t
        regs = [S_(0, u, t) + i for u in range(2) for i in range(16)]
        k(f'v_max3_f32 v{m}, v{regs[0]}, v{regs[1]}, v{regs[2]}')
        for i in range(3, 31, 2):
            k(f'v_max3_f32 v{m}, v{m}, v{regs[i]}, v{regs[i + 1]}')
        k(f'v_max_f32 v{m}, v{m}, v{regs[31]}')
    for t in range(2):
        k(f'v_mov_b32 v{VT + 2 + t}, v{VT + t}')
    k('s_nop 1')
    for t in range(2):
        k(f'v_permlane32_swap_b32 v{VT + t}, v{VT + 2 + t}')
    for t in range(2):
        k(f'v_max_f32 v{VT + t}, v{VT + t}, v{VT + 2 + t}')
    k(f"""s_cmp_eq_u32 s64, 0
    s_cbranch_scc1 L_use_m0
    v_mov_b32 v{VT}, v{VMT}
    v_mov_b32 v{VT + 1}, v{VMT + 1}
    L_use_m0:""")
    for t in range(2):
        for i in range(16):
            k(f'v_sub_f32 v{NEGM(t) + i}, 0, v{VT + t}')
        k(f'v_mov_b32 v{VL + t}, 0')
    for u in range(2):
        for t in range(2):
            for i in range(0, 16, 2):
                r = S_(0, u, t) + i
                k(f'v_pk_add_f32 {vr(r, 2)}, {vr(r, 2)}, {vr(NEGM(t), 2)}')
    for e in range(X_OFF):
        k(sm_exp(0, e))
        if e:
            k(sm_add(0, e - 1))
            if (e - 1) & 1:
                k(sm_cvt(0, e - 1))
    k('s_mov_b32 s42, 8')
    stamp(k, 3)
    body = []
    for i in range(4):
        if i == 3:
            body += ['s_sub_u32 s42, s42, 1', 's_cmp_eq_u32 s42, 0', 's_cbranch_scc1 L_att_tail']
        body += att_iter(i)
    st = steady(body)
    k('L_att:')
    k('\n'.join(st.out))
    k('s_branch L_att')
    k('L_att_tail:')
    l3 = Lin(st.lg, st.vm)
    for i in range(3):
        l3.run(att_iter(i))
    lin = Lin(l3.lg, l3.vm)
    lin.run(att_tail())
    k('\n'.join(lin.out))
    lin.out = []
    stamp(k, 4)
    for t in range(2):
        k(f'v_mov_b32 v{VT + t}, v{VL + t}')
    k('s_nop 1')
    for t in range(2):
        k(f'v_permlane32_swap_b32 v{VL + t}, v{VT + t}')
    for t in range(2):
        k(f'v_add_f32 v{VL + t}, v{VL + t}, v{VT + t}')
    k(f"""
    v_max_f32 v{VT}, v{VL}, v{VL + 1}
    v_add_f32 v{VT + 1}, v{VL}, v{VL + 1}
    s_mov_b32 s48, 0x4e800000
    v_cmp_nle_f32 vcc, v{VT + 1}, s48
    s_nop 1
    s_cmp_lg_u64 vcc, 0
    s_cselect_b32 s48, 1, 0
    s_andn2_b32 s48, s48, s64
    v_mov_b32 v{VT + 2}, s48
    v_mov_b32 v{VT + 3}, 0
    s_waitcnt vmcnt(0) lgkmcnt(0)
    s_barrier
    s_lshl_b32 s49, s3, 2
    v_mov_b32 v{VT + 3}, s49
    ds_write_b32 v{VT + 3}, v{VT + 2}
    s_waitcnt lgkmcnt(0)
    s_barrier
    v_mov_b32 v{VT + 3}, 0
    ds_read_b128 {vr(VT + 4, 4)}, v{VT + 3}
    v_rcp_f32 v{VL}, v{VL}
    v_rcp_f32 v{VL + 1}, v{VL + 1}
    s_waitcnt lgkmcnt(0)
    v_or_b32 v{VT + 4}, v{VT + 4}, v{VT + 5}
    v_or_b32 v{VT + 6}, v{VT + 6}, v{VT + 7}
    v_or_b32 v{VT + 4}, v{VT + 4}, v{VT + 6}
    s_nop 0
    v_readfirstlane_b32 s48, v{VT + 4}
    s_nop 1
    s_cmp_lg_u32 s48, 0
    s_cbranch_scc1 L_fallback
    s_lshl_b32 s50, s50, 18
    s_lshl_b32 s51, s51, 18
    s_lshl_b32 s48, s32, 13
    s_add_u32 s50, s50, s48
    s_add_u32 s51, s51, s48
    s_add_u32 s52, s50, 4096
    s_add_u32 s53, s51, 4096
    """)
    n = 0
    for t in range(2):
        k(f'v_mov_b32 v{VT + 32}, v{VL + t}\nv_mov_b32 v{VT + 33}, v{VL + t}')
        for dt in range(4):
            for hf in range(2):
                tb = (n & 3) * 8
                n += 1
                src = OACC(dt, t) + 8 * hf
                for i in range(8):
                    k(f'v_accvgpr_read_b32 v{tb + i}, a{src + i}')
                for i in range(0, 8, 2):
                    k(f'v_pk_mul_f32 {vr(tb + i, 2)}, {vr(tb + i, 2)}, {vr(VT + 32, 2)}')
                for i in range(4):
                    k(f'v_cvt_pk_bf16_f32 v{tb + i}, v{tb + 2 * i}, v{tb + 2 * i + 1}')
                ks = 2 * dt + hf
                k(f'buffer_store_dwordx4 {vr(tb, 4)}, v{VLN}, s[28:31], s{50 + t + 2 * (ks >> 2)} offen offset:{(ks & 3) * 1024}')
    if OPT['stamp']:
        stamp(k, 5)
        k("""s_cmp_lg_u32 s3, 0
        s_cbranch_scc1 L_k2_end
        s_cmp_ge_u32 s2, 8
        s_cbranch_scc1 L_k2_end""")
        srd(k, 68, 's62', 's63', 256)
        k('s_lshl_b32 s48, s2, 5')
        for i in range(6):
            k(f'v_mov_b32 v1, s{92 + i}\nv_mov_b32 v2, {4 * i}\nbuffer_store_dword v1, v2, s[68:71], s48 offen')
    k('L_k2_end:\ns_endpgm')
    k(f"""L_fallback:
    s_mov_b32 s64, 1
    s_mov_b32 s43, 0
    s_mov_b32 s42, 32
    v_mov_b32 v{VMT}, 0xff800000
    v_mov_b32 v{VMT + 1}, 0xff800000
    L_fb_loop:
    s_barrier""")
    lin = Lin()
    for g in kdma(0, 'K0'):
        lin.run(g)
    lin.run(['s_waitcnt vmcnt(0)', 's_barrier'])
    for f in range(LA):
        lin.run(k_read(0, f, RING + (f & 7) * 4))
    lin.run(qk0([]))
    lin.add('s_nop 15')
    for t in range(2):
        for u in range(2):
            for i in range(0, 16, 2):
                r = S_(0, u, t) + i
                lin.add(f'v_max3_f32 v{VMT + t}, v{VMT + t}, v{r}, v{r + 1}')
    k('\n'.join(lin.out))
    lin.out = []
    k('s_sub_u32 s42, s42, 1\ns_cmp_lg_u32 s42, 0\ns_cbranch_scc1 L_fb_loop')
    for t in range(2):
        k(f'v_mov_b32 v{VT + t}, v{VMT + t}')
    k('s_nop 1')
    for t in range(2):
        k(f'v_permlane32_swap_b32 v{VMT + t}, v{VT + t}')
    for t in range(2):
        k(f'v_max_f32 v{VMT + t}, v{VMT + t}, v{VT + t}')
    k('s_mov_b32 s43, 0\ns_mov_b32 s44, 0\ns_barrier')
    for g in kdma(0, 'K0') + vdma(0, 'V0') + vdma(1, 'V1') + kdma(1, 'K1') + kdma(2, 'K2') + kdma(3, 'K3'):
        lin.run(g)
    lin.run(['s_waitcnt vmcnt(0)', 's_barrier'])
    for f in range(LA):
        lin.run(k_read(0, f, RING + (f & 7) * 4))
    lin.run(qk0(zero_o))
    lin.add('s_branch L_att_go')
    k('\n'.join(lin.out))
    rings = {'G': (3, lambda n: (n * GSLOT, (n + 1) * GSLOT)),
             'A': (8, lambda n: (ABASE + n * 16384, ABASE + (n + 1) * 16384))}
    pol = [{'L_p1': [1] * 6 + [0], 'L_att_tail': [0, 0, 1], 'L_use_m0': [1]},
           {'L_p1': [1] * 6 + [0], 'L_att_tail': [0, 1, 0, 1], 'L_use_m0': [1, 0], 'L_fallback': [1, 0]}]
    return k, k.check(pol, rings=rings)


def gen_k3():
    k = Kernel('fin_kernel')
    ACC = lambda nt: nt * 16
    ACT = lambda T, s: (T & 3) * 32 + s * 4
    R3 = 128
    VA = 64
    VD = 72
    VLN3 = 80
    T0, T1, T2, T3 = 84, 85, 86, 87
    k("""
    s_cmp_ge_u32 s2, 256
    s_cbranch_scc1 L_k3_end
    s_load_dwordx2 s[52:53], s[0:1], 0      ; x
    s_load_dwordx2 s[54:55], s[0:1], 32     ; wo
    s_load_dwordx2 s[56:57], s[0:1], 56     ; w2
    s_load_dwordx2 s[58:59], s[0:1], 64     ; out
    s_load_dwordx2 s[60:61], s[0:1], 80     ; ws
    s_load_dwordx2 s[62:63], s[0:1], 72     ; dbg
    v_lshrrev_b32 v1, 6, v0
    v_and_b32 v0, 63, v0
    s_and_b32 s32, s2, 7
    v_readfirstlane_b32 s3, v1
    s_lshr_b32 s33, s2, 3
    s_lshr_b32 s34, s32, 2
    s_and_b32 s32, s32, 3
    s_lshl_b32 s32, s32, 2
    s_and_b32 s35, s33, 3
    s_add_u32 s32, s32, s35                 ; mb (0..15)
    s_lshr_b32 s33, s33, 2                  ; nb (0..7)
    s_lshl_b32 s35, s32, 2
    s_add_u32 s35, s35, s3
    s_lshl_b32 s45, s3, 13                  ; w*8192 (LDS)
    s_add_u32 s46, s45, 4096
    s_lshl_b32 s47, s32, 3
    s_add_u32 s47, s47, s33
    """)
    stamp(k, 0)
    k(f"""
    v_lshlrev_b32 v{VLN3}, 4, v0
    v_lshrrev_b32 v{T0}, 4, v0
    v_and_b32 v{T1}, 15, v0
    v_lshlrev_b32 v{T2}, 2, v{T0}
    v_xor_b32 v{T2}, v{T2}, v{T1}
    v_lshlrev_b32 v{T2}, 4, v{T2}
    s_lshl_b32 s48, s3, 5
    v_add_u32 v{T3}, s48, v{T0}             ; row = 32w + (l>>4)
    v_lshl_add_u32 v{VD}, v{T3}, 11, v{T2}
    """)
    for j in range(1, 8):
        k(f'v_add_u32 v{VD + j}, {j * 8192 - (j & 3) * 1024}, v{VD}')
    k(f"""
    s_waitcnt lgkmcnt(0)
    s_cmp_eq_u32 s34, 0
    s_cselect_b32 s54, s54, s56
    s_cselect_b32 s55, s55, s57
    s_mov_b32 s64, 0x800000
    s_mov_b32 s65, 0x40000
    s_mov_b32 s66, {O_OFF}
    s_cselect_b32 s64, s64, 0x700000
    s_cselect_b32 s65, s65, 0x38000
    s_cselect_b32 s66, s66, {H_OFF}
    s_cselect_b32 s42, 8, 7
    s_lshl_b32 s48, s33, 8
    """)
    srd_off(k, 8, 's54', 's55', 's48', 0)
    k('s_sub_u32 s10, s64, s48')
    k('s_mul_i32 s48, s35, s65\ns_add_u32 s48, s48, s66')
    srd_off(k, 4, 's60', 's61', 's48', 0)
    k('s_mov_b32 s6, s65\ns_mov_b32 s38, 0\ns_mov_b32 s36, 0\ns_mov_b32 s37, 4096')

    def loads(T):
        tag = f'L{T & 3}'
        gs = []
        for j in range(8):
            it = []
            if j == 0:
                it += [f's_add_u32 m0, s45, {(T & 3) * 32768}', 's_nop 0']
            if j == 4:
                it += [f's_add_u32 m0, s46, {(T & 3) * 32768}', 's_nop 0']
            it.append(f'buffer_load_dwordx4 v{VD + j}, s[8:11], s38 offen offset:{(j & 3) * 1024} lds ;#{tag} @W W {T & 3}')
            if j == 7:
                it.append('s_add_u32 s38, s38, 0x40000')
            gs.append(it)
            it = [f'buffer_load_dwordx4 {ar(ACT(T, j), 4)}, v{VLN3}, s[4:7], s{36 + (j >> 2)} offen offset:{(j & 3) * 1024} ;#{tag}']
            if j == 7:
                it += ['s_add_u32 s36, s36, 8192', 's_add_u32 s37, s37, 8192']
            gs.append(it)
        return gs

    def wread(T, f):
        s, nt = divmod(f, 4)
        d = R3 + (f & 15) * 4
        o = (T & 1) * 32768 + s * 4096
        a = VA + ((T >> 1) & 1) * 4 + nt
        return [f'ds_read_b64_tr_b16 {ar(d, 2)}, v{a} offset:{o} ;@R W {T & 3}',
                f'ds_read_b64_tr_b16 {ar(d + 2, 2)}, v{a} offset:{o + 1024} ;@R W {T & 3}']
    lin = Lin()
    for T in range(3):
        for g in loads(T):
            lin.run(g)
    k('\n'.join(lin.out))
    lin.out = []
    tr_pattern(k, T2, 0, 256, T0, T1, True)
    k(f'v_bfe_u32 v{T3}, v0, 2, 2')
    for nt in range(4):
        k(f"""v_xor_b32 v{T0}, {nt}, v{T3}
        v_lshl_add_u32 v{VA + nt}, v{T0}, 6, v{T2}
        v_add_u32 v{VA + 4 + nt}, 0x10000, v{VA + nt}""")
    k(f"""
    v_and_b32 v{T0}, 31, v0
    v_lshrrev_b32 v{T1}, 5, v0
    v_lshlrev_b32 v{T1}, 4, v{T1}
    v_lshl_add_u32 v81, v{T0}, 11, v{T1}
    v_mov_b32 v82, 0
    """)
    for i in range(64):
        k(f'v_mov_b32 v{i}, 0')
    GB3 = 25
    gap3 = lambda f: (GB3 + 1 - 32) + (f * ((GB3 - 3) - (GB3 + 1 - 32))) // 31
    npre = sum(1 for f in range(32) if gap3(f) < 0)

    def stage(T):
        mf = []
        for s in range(8):
            for nt in range(4):
                f = s * 4 + nt
                mf.append(f'{MF} {vr(ACC(nt), 16)}, {ar(R3 + (f & 15) * 4, 4)}, {ar(ACT(T, s), 4)}, {vr(ACC(nt), 16)}')
        fill = {}
        add = lambda g, it: fill.setdefault(g, []).extend(it)
        for f in range(32):
            g = gap3(f)
            assert g >= f - 16 and g <= f - 4, (f, g)
            if g >= 0:
                add(g, wread(T, f))
        for n, gr in enumerate(loads(T + 3)):
            add(min(n * 3 // 2, GB3 - 1), gr)
        add(GB3, [('vmwait', [f'L{(T + 1) & 3}'], ' lgkmcnt(0)'), 's_barrier'])
        for f in range(npre):
            add(gap3(f) + 32, wread(T + 1, f))
        return weave(mf, fill)
    lin.add(('vmwait', ['L0']))
    lin.add('s_barrier')
    for f in range(npre):
        lin.run(wread(0, f))
    k('\n'.join(lin.out))
    stamp(k, 1)
    body = []
    for T in range(4):
        body += stage(T)
    st = steady(body)
    k('L_k3:')
    k('\n'.join(st.out))
    k('s_sub_u32 s42, s42, 1\ns_cmp_lg_u32 s42, 0\ns_cbranch_scc1 L_k3')
    stamp(k, 2)
    k(f"""
    s_lshl_b32 s48, s47, 15
    s_lshl_b32 s49, s3, 13
    s_add_u32 s48, s48, s49                 ; tile*32768 + w*8192
    s_cmp_eq_u32 s34, 0
    s_mov_b32 s49, {S_OFF}
    s_mov_b32 s50, {G_OFF}
    s_cselect_b32 s49, s49, {G_OFF}
    s_cselect_b32 s50, s50, {S_OFF}
    s_add_u32 s49, s49, s48
    s_add_u32 s50, s50, s48
    """)
    srd_off(k, 12, 's60', 's61', 's49', 8192)
    srd_off(k, 16, 's60', 's61', 's50', 8192)
    k(f's_lshl_b32 s48, s47, 7\ns_add_u32 s48, s48, {F_OFF}')
    srd_off(k, 20, 's60', 's61', 's48', 128)
    k('s_lshl_b32 s48, s35, 16\ns_lshl_b32 s49, s33, 8\ns_add_u32 s48, s48, s49')
    srd_off(k, 24, 's52', 's53', 's48', 65536)
    srd_off(k, 28, 's58', 's59', 's48', 65536)
    k('s_sub_u32 s26, s26, s49\ns_sub_u32 s30, s30, s49')
    XR, PK, OT = 96, 128, 160
    VX = 81
    k(f"""
    s_waitcnt vmcnt(0) lgkmcnt(0)
    """)
    for q in range(8):
        k(f'buffer_load_dwordx4 {vr(XR + 4 * q, 4)}, v{VX}, s[24:27], 0 offen offset:{q * 32}')
    for i in range(32):
        k(f'v_cvt_pk_bf16_f32 v{PK + i}, v{2 * i}, v{2 * i + 1}')
    k('s_cmp_eq_u32 s34, 0\ns_cbranch_scc1 L_k3_oproj')
    k(f's_mov_b32 s48, {f32(-math.log2(math.e))}')
    for i in range(32):
        k(f'v_lshlrev_b32 v{2 * i}, 16, v{PK + i}\nv_and_b32 v{2 * i + 1}, 0xffff0000, v{PK + i}')
    for c in range(0, 64, 16):
        for i in range(16):
            k(f'v_mul_f32 v{OT + i}, s48, v{c + i}')
        for i in range(16):
            k(f'v_exp_f32 v{OT + i}, v{OT + i}')
        for i in range(16):
            k(f'v_add_f32 v{OT + i}, 1.0, v{OT + i}')
        for i in range(16):
            k(f'v_rcp_f32 v{OT + i}, v{OT + i}')
        for i in range(16):
            k(f'v_mul_f32 v{c + i}, v{c + i}, v{OT + i}')
        for i in range(8):
            k(f'v_cvt_pk_bf16_f32 v{PK + c // 2 + i}, v{c + 2 * i}, v{c + 2 * i + 1}')
    k('L_k3_publish:')
    for q in range(8):
        k(f'buffer_store_dwordx4 {vr(PK + 4 * q, 4)}, v{VLN3}, s[12:15], {"0" if q < 4 else "s46"} offen offset:{(q & 3) * 1024} sc0 sc1'
          if False else
          f'buffer_store_dwordx4 {vr(PK + 4 * q, 4)}, v{VLN3}, s[12:15], s{67 + (q >> 2)} offen offset:{(q & 3) * 1024} sc0 sc1')
    k(f"""
    s_waitcnt vmcnt(0)
    s_barrier
    s_cmp_lg_u32 s3, 0
    s_cbranch_scc1 L_k3_pub_wait
    v_mov_b32 v{T0}, 1
    s_mov_b64 exec, 1
    buffer_atomic_add v{T0}, v82, s[20:23], 0 offen sc0 sc1
    s_waitcnt vmcnt(0)
    ds_write_b32 v82, v{T0}
    s_mov_b64 exec, -1
    s_waitcnt lgkmcnt(0)
    L_k3_pub_wait:
    s_barrier
    ds_read_b32 v{T0}, v82
    s_waitcnt lgkmcnt(0)
    v_readfirstlane_b32 s48, v{T0}
    s_nop 1
    s_cmp_eq_u32 s48, 0
    s_cbranch_scc1 L_k3_end
    s_branch L_k3_finish
    L_k3_oproj:
    s_mov_b32 s49, 4096
    s_cmp_lg_u32 s3, 0
    s_cbranch_scc1 L_k3_poll_done
    L_k3_poll:
    buffer_load_dword v{T0}, v82, s[20:23], 0 offen sc0 sc1
    s_waitcnt vmcnt(0)
    v_readfirstlane_b32 s48, v{T0}
    s_nop 1
    s_cmp_lg_u32 s48, 0
    s_cbranch_scc1 L_k3_poll_end
    s_sleep 4
    s_sub_u32 s49, s49, 1
    s_cmp_lg_u32 s49, 0
    s_cbranch_scc1 L_k3_poll
    L_k3_poll_end:
    ds_write_b32 v82, v{T0} offset:64
    s_waitcnt lgkmcnt(0)
    L_k3_poll_done:
    s_barrier
    ds_read_b32 v{T0}, v82 offset:64
    s_waitcnt lgkmcnt(0)
    v_readfirstlane_b32 s48, v{T0}
    s_nop 1
    s_cmp_eq_u32 s48, 0
    s_cbranch_scc1 L_k3_publish
    L_k3_finish:
    """)
    for q in range(8):
        k(f'buffer_load_dwordx4 {vr(OT + 4 * q, 4)}, v{VLN3}, s[16:19], s{67 + (q >> 2)} offen offset:{(q & 3) * 1024} sc0 sc1')
    for i in range(32):
        k(f'v_lshlrev_b32 v{2 * i}, 16, v{PK + i}\nv_and_b32 v{2 * i + 1}, 0xffff0000, v{PK + i}')
    for q in range(8):
        k(f's_waitcnt vmcnt({7 - q if q < 7 else 0})' if q == 0 else f's_waitcnt vmcnt(7)')
        for i in range(4):
            j = 4 * q + i
            k(f"""v_lshlrev_b32 v{T0}, 16, v{OT + j}
            v_and_b32 v{T1}, 0xffff0000, v{OT + j}
            v_mul_f32 v{T0}, v{T0}, v{2 * j}
            v_mul_f32 v{T1}, v{T1}, v{2 * j + 1}
            v_cvt_pk_bf16_f32 v{T0}, v{T0}, v{T1}
            v_lshlrev_b32 v{T2}, 16, v{XR + j}
            v_and_b32 v{T3}, 0xffff0000, v{XR + j}
            v_and_b32 v{T1}, 0xffff0000, v{T0}
            v_lshlrev_b32 v{T0}, 16, v{T0}
            v_add_f32 v{T0}, v{T0}, v{T2}
            v_add_f32 v{T1}, v{T1}, v{T3}
            v_cvt_pk_bf16_f32 v{OT + j}, v{T0}, v{T1}""")
        k(f'buffer_store_dwordx4 {vr(OT + 4 * q, 4)}, v{VX}, s[28:31], 0 offen offset:{q * 32}')
    if OPT['stamp']:
        stamp(k, 3)
        k("""s_cmp_lg_u32 s3, 0
        s_cbranch_scc1 L_k3_end
        s_cmp_ge_u32 s2, 8
        s_cbranch_scc1 L_k3_end""")
        srd(k, 72, 's62', 's63', 256)
        k('s_lshl_b32 s48, s2, 5')
        for i in range(4):
            k(f'v_mov_b32 v1, s{92 + i}\nv_mov_b32 v2, {4 * i}\nbuffer_store_dword v1, v2, s[72:75], s48 offen')
    k('L_k3_end:\ns_endpgm')
    idx = [i for i, (t, v) in enumerate(k.lines) if t == 'L' and v == 'L_k3'][0]
    k.lines[idx:idx] = [('I', Ins('s_mov_b32 s67, 0')), ('I', Ins('s_mov_b32 s68, 4096'))]
    rings = {'W': (4, lambda n: (n * 32768, (n + 1) * 32768))}
    pol = [{}, {'L_k3_oproj': [1]}, {'L_k3_oproj': [1], 'L_k3_publish': [1]},
           {'L_k3_oproj': [1], 'L_k3_poll_done': [1]}, {'L_k3_pub_wait': [1]}]
    return k, k.check(pol, rings=rings)


def main():
    out = 'cdna_kernels/' + NAME + '.s'
    for a in sys.argv[1:]:
        if '=' in a:
            kk, v = a.split('=')
            OPT[kk] = int(v)
        else:
            out = a
    ref = open('cdna_kernels/' + NAME + '.s.ref').read()
    header = '\n'.join(l for l in ref.split('\n')[:12])
    k1 = gen_ln()
    p = k1.check([{}, {'L_ln_noflag': [1]}])
    k2, p2 = gen_k2()
    k3, p3 = gen_k3()
    for x in p + p2 + p3:
        print('PROBLEM', x)
    s = build_file(header, [k1, k2, k3],
                   [('ln_kernel', 256, 512, 0), ('att_kernel', 256, 256, 163840), ('fin_kernel', 256, 256, 131072)])
    open(out, 'w').write(s)
    for k in (k1, k2, k3):
        print(k.name, 'instrs', sum(1 for t, _ in k.lines if t == 'I'), 'regs', k.max_regs())


if __name__ == '__main__':
    main()
```

```python
import re

REG_RE = re.compile(r'^(-?)(abs\()?([vas])(?:(\d+)|\[(\d+):(\d+)\])\)?$')


def regs_of(tok):
    tok = tok.strip()
    m = REG_RE.match(tok)
    if m:
        f = m.group(3)
        if m.group(4) is not None:
            return {(f, int(m.group(4)))}
        return {(f, i) for i in range(int(m.group(5)), int(m.group(6)) + 1)}
    if tok == 'vcc':
        return {('s', 'vcc')}
    if tok in ('vcc_lo', 'vcc_hi'):
        return {('s', 'vcc')}
    if tok in ('exec', 'exec_lo', 'exec_hi'):
        return {('s', 'exec')}
    if tok == 'm0':
        return {('s', 'm0')}
    return set()


TRANS = ('v_exp_f32', 'v_log_f32', 'v_rcp_f32', 'v_rsq_f32', 'v_sqrt_f32', 'v_sin_f32', 'v_cos_f32',
         'v_rcp_iflag_f32')


class Ins:
    __slots__ = ('text', 'op', 'ops', 'mods', 'dst', 'src', 'kind', 'passes', 'srcC', 'srcAB', 'line')

    def __init__(self, text):
        self.text = text
        t = text.split(';')[0].strip()
        parts = t.split(None, 1)
        self.op = parts[0]
        rest = parts[1] if len(parts) > 1 else ''
        ops, depth, cur = [], 0, ''
        for ch in rest:
            if ch in '[(':
                depth += 1
            if ch in '])':
                depth -= 1
            if ch == ',' and depth == 0:
                ops.append(cur.strip())
                cur = ''
            else:
                cur += ch
        last = cur.strip()
        mods = []
        if last:
            lp = last.split()
            ops.append(lp[0])
            mods = lp[1:]
        self.ops, self.mods = ops, mods
        self.dst, self.src = set(), set()
        self.srcC, self.srcAB = set(), set()
        self.passes = 0
        op = self.op
        R = [regs_of(o) for o in ops]
        U = lambda l: set().union(*l) if l else set()
        base = re.sub(r'_(e32|e64|dpp|sdwa)$', '', op)
        if op.startswith('v_mfma'):
            self.kind = 'mfma'
            self.dst = R[0]
            self.srcAB = R[1] | R[2]
            self.srcC = R[3]
            self.src = self.srcAB | self.srcC
            if '32x32x16' in op:
                self.passes = 8
            elif '16x16x32' in op:
                self.passes = 4
            else:
                raise ValueError('unknown mfma ' + op)
        elif op.startswith('v_'):
            self.kind = 'valu'
            if base in TRANS:
                self.kind = 'trans'
            if base.startswith('v_cmpx'):
                raise ValueError('avoid v_cmpx')
            if base.startswith('v_permlane') and 'swap' in base:
                self.dst = R[0] | R[1]
                self.src = R[0] | R[1]
            elif base in ('v_add_co_u32', 'v_sub_co_u32', 'v_addc_co_u32', 'v_subb_co_u32', 'v_subrev_co_u32'):
                self.dst = R[0] | R[1]
                self.src = U(R[2:])
            else:
                self.dst = R[0]
                self.src = U(R[1:])
                if base in ('v_fmac_f32', 'v_dot2c_f32_bf16', 'v_writelane_b32') or op.endswith('_dpp'):
                    self.src |= R[0]
        elif op.startswith('ds_'):
            self.kind = 'ds'
            if op.startswith('ds_write') or op.startswith('ds_add') or op.startswith('ds_or') or op.startswith('ds_max'):
                if '_rtn' in op:
                    self.dst = R[0]
                    self.src = U(R[1:])
                else:
                    self.src = U(R)
            else:
                self.dst = R[0]
                self.src = U(R[1:])
        elif op.startswith('buffer_') or op.startswith('global_'):
            self.kind = 'vmem'
            if op in ('buffer_wbl2', 'buffer_inv'):
                pass
            elif 'load' in op:
                if 'lds' in self.mods or '_lds_' in op:
                    self.src = U(R) | {('s', 'm0')}
                    self.kind = 'vmem_lds'
                elif '#PF' in text:
                    self.src = U(R[1:])
                    self.srcC = R[0]
                else:
                    self.dst = R[0]
                    self.src = U(R[1:])
            elif 'store' in op:
                self.src = U(R)
                self.kind = 'vmem_st'
            elif 'atomic' in op:
                self.src = U(R)
                if 'sc0' in self.mods:
                    self.dst = R[0]
                    if op.startswith('global_'):
                        self.src = U(R[1:])
            else:
                raise ValueError(op)
        elif op.startswith('s_'):
            self.kind = 'salu'
            if op.startswith('s_load') or op.startswith('s_buffer_load') or op in ('s_memtime', 's_memrealtime'):
                self.kind = 'smem'
                self.dst = R[0]
                self.src = U(R[1:])
            elif op.startswith('s_cmp') or op.startswith('s_bitcmp'):
                self.src = U(R)
            elif op in ('s_waitcnt', 's_nop', 's_barrier', 's_endpgm', 's_setprio', 's_sleep', 's_branch') \
                    or op.startswith('s_cbranch'):
                pass
            else:
                self.dst = R[0]
                self.src = U(R[1:])
                if 'saveexec' in op:
                    self.dst |= {('s', 'exec')}
                    self.src |= {('s', 'exec')}
                if op in ('s_addk_i32', 's_mulk_i32'):
                    self.src |= R[0]
        else:
            raise ValueError('unknown instr ' + text)

    def states(self):
        if self.op == 's_nop':
            return int(self.ops[0], 0) + 1
        return 1


def _vec(rs):
    return {r for r in rs if r[0] in 'va'}


def _sca(rs):
    return {r for r in rs if r[0] == 's'}


def check_trace(trace, name=''):
    probs = []
    hist = []
    pos = 0
    vmq, lgq = [], []
    for ins in trace:
        start = pos
        if ins.op == 's_waitcnt':
            txt = ins.text.split(';')[0]
            m = re.search(r'vmcnt\((\d+)\)', txt)
            if m:
                n = int(m.group(1))
                assert n <= 63
                while len(vmq) > n:
                    vmq.pop(0)
            m = re.search(r'lgkmcnt\((\d+)\)', txt)
            if m:
                n = int(m.group(1))
                assert n <= 15
                if any(p[0].kind == 'smem' for p in lgq) and n != 0:
                    probs.append(f'{name}: counted lgkmcnt with SMEM outstanding: {ins.text}')
                while len(lgq) > n:
                    lgq.pop(0)
        touched = ins.src | ins.dst
        for q, qn in ((vmq, 'vm'), (lgq, 'lgkm')):
            for pi, pd in q:
                if pd & touched:
                    probs.append(f'{name}: [{qn} pending] {ins.text}   <- {pi.text}')
        isvalu = ins.kind in ('valu', 'trans')
        for pend, p in reversed(hist):
            d = start - pend
            if d >= 20:
                break
            pvalu = p.kind in ('valu', 'trans')

            def need(n, why):
                if d < n:
                    probs.append(f'{name}: hazard {why} need {n} have {d}: {p.text}  ->  {ins.text}')
            if pvalu and ins.kind == 'mfma' and _vec(p.dst) & ins.src:
                need(2, 'valu->mfma')
            if p.kind == 'mfma':
                tb = {4: (0, 6, 8, 8, 3), 8: (0, 10, 12, 12, 7)}[p.passes]
                if ins.kind == 'mfma':
                    if p.dst & ins.srcC:
                        if p.dst == ins.srcC and p.passes == ins.passes:
                            pass
                        else:
                            need(tb[1], 'mfmaD->srcC overlap')
                    if p.dst & ins.srcAB:
                        need(tb[2], 'mfmaD->srcAB')
                    if (p.dst & ins.dst) and not (p.dst == ins.srcC):
                        need(tb[1], 'mfmaD->mfmaD WAW')
                elif p.dst & touched:
                    need(tb[3], 'mfmaD->other')
                if isvalu and (p.srcC & ins.dst):
                    need(tb[4], 'mfma srcC WAR')
                if ins.kind in ('ds', 'vmem') and (p.srcC & ins.dst):
                    need(tb[4], 'mfma srcC WAR(load)')
            if p.kind == 'trans' and isvalu and ins.kind != 'trans' and p.dst & ins.src:
                need(1, 'trans->valu')
            if p.kind == 'trans' and ins.kind == 'trans' and p.dst & ins.src:
                need(1, 'trans->trans(conservative)')
            if pvalu and _sca(p.dst):
                if ins.kind.startswith('vmem') and _sca(p.dst) & ins.src:
                    need(5, 'valu sgpr->vmem')
                if isvalu and _sca(p.dst) & ins.src:
                    need(4 if ins.op.startswith('v_readlane') or ins.op.startswith('v_writelane') else 2,
                         'valu sgpr->valu')
                if isvalu and ins.op.startswith('v_cndmask') and len(ins.ops) == 3 and ('s', 'vcc') in p.dst:
                    need(2, 'vcc->cndmask')
                if ins.kind in ('salu', 'smem') and _sca(p.dst) & ins.src:
                    need(1, 'valu sgpr->salu (conservative)')
                if ins.op in ('s_cbranch_vccz', 's_cbranch_vccnz') and ('s', 'vcc') in p.dst:
                    need(1, 'valu vcc->branch (conservative)')
            if pvalu and _vec(p.dst) & ins.src:
                if ins.op.startswith('v_readfirstlane') or ins.op.startswith('v_readlane'):
                    need(1, 'valu->readlane')
                if ins.op.startswith('v_permlane'):
                    need(2, 'valu->permlane')
                if ins.op.endswith('_dpp'):
                    need(2, 'valu->dpp')
            if p.kind == 'salu' and ('s', 'm0') in p.dst and ins.kind == 'vmem_lds':
                need(1, 'm0->ldsdma')
            if p.kind == 'vmem_st' and ('x4' in p.op or 'x3' in p.op):
                data = regs_of(p.ops[0]) if p.op.startswith('buffer') else regs_of(p.ops[1])
                if data & ins.dst:
                    need(2, 'store data WAR')
            if p.kind == 'ds' and p.op.startswith('ds_write') and ('b128' in p.op or 'b96' in p.op):
                data = regs_of(p.ops[1])
                if data & ins.dst:
                    need(2, 'dswrite data WAR (conservative)')
        pos += ins.states()
        hist.append((pos, ins))
        if len(hist) > 40:
            hist.pop(0)
        if ins.kind in ('vmem', 'vmem_lds', 'vmem_st'):
            vmq.append((ins, set(ins.dst)))
            if len(vmq) > 63:
                probs.append(f'{name}: more than 63 vmem outstanding at {ins.text}')
        elif ins.kind == 'ds':
            lgq.append((ins, set(ins.dst)))
        elif ins.kind == 'smem':
            lgq.append((ins, set(ins.dst)))
    return probs


def check_lds(trace, rings, name=''):
    probs = []
    rot = {r: 0 for r in rings}
    wstate = {}
    rstate = {}
    vmq, lgq = [], []

    def gran(ring, off):
        n, fn = rings[ring]
        lo, hi = fn((rot[ring] + off) % n)
        return range(lo // 4096, (hi + 4095) // 4096)
    for ins in trace:
        c = ins.text.split(';', 1)[1] if ';' in ins.text else ''
        m = re.search(r'@ROT (\w+)', c)
        if m:
            rot[m.group(1)] += 1
        m = re.search(r'@SET (\w+) (\d+)', c)
        if m:
            rot[m.group(1)] = int(m.group(2))
        if ins.op == 's_waitcnt':
            txt = ins.text.split(';')[0]
            m = re.search(r'vmcnt\((\d+)\)', txt)
            if m:
                while len(vmq) > int(m.group(1)):
                    g = vmq.pop(0)
                    for x in g:
                        if not any(x in o for o in vmq) and wstate.get(x) == 'issued':
                            wstate[x] = 'waited'
            m = re.search(r'lgkmcnt\((\d+)\)', txt)
            if m:
                while len(lgq) > int(m.group(1)):
                    k, g = lgq.pop(0)
                    for x in g:
                        if k == 'R' and not any(kk == 'R' and x in o for kk, o in lgq) and rstate.get(x) == 'issued':
                            rstate[x] = 'waited'
                        if k == 'W' and not any(kk == 'W' and x in o for kk, o in lgq) and wstate.get(x) == 'issued':
                            wstate[x] = 'waited'
        if ins.op == 's_barrier':
            for x, v in wstate.items():
                if v == 'waited':
                    wstate[x] = 'visible'
            for x, v in rstate.items():
                if v == 'waited':
                    rstate[x] = 'done'
        mw = re.search(r'@W (\w+) ([+-]?\d+)', c)
        mr = re.search(r'@R (\w+) ([+-]?\d+)', c)
        g = []
        if mw:
            g = list(gran(mw.group(1), int(mw.group(2))))
            for x in g:
                if rstate.get(x, 'done') != 'done':
                    probs.append(f'{name}: LDS WAR granule {x} reads {rstate[x]}: {ins.text}')
                    break
            for x in g:
                wstate[x] = 'issued'
        if mr:
            g = list(gran(mr.group(1), int(mr.group(2))))
            for x in g:
                if wstate.get(x) != 'visible':
                    probs.append(f'{name}: LDS RAW granule {x} write {wstate.get(x)}: {ins.text}')
                    break
            for x in g:
                rstate[x] = 'issued'
        if ins.kind in ('vmem', 'vmem_lds', 'vmem_st'):
            vmq.append(g if mw else [])
        elif ins.kind in ('ds', 'smem'):
            lgq.append(('W' if mw else 'R', g))
        if ins.kind == 'vmem_lds' and not mw:
            probs.append(f'{name}: untagged LDS-DMA {ins.text}')
    seen, out = set(), []
    for p in probs:
        if p not in seen:
            seen.add(p)
            out.append(p)
    return out


class Lin:
    def __init__(self, lg=None, vm=None):
        self.lg = list(lg or [])
        self.vm = list(vm or [])
        self.out = []

    def add(self, item):
        if isinstance(item, tuple):
            if item[0] == 'vmwait':
                tag = item[1]
                last = -1
                for i, (t, _) in enumerate(self.vm):
                    if t in tag:
                        last = i
                if last >= 0:
                    n = len(self.vm) - 1 - last
                    n = min(n, 63)
                    extra = item[2] if len(item) > 2 else ''
                    self.out.append(f's_waitcnt vmcnt({n}){extra}')
                    self.vm = self.vm[len(self.vm) - n:] if n else []
                    if 'lgkmcnt(0)' in extra:
                        self.lg = []
                elif len(item) > 2:
                    self.out.append(f's_waitcnt{item[2]}')
                    if 'lgkmcnt(0)' in item[2]:
                        self.lg = []
                return
            raise ValueError(item)
        t = item.strip()
        if t.endswith(':') or t.startswith(';') or t.startswith('.'):
            self.out.append(t)
            return
        ins = Ins(t)
        touched = ins.src | ins.dst
        last = -1
        for i, d in enumerate(self.lg):
            if d & touched:
                last = i
        lastv = -1
        for i, (tg, d) in enumerate(self.vm):
            if d & touched:
                lastv = i
        w = ''
        if last >= 0:
            n = min(len(self.lg) - 1 - last, 15)
            w += f' lgkmcnt({n})'
            self.lg = self.lg[len(self.lg) - n:] if n else []
        if lastv >= 0:
            n = min(len(self.vm) - 1 - lastv, 63)
            w = f' vmcnt({n})' + w
            self.vm = self.vm[len(self.vm) - n:] if n else []
        if w:
            self.out.append('s_waitcnt' + w)
        if ins.op == 's_waitcnt':
            m = re.search(r'lgkmcnt\((\d+)\)', t)
            if m:
                n = int(m.group(1))
                self.lg = self.lg[max(0, len(self.lg) - n):] if n else []
            m = re.search(r'vmcnt\((\d+)\)', t)
            if m:
                n = int(m.group(1))
                self.vm = self.vm[max(0, len(self.vm) - n):] if n else []
        self.out.append(t)
        if ins.kind == 'ds':
            self.lg.append(set(ins.dst))
        elif ins.kind in ('vmem', 'vmem_lds', 'vmem_st'):
            m = re.search(r'#(\S+)', t)
            self.vm.append((m.group(1) if m else '', set(ins.dst)))

    def run(self, items):
        for it in items:
            self.add(it)
        return self


def steady(items, retag=None):
    l = Lin().run(items)
    for _ in range(2):
        vm = [((retag(t) if retag else t), d) for t, d in l.vm]
        l = Lin(l.lg, vm).run(items)
    return l


class Kernel:
    def __init__(self, name):
        self.name = name
        self.lines = []

    def __call__(self, text):
        for t in text.strip().split('\n'):
            t = t.strip()
            if not t:
                continue
            if t.startswith(';'):
                self.lines.append(('C', t))
            elif t.endswith(':'):
                self.lines.append(('L', t[:-1]))
            elif t.startswith('.'):
                self.lines.append(('D', t))
            else:
                self.lines.append(('I', Ins(t)))

    def label(self, l):
        self.lines.append(('L', l))

    def text(self):
        out = []
        for k, v in self.lines:
            if k == 'L':
                out.append(v + ':')
            elif k == 'I':
                out.append('  ' + v.text)
            else:
                out.append('  ' + v)
        return '\n'.join(out)

    def trace(self, policy=None, back=2, maxlen=400000):
        policy = {k: list(v) for k, v in (policy or {}).items()}
        labels = {v: i for i, (k, v) in enumerate(self.lines) if k == 'L'}
        cnt = {}
        pc, tr = 0, []
        while pc < len(self.lines):
            k, v = self.lines[pc]
            if k != 'I':
                pc += 1
                continue
            tr.append(v)
            assert len(tr) < maxlen, 'trace too long'
            if v.op == 's_endpgm':
                break
            if v.op == 's_branch':
                pc = labels[v.ops[0]]
                continue
            if v.op.startswith('s_cbranch'):
                tgt = v.ops[0]
                if tgt in policy and policy[tgt]:
                    take = policy[tgt].pop(0)
                elif labels[tgt] < pc:
                    c = cnt.get(pc, 0)
                    take = c < back
                    cnt[pc] = c + 1 if take else 0
                else:
                    take = False
                if take:
                    pc = labels[tgt]
                    continue
            pc += 1
        return tr

    def check(self, policies=({},), back=2, rings=None):
        probs = []
        for p in policies:
            tr = self.trace(p, back)
            probs += check_trace(tr, self.name)
            if rings:
                probs += check_lds(tr, rings, self.name)
        seen, out = set(), []
        for p in probs:
            if p not in seen:
                seen.add(p)
                out.append(p)
        return out

    def max_regs(self):
        mv = ma = ms = -1
        for k, v in self.lines:
            if k == 'I':
                for f, i in v.src | v.dst | v.srcC:
                    if isinstance(i, int):
                        if f == 'v':
                            mv = max(mv, i)
                        elif f == 'a':
                            ma = max(ma, i)
                        else:
                            ms = max(ms, i)
        return mv, ma, ms


def descriptor(k, extra=''):
    mv, ma, ms = k.max_regs()
    acc = ((mv + 1 + 3) // 4) * 4
    acc = max(acc, 4)
    nfv = acc + ma + 1 if ma >= 0 else mv + 1
    return f""".p2align 6
.amdhsa_kernel {k.name}
  .amdhsa_next_free_vgpr {nfv}
  .amdhsa_next_free_sgpr {max(ms + 1, 16)}
  .amdhsa_accum_offset {acc}
  .amdhsa_group_segment_fixed_size 0
  .amdhsa_kernarg_size 88
  .amdhsa_user_sgpr_count 2
  .amdhsa_user_sgpr_kernarg_segment_ptr 1
  .amdhsa_system_sgpr_workgroup_id_x 1
{extra}.end_amdhsa_kernel
"""


def build_file(header, kernels, launches, extras=None):
    out = [header.rstrip()]
    for n, g, b, lds in launches:
        out.append(f'; @launch kernel={n} grid=({g},1,1) block=({b},1,1) lds={lds}')
    out.append('.amdgcn_target "amdgcn-amd-amdhsa--gfx950"')
    out.append('.text')
    for k in kernels:
        out.append(f'.globl {k.name}\n.p2align 8\n.type {k.name},@function\n{k.name}:')
        out.append(k.text())
    out.append('.section .rodata,"a"')
    for k in kernels:
        out.append(descriptor(k, (extras or {}).get(k.name, '')))
    return '\n'.join(out) + '\n'
```

```python
import math
import struct
import sys

sys.path.insert(0, 'work')
from asmlib import *

NAME = 'recurrent_scan__mha_block_cached__dense_activation_relu__prompt'
XN_OFF, H_OFF, O_OFF, G_OFF, S_OFF, F_OFF = 0, 0x400000, 0x1400000, 0x2400000, 0x2800000, 0x3000000
MF = 'v_mfma_f32_32x32x16_bf16'
OPT = dict(empty=0, warm=1, wg=64, pfd=0, pfp=1, pfg=64, pfgap=2, stamp=0, nodma=0, nobar=0, nolds=0, novalu=0, noadd=0, nocvt=0, noexp=0)


def f32(x):
    return '0x%08x' % struct.unpack('<I', struct.pack('<f', x))[0]


def vr(b, n=1):
    return f'v{b}' if n == 1 else f'v[{b}:{b + n - 1}]'


def ar(b, n=1):
    return f'a{b}' if n == 1 else f'a[{b}:{b + n - 1}]'


def srd(k, d, lo, hi, nbytes):
    k(f"""s_mov_b32 s{d}, {lo}
    s_mov_b32 s{d + 1}, {hi}
    s_mov_b32 s{d + 2}, {nbytes}
    s_mov_b32 s{d + 3}, 0x20000""")


def srd_off(k, d, lo, hi, off, nbytes):
    k(f"""s_add_u32 s{d}, {lo}, {off}
    s_addc_u32 s{d + 1}, {hi}, 0
    s_mov_b32 s{d + 2}, {nbytes}
    s_mov_b32 s{d + 3}, 0x20000""")


def weave(mfmas, fill):
    out = []
    for g, m in enumerate(mfmas):
        out += fill.get(('pre', g), [])
        out.append(m)
        out += fill.get(g, [])
    return out


def stamp(k, idx, sreg=92, last=False):
    if not OPT['stamp']:
        return
    k(f"""s_memtime s[{sreg}:{sreg + 1}]
    s_memrealtime s[{sreg + 2}:{sreg + 3}]
    s_waitcnt lgkmcnt(0)
    s_mov_b32 s{76 + idx}, s{sreg}
    s_mov_b32 s{84 + idx}, s{sreg + 2}""")


def stamp_out(k, endlabel, lo, hi):
    k(f"""s_cmp_lg_u32 s3, 0
    s_cbranch_scc1 {endlabel}
    s_cmp_ge_u32 s2, 4
    s_cbranch_scc1 {endlabel}""")
    srd(k, 72, lo, hi, 256)
    k('s_lshl_b32 s48, s2, 6')
    for i in range(16):
        k(f'v_mov_b32 v1, s{76 + i}\nv_mov_b32 v2, {4 * i}\nbuffer_store_dword v1, v2, s[72:75], s48 offen')


def gen_ln():
    k = Kernel('ln_kernel')
    k("""
    s_cmp_ge_u32 s2, 256
    s_cbranch_scc1 L_ln_end
    s_load_dwordx2 s[4:5], s[0:1], 0
    s_load_dwordx2 s[6:7], s[0:1], 80
    v_lshrrev_b32 v1, 6, v0
    v_and_b32 v2, 63, v0
    s_nop 0
    v_readfirstlane_b32 s3, v1
    s_lshl_b32 s16, s2, 3
    s_nop 1
    s_add_u32 s16, s16, s3            ; token T
    s_lshl_b32 s17, s16, 11
    v_lshlrev_b32 v3, 4, v2           ; lane*16
    s_waitcnt lgkmcnt(0)
    """)
    srd(k, 8, 's4', 's5', 0x400000)
    srd(k, 12, 's6', 's7', 0x400000)
    k("""
    buffer_load_dwordx4 v[4:7], v3, s[8:11], s17 offen
    buffer_load_dwordx4 v[8:11], v3, s[8:11], s17 offen offset:1024
    s_lshr_b32 s18, s16, 5
    s_lshl_b32 s18, s18, 16
    s_and_b32 s19, s16, 31
    s_lshl_b32 s19, s19, 4
    s_add_u32 s18, s18, s19
    s_add_u32 s19, s18, 32768         ; chunk 64..127
    v_lshlrev_b32 v40, 9, v2          ; lane*512
    """)
    k(f"""
    s_cmp_ge_u32 s2, 128
    s_cbranch_scc1 L_ln_noflag
    s_cmp_lg_u32 s3, 0
    s_cbranch_scc1 L_ln_noflag
    """)
    srd_off(k, 20, 's6', 's7', F_OFF, 16384)
    k("""
    s_lshl_b32 s24, s2, 7
    v_and_b32 v41, 31, v2
    v_lshlrev_b32 v41, 2, v41
    v_mov_b32 v42, 0
    buffer_store_dword v42, v41, s[20:23], s24 offen
    L_ln_noflag:
    s_waitcnt vmcnt(0)
    """)
    for i in range(8):
        k(f'v_lshlrev_b32 v{12 + 2 * i}, 16, v{4 + i}')
        k(f'v_and_b32 v{13 + 2 * i}, 0xffff0000, v{4 + i}')

    def tree(dst, src, n):
        cur = list(range(src, src + n))
        t = dst
        while len(cur) > 1:
            nxt = []
            for i in range(0, len(cur), 2):
                k(f'v_add_f32 v{t}, v{cur[i]}, v{cur[i + 1]}')
                nxt.append(t)
                t += 1
            cur = nxt
        return cur[0]

    def wave_sum(r, tmp):
        for mode in ('quad_perm:[1,0,3,2]', 'quad_perm:[2,3,0,1]', 'row_half_mirror', 'row_mirror'):
            k('s_nop 1')
            k(f'v_add_f32_dpp v{r}, v{r}, v{r} {mode} row_mask:0xf bank_mask:0xf')
        for sw in ('v_permlane16_swap_b32', 'v_permlane32_swap_b32'):
            k(f'v_mov_b32 v{tmp}, v{r}')
            k('s_nop 1')
            k(f'{sw} v{r}, v{tmp}')
            k(f'v_add_f32 v{r}, v{r}, v{tmp}')
    r = tree(44, 12, 16)
    wave_sum(r, 43)
    k(f'v_mul_f32 v28, {f32(1 / 1024)}, v{r}')
    for i in range(16):
        k(f'v_sub_f32 v{44 + i}, v{12 + i}, v28')
    k('v_mul_f32 v30, v44, v44')
    k('v_mul_f32 v31, v45, v45')
    for i in range(2, 16):
        k(f'v_fmac_f32 v{30 + (i & 1)}, v{44 + i}, v{44 + i}')
    k('v_add_f32 v30, v30, v31')
    wave_sum(30, 43)
    k(f"""
    v_mul_f32 v30, {f32(1 / 1024)}, v30
    v_cvt_pk_bf16_f32 v29, v28, v30
    v_lshlrev_b32 v28, 16, v29             ; m_bf
    v_and_b32 v30, 0xffff0000, v29         ; var_bf
    v_add_f32 v30, {f32(1e-5)}, v30
    v_cvt_pk_bf16_f32 v30, v30, v30
    v_and_b32 v30, 0xffff0000, v30
    v_sqrt_f32 v30, v30
    s_nop 0
    v_cvt_pk_bf16_f32 v30, v30, v30
    v_and_b32 v30, 0xffff0000, v30
    v_rcp_f32 v30, v30
    """)
    for i in range(16):
        k(f'v_sub_f32 v{12 + i}, v{12 + i}, v28')
    for i in range(8):
        k(f'v_cvt_pk_bf16_f32 v{4 + i}, v{12 + 2 * i}, v{13 + 2 * i}')
    for i in range(8):
        k(f'v_lshlrev_b32 v{12 + 2 * i}, 16, v{4 + i}')
        k(f'v_and_b32 v{13 + 2 * i}, 0xffff0000, v{4 + i}')
    for i in range(16):
        k(f'v_mul_f32 v{12 + i}, v{12 + i}, v30')
    for i in range(8):
        k(f'v_cvt_pk_bf16_f32 v{4 + i}, v{12 + 2 * i}, v{13 + 2 * i}')
    k("""
    buffer_store_dwordx4 v[4:7], v40, s[12:15], s18 offen
    buffer_store_dwordx4 v[8:11], v40, s[12:15], s19 offen
    L_ln_end:
    s_endpgm
    """)
    return k


def tr_pattern(k, dst, lane, rowstride, t0, t1, swz):
    k(f"""
    v_lshrrev_b32 v{t0}, 5, v{lane}
    v_lshlrev_b32 v{t0}, 3, v{t0}
    v_bfe_u32 v{t1}, v{lane}, 2, 2
    v_add_u32 v{t0}, v{t0}, v{t1}
    v_mul_u32_u24 v{dst}, {rowstride}, v{t0}
    v_bfe_u32 v{t0}, v{lane}, 4, 1
    v_lshlrev_b32 v{t0}, 5, v{t0}
    v_add_u32 v{dst}, v{dst}, v{t0}
    v_and_b32 v{t0}, 1, v{lane}
    v_lshlrev_b32 v{t0}, 4, v{t0}
    v_add_u32 v{dst}, v{dst}, v{t0}
    v_bfe_u32 v{t0}, v{lane}, 1, 1
    v_lshlrev_b32 v{t0}, 3, v{t0}
    v_add_u32 v{dst}, v{dst}, v{t0}
    """)


GSLOT = 45056
ABASE = 32768
KSLOT = lambda i: 4 + ((i + 3) & 3)
VSLOT = lambda i: (i + 1) & 3
S_ = lambda b, u, t: b * 64 + (u * 2 + t) * 16
NEGM = lambda t: 128 + 16 * t
VKA = 160
VVA = 168
VKD = 172
VVD = 176
VL = 177
VLN = 179
VMT = 180
VT = 208
HACC = [64, 80, 96, 112, 128, 144, 192]
PWQ = 2
PW1 = 6
PP1 = 13
PCQ = 14
PC1 = 18
OACC = lambda dt, t: (dt * 2 + t) * 16
QF = lambda t, s: 128 + (t * 8 + s) * 4
XN = lambda b, t, s: 128 + b * 32 + (t * 4 + s) * 4
RING = 192


def p1_dma_items(tag, wtag):
    g = []
    for j in range(4):
        it = []
        if j == 0:
            it += ['s_add_u32 m0, s40, s45', 's_nop 0']
        it.append(f'buffer_load_dwordx4 v{PWQ + j}, s[8:11], s38 offen offset:{j * 1024} lds')
        g.append(it)
    for j in range(7):
        it = []
        if j == 0:
            it += ['s_add_u32 m0, s40, s46', 's_nop 0']
        if j == 4:
            it += ['s_add_u32 m0, s40, s47', 's_nop 0']
        it.append(f'buffer_load_dwordx4 v{PW1 + j}, s[12:15], s39 offen offset:{(j & 3) * 1024} lds')
        g.append(it)
    return g


def p1_dma_advance():
    return ['s_add_u32 s38, s38, 0x80000', 's_add_u32 s39, s39, 0x70000',
            f's_add_u32 s40, s40, {GSLOT}', f's_cmp_ge_u32 s40, {3 * GSLOT}', f's_cselect_b32 s48, {3 * GSLOT}, 0',
            's_sub_u32 s40, s40, s48']


def xn_load(b, t, s, tag):
    return f'buffer_load_dwordx4 {ar(XN(b, t, s), 4)}, v{VLN}, s[4:7], s{36 + t} offen offset:{s * 1024} ;#{tag}'


def kdma(i, tag):
    g = []
    for j in range(4):
        it = []
        if j == 0:
            it += [f's_add_u32 m0, s45, {ABASE + KSLOT(i) * 16384}', 's_nop 0']
        it.append(f'buffer_load_dwordx4 v{VKD + j}, s[16:19], s43 offen offset:{j * 1024} lds')
        if j == 3:
            it.append('s_add_u32 s43, s43, 16384')
        g.append(it)
    return g


def vdma(i, tag):
    g = []
    for j in range(4):
        it = []
        if j == 0:
            it += [f's_add_u32 m0, s45, {ABASE + VSLOT(i) * 16384}', 's_nop 0']
        it.append(f'buffer_load_dwordx4 v{VVD}, s[20:23], s44 offen offset:{j * 1024} lds')
        if j == 3:
            it.append('s_add_u32 s44, s44, 16384')
        g.append(it)
    return g


NR1 = 11


def p1_frag_reads(f, ridx, rel):
    s, i = divmod(f, 11)
    d = RING + (ridx % NR1) * 4
    if i < 4:
        o = 16 * s * 256
        return [f'ds_read_b64_tr_b16 {ar(d, 2)}, v{PCQ + i} offset:{o} ;@R G {rel}',
                f'ds_read_b64_tr_b16 {ar(d + 2, 2)}, v{PCQ + i} offset:{o + 1024} ;@R G {rel}']
    o = 16384 + 16 * s * 448 + (i - 4) * 64
    return [f'ds_read_b64_tr_b16 {ar(d, 2)}, v{PC1} offset:{o} ;@R G {rel}',
            f'ds_read_b64_tr_b16 {ar(d + 2, 2)}, v{PC1} offset:{o + 4 * 448} ;@R G {rel}']


def p1_addr_update():
    it = [f's_add_u32 s41, s41, {GSLOT} ;@ROT G', f's_cmp_ge_u32 s41, {3 * GSLOT}', f's_cselect_b32 s48, {3 * GSLOT}, 0',
          's_sub_u32 s41, s41, s48', f's_sub_u32 s49, s41, {ABASE}']
    for i in range(4):
        it.append(f'v_add_u32 v{PCQ + i}, s49, v{VVA + i}')
    it.append(f'v_add_u32 v{PC1}, s41, v{PP1}')
    return it


P1_NPRE = 6
P1_GB = 52


def p1_tile(b, mode):
    mf, fu, lu = [], [], []
    for s in range(4):
        for dt in range(4):
            f = s * 11 + dt
            a = ar(RING + (f % NR1) * 4, 4)
            fu.append(len(mf))
            for t in range(2):
                mf.append(f'{MF} {ar(OACC(dt, t), 16)}, {a}, {ar(XN(b, t, s), 4)}, {ar(OACC(dt, t), 16)}')
            lu.append(len(mf) - 1)
        for nt in range(7):
            f = s * 11 + 4 + nt
            a = ar(RING + (f % NR1) * 4, 4)
            fu.append(len(mf))
            mf.append(f'{MF} {vr(HACC[nt], 16)}, {a}, {ar(XN(b, 0, s), 4)}, {vr(HACC[nt], 16)}')
            lu.append(len(mf) - 1)
    fill = {}
    add = lambda g, it: fill.setdefault(g, []).extend(it)
    first = P1_GB + 1 - 60
    span = (P1_GB - 4) - first
    gap_of = lambda f: first + (f * span) // 43
    npre = sum(1 for f in range(44) if gap_of(f) < 0)
    for f in range(44):
        g = gap_of(f)
        prev = f - NR1
        lastuse = lu[prev] if prev >= 0 else lu[prev + 44] - 60
        assert g >= lastuse, (f, g, lastuse)
        assert g <= fu[f] - 5, (f, g, fu[f])
        if g >= 0:
            add(g, p1_frag_reads(f, f, 0))
    tag = f'G{b}'
    if mode == 'loop':
        groups = p1_dma_items(tag, '+2')
        for gi, g in zip([1, 5, 10, 14, 19, 24, 28, 33, 37, 42, 46], groups):
            add(gi, g)
        add(47, p1_dma_advance())
        for s in range(4):
            add(15 * s + 8, [xn_load(b, 1, s, tag)])
            add(15 * s + 14, [xn_load(b, 0, s, tag)])
        add(59, ['s_add_u32 s36, s36, 4096', 's_add_u32 s37, s37, 4096'])
    elif mode == 't14':
        groups = vdma(0, 'V0') + vdma(1, 'V1')
        for gi, g in zip([1, 5, 10, 14, 19, 24, 28, 33], groups):
            add(gi, g)
    else:
        groups = kdma(1, 'K1') + kdma(2, 'K2') + kdma(3, 'K3')
        for gi, g in zip([1, 5, 10, 14, 19, 24, 28, 33, 37, 42, 46, 50], groups):
            add(gi, g)
    if mode != 't15':
        add(P1_GB, [('vmwait', [f'G{1 - b}'], ' lgkmcnt(0)'), 's_barrier'] + p1_addr_update())
        for f in range(npre):
            add(gap_of(f) + 60, p1_frag_reads(f, f, 0))
    return weave(mf, fill), npre


def k_read(i, f, d):
    u, s = divmod(f, 8)
    return [f'ds_read_b128 {ar(d, 4)}, v{VKA + s} offset:{(KSLOT(i) - 4) * 16384 + u * 8192} ;@R A {KSLOT(i)}']


def v_read(i, f, d):
    g, dt = divmod(f, 4)
    o = VSLOT(i) * 16384 + g * 4096
    return [f'ds_read_b64_tr_b16 {ar(d, 2)}, v{VVA + dt} offset:{o} ;@R A {VSLOT(i)}',
            f'ds_read_b64_tr_b16 {ar(d + 2, 2)}, v{VVA + dt} offset:{o + 1024} ;@R A {VSLOT(i)}']


def elem_reg(b, e):
    g, t, r = e >> 4, (e >> 3) & 1, e & 7
    return S_(b, g >> 1, t) + 8 * (g & 1) + r, t


def sm_exp(b, e):
    r, t = elem_reg(b, e)
    return f'v_exp_f32 v{r}, v{r}'


def sm_add(b, e):
    r, t = elem_reg(b, e)
    return f'v_add_f32 v{VL + t}, v{VL + t}, v{r}'


def sm_cvt(b, e):
    r, t = elem_reg(b, e)
    base = r - (e & 7)
    return f'v_cvt_pk_bf16_f32 v{base + (e & 7) // 2}, v{r - 1}, v{r}'


X_OFF = 16
LA = 4


def qk_mfmas(bS, c0=None):
    mf = []
    for u in range(2):
        for s in range(8):
            f = u * 8 + s
            for t in range(2):
                c = vr(S_(bS, u, t), 16) if s else (c0 if c0 is not None else vr(NEGM(t), 16))
                mf.append(f'{MF} {vr(S_(bS, u, t), 16)}, {ar(RING + (f & 7) * 4, 4)}, {ar(QF(t, s), 4)}, {c}')
    return mf


def pv_mfmas(bS):
    mf = []
    for g in range(4):
        for dt in range(4):
            f = 16 + g * 4 + dt
            for t in range(2):
                p = S_(bS, g >> 1, t) + 8 * (g & 1)
                mf.append(f'{MF} {ar(OACC(dt, t), 16)}, {ar(RING + (f & 7) * 4, 4)}, {vr(p, 4)}, {ar(OACC(dt, t), 16)}')
    return mf


def att_iter(i):
    b, nb = i & 1, (i + 1) & 1
    mf = qk_mfmas(nb) + pv_mfmas(b)
    fill = {}
    add = lambda g, it: fill.setdefault(g, []).extend(it)
    for g in range(64):
        e = g + X_OFF
        bb, ee = (b, e) if e < 64 else (nb, e - 64)
        add(g, [sm_exp(bb, ee)])
        pe = e - 1
        pb, pee = (b, pe) if pe < 64 else (nb, pe - 64)
        add(g, [sm_add(pb, pee)])
        if pee & 1:
            add(g, [sm_cvt(pb, pee)])
    for f in range(LA, 32 + LA):
        g = 2 * (f - LA)
        d = RING + (f & 7) * 4
        if f < 16:
            add(g, k_read(i + 1, f, d))
        elif f < 32:
            r = v_read(i, f - 16, d)
            add(g, r[:1])
            add(g + 1, r[1:])
        else:
            add(g, k_read(i + 2, f - 32, d))
    groups = vdma(i + 2, f'V{(i + 2) & 3}') + kdma(i + 4, f'K{i & 3}')
    for n, gr in enumerate(groups):
        add(1 + 2 * n + (n >= 4) * 2, gr)
    if OPT['warm'] and i == 1:
        add(21, [f'buffer_load_dword v{VT + 37}, v{VT + 36}, s[68:71], s65 offen ;#PF', 's_add_u32 s65, s65, 2048'])
    gb = 2 * (32 - LA) - 1
    add(gb, [('vmwait', [f'V{(i + 1) & 3}', f'K{(i + 2) & 3}']), 's_barrier'])
    out = weave(mf, fill)
    drop = []
    if OPT['nodma']:
        drop += ['buffer_load', 's_add_u32', 's_nop']
    if OPT['nobar']:
        drop += ['s_barrier']
    if OPT['nolds']:
        drop += ['ds_read']
    if OPT['novalu'] or OPT['noexp']:
        drop += ['v_exp']
    if OPT['novalu'] or OPT['noadd']:
        drop += ['v_add']
    if OPT['novalu'] or OPT['nocvt']:
        drop += ['v_cvt']
    return [x for x in out if isinstance(x, tuple) or not any(x.startswith(d) for d in drop)]


def att_tail():
    i, b = 3, 1
    items = []
    for f in range(16, 16 + LA):
        items += v_read(i, f - 16, RING + (f & 7) * 4)
    seq = []
    for e in range(X_OFF, 65):
        it = []
        if e < 64:
            it.append(sm_exp(b, e))
        it.append(sm_add(b, e - 1))
        if (e - 1) & 1:
            it.append(sm_cvt(b, e - 1))
        seq.append(it)
    npre = 24 - X_OFF + 1 if X_OFF < 24 else 1
    for it in seq[:npre]:
        items += it
    rest = seq[npre:]
    mf = pv_mfmas(b)
    fill = {}
    add = lambda g, it: fill.setdefault(g, []).extend(it)
    for n, it in enumerate(rest):
        add(n // 2, it)
    for f in range(16 + LA, 32):
        g = 2 * (f - 16 - LA)
        r = v_read(i, f - 16, RING + (f & 7) * 4)
        add(g, r[:1])
        add(g + 1, r[1:])
    return items + weave(mf, fill)


def gen_k2():
    k = Kernel('att_kernel')
    C = math.log2(math.e) / math.sqrt(128.0)
    k("""
    s_cmp_ge_u32 s2, 256
    s_cbranch_scc1 L_k2_end
    s_load_dwordx4 s[52:55], s[0:1], 8      ; K, V
    s_load_dwordx2 s[56:57], s[0:1], 24     ; wq
    s_load_dwordx2 s[58:59], s[0:1], 48     ; w1
    s_load_dwordx2 s[60:61], s[0:1], 80     ; ws
    s_load_dwordx2 s[62:63], s[0:1], 72     ; dbg
    s_load_dwordx2 s[96:97], s[0:1], 32     ; wo
    s_load_dwordx2 s[98:99], s[0:1], 56     ; w2
    v_lshrrev_b32 v1, 6, v0
    v_and_b32 v0, 63, v0
    s_and_b32 s32, s2, 7
    v_readfirstlane_b32 s3, v1
    s_lshl_b32 s32, s32, 2
    s_lshr_b32 s33, s2, 3
    s_and_b32 s34, s33, 3
    s_add_u32 s32, s32, s34                 ; head
    s_lshr_b32 s33, s33, 2                  ; q block
    s_and_b32 s34, s32, 1                   ; parity
    s_lshl_b32 s45, s3, 12                  ; w*4096
    s_mul_i32 s46, s3, 7168
    s_add_u32 s46, s46, 16384
    s_add_u32 s47, s46, 4096
    s_lshl_b32 s35, s33, 3
    s_lshl_b32 s50, s3, 1
    s_add_u32 s35, s35, s50
    s_add_u32 s50, s35, s34
    s_xor_b32 s51, s34, 1
    s_add_u32 s51, s35, s51
    s_lshl_b32 s36, s50, 16
    s_lshl_b32 s37, s51, 16
    s_mov_b32 s38, 0
    s_mov_b32 s39, 0
    s_mov_b32 s40, 0
    s_mov_b32 s41, 0
    s_mov_b32 s43, 0
    s_mov_b32 s44, 0
    s_mov_b32 s64, 0
    """)
    stamp(k, 0)
    T0, T1, T2, T3 = VT, VT + 1, VT + 2, VT + 3
    k(f"""
    v_lshlrev_b32 v{VLN}, 4, v0
    v_lshrrev_b32 v{T0}, 4, v0              ; l>>4
    v_and_b32 v{T1}, 15, v0                 ; l&15
    v_lshlrev_b32 v{T2}, 2, v{T0}
    v_xor_b32 v{T2}, v{T2}, v{T1}
    v_lshlrev_b32 v{T2}, 4, v{T2}
    s_lshl_b32 s48, s3, 4
    v_add_u32 v{T3}, s48, v{T0}             ; row = 16w + (l>>4)
    v_lshl_add_u32 v{VVD}, v{T3}, 8, v{T2}
    v_lshl_add_u32 v{PWQ}, v{T3}, 13, v{T2}
    """)
    for j in range(1, 4):
        k(f'v_add_u32 v{PWQ + j}, {j * 31744}, v{PWQ}')
    for j in range(4):
        k(f"""v_add_u32 v{T2}, {4 * j}, v{T0}
        v_xor_b32 v{T2}, v{T2}, v{T1}
        v_lshlrev_b32 v{T2}, 4, v{T2}
        v_lshl_add_u32 v{VKD + j}, v{T3}, 8, v{T2}""")
    k('s_mul_i32 s48, s3, 114688')
    for j in range(7):
        k(f"""v_add_u32 v{T2}, {64 * j}, v0
        v_mul_u32_u24 v{T3}, 2341, v{T2}
        v_lshrrev_b32 v{T3}, 16, v{T3}          ; row = x/28
        v_mul_u32_u24 v{PW1 + j}, {7168 - 448}, v{T3}
        v_lshl_add_u32 v{PW1 + j}, v{T2}, 4, v{PW1 + j}
        v_add_u32 v{PW1 + j}, s48, v{PW1 + j}""")
        if j & 3:
            k(f'v_subrev_u32 v{PW1 + j}, {(j & 3) * 1024}, v{PW1 + j}')
    k('s_waitcnt lgkmcnt(0)')
    srd_off(k, 4, 's60', 's61', XN_OFF, 0x400000)
    k('s_lshl_b32 s48, s32, 8')
    srd_off(k, 8, 's56', 's57', 's48', 0x800000 - 31 * 256)
    k('s_mov_b32 s10, 0x800000\ns_sub_u32 s10, s10, s48')
    k('s_lshr_b32 s48, s32, 1\ns_mul_i32 s48, s48, 448')
    srd_off(k, 12, 's58', 's59', 's48', 0)
    k('s_sub_u32 s14, 0x700000, s48')
    k('s_lshl_b32 s48, s32, 19')
    srd_off(k, 16, 's52', 's53', 's48', 0x80000)
    srd_off(k, 20, 's54', 's55', 's48', 0x80000)
    lin = Lin()
    for T in range(2):
        for g in p1_dma_items(f'G{T}', f'+{T}'):
            lin.run(g)
        lin.run(p1_dma_advance())
        for s in range(4):
            for t in range(2):
                lin.add(xn_load(T, t, s, f'G{T}'))
        lin.run(['s_add_u32 s36, s36, 4096', 's_add_u32 s37, s37, 4096'])
    for g in kdma(0, 'K0'):
        lin.run(g)
    k('\n'.join(lin.out))
    lin.out = []
    srd_off(k, 24, 's60', 's61', H_OFF, 0xE00000)
    srd_off(k, 28, 's60', 's61', O_OFF, 0x1000000)
    tr_pattern(k, T2, 0, 256, T0, T1, True)
    k(f'v_bfe_u32 v{T3}, v0, 2, 2')
    for dt in range(4):
        k(f"""v_xor_b32 v{T0}, {dt}, v{T3}
        v_lshl_add_u32 v{VVA + dt}, v{T0}, 6, v{T2}
        v_add_u32 v{VVA + dt}, {ABASE}, v{VVA + dt}
        v_subrev_u32 v{PCQ + dt}, {ABASE}, v{VVA + dt}""")
    tr_pattern(k, PP1, 0, 448, T0, T1, False)
    k(f'v_mov_b32 v{PC1}, v{PP1}')
    k(f"""
    v_and_b32 v{T0}, 19, v0
    v_bfe_u32 v{T1}, v0, 2, 1
    v_lshl_or_b32 v{T0}, v{T1}, 3, v{T0}
    v_bfe_u32 v{T1}, v0, 3, 1
    v_lshl_or_b32 v{T0}, v{T1}, 2, v{T0}    ; row
    v_and_b32 v{T1}, 15, v{T0}
    v_lshrrev_b32 v{T2}, 5, v0
    v_xor_b32 v{T1}, v{T1}, v{T2}           ; (row&15)^h
    v_lshlrev_b32 v{T0}, 8, v{T0}
    v_add_u32 v{T0}, {ABASE + 4 * 16384}, v{T0}
    """)
    for s in range(8):
        k(f"""v_xor_b32 v{T2}, {2 * s}, v{T1}
        v_lshl_add_u32 v{VKA + s}, v{T2}, 4, v{T0}""")
    for i in range(128):
        k(f'v_accvgpr_write_b32 a{i}, 0')
    for nt in range(7):
        for i in range(16):
            k(f'v_mov_b32 v{HACC[nt] + i}, 0')
    body0, npre = p1_tile(0, 'loop')
    body1, _ = p1_tile(1, 'loop')
    lin.add(('vmwait', ['G0']))
    lin.add('s_barrier')
    for f in range(npre):
        lin.run(p1_frag_reads(f, f, 0))
    k('\n'.join(lin.out))
    k('s_mov_b32 s42, 7')
    stamp(k, 1)
    st = steady(body0 + body1)
    k('L_p1:')
    k('\n'.join(st.out))
    k('s_sub_u32 s42, s42, 1\ns_cmp_lg_u32 s42, 0\ns_cbranch_scc1 L_p1')
    lin = Lin(st.lg, st.vm)
    lin.run(p1_tile(0, 't14')[0])
    lin.run(p1_tile(1, 't15')[0])
    k('\n'.join(lin.out))
    lin.out = []
    stamp(k, 2)
    if OPT['warm']:
        gsh = 6 if OPT['wg'] == 64 else 7
        k(f'''
        v_lshlrev_b32 v{VT + 36}, {gsh}, v0
        v_mov_b32 v{VT + 37}, 0x7fffffff
        v_cmp_lt_u32 vcc, {(2048 >> gsh) - 1}, v0
        s_and_b32 s49, s3, 1
        s_nop 0
        v_cndmask_b32 v{VT + 36}, v{VT + 36}, v{VT + 37}, vcc
        s_lshl_b32 s48, s2, 1
        s_add_u32 s48, s48, s49          ; 2*wg + (w&1)
        s_cmp_lt_u32 s3, 2
        s_mov_b32 s70, 14336
        s_cselect_b32 s70, 16384, s70
        s_cselect_b32 s68, s96, s98
        s_cselect_b32 s69, s97, s99
        s_mul_i32 s48, s48, s70
        s_add_u32 s68, s68, s48
        s_addc_u32 s69, s69, 0
        s_mov_b32 s71, 0x20000
        s_mov_b32 s65, 0
        ''')
    k(f's_mov_b32 s66, {f32(C)}\ns_mov_b32 s67, {f32(C)}')
    k('s_nop 3')
    for f in range(LA):
        lin.run(k_read(0, f, RING + (f & 7) * 4))
    n = 0
    for t in range(2):
        for dt in range(4):
            for hf in range(2):
                tb = VT + (n & 1) * 8
                n += 1
                src = OACC(dt, t) + 8 * hf
                for i in range(8):
                    lin.add(f'v_accvgpr_read_b32 v{tb + i}, a{src + i}')
                for i in range(0, 8, 2):
                    lin.add(f'v_pk_mul_f32 {vr(tb + i, 2)}, {vr(tb + i, 2)}, s[66:67]')
                for i in range(4):
                    lin.add(f'v_cvt_pk_bf16_f32 v{tb + i}, v{tb + 2 * i}, v{tb + 2 * i + 1}')
                for i in range(4):
                    lin.add(f'v_accvgpr_write_b32 a{QF(t, 2 * dt + hf) + i}, v{tb + i}')
    k('\n'.join(lin.out))
    lin.out = []
    k("""s_mul_i32 s48, s50, 229376
    s_lshr_b32 s49, s32, 1
    s_mul_i32 s49, s49, 14336
    s_add_u32 s48, s48, s49""")
    hep = []
    for nt in range(7):
        for hf in range(2):
            b = HACC[nt] + 8 * hf
            for i in range(4):
                hep.append(f'v_cvt_pk_bf16_f32 v{b + i}, v{b + 2 * i}, v{b + 2 * i + 1}')
            for i in range(4):
                hep.append(f'v_pk_max_i16 v{b + i}, v{b + i}, 0')
            ks = nt * 2 + hf
            if ks % 4 == 0 and ks:
                hep.append('s_add_u32 s48, s48, 4096')
            hep.append(f'buffer_store_dwordx4 {vr(b, 4)}, v{VLN}, s[24:27], s48 offen offset:{(ks & 3) * 1024} ;#H')

    def qk0(extra):
        mf = qk_mfmas(0, c0='0')
        fill = {}
        add = lambda g, it: fill.setdefault(g, []).extend(it)
        per = (len(extra) + 31) // 32
        for n, it in enumerate(extra):
            add(n // per, [it])
        for f in range(LA, 16):
            add(2 * (f - LA), k_read(0, f, RING + (f & 7) * 4))
        return weave(mf, fill)
    zero_o = [f'v_accvgpr_write_b32 a{i}, 0' for i in range(128)]
    mix = []
    for i in range(max(len(hep), len(zero_o))):
        if i < len(hep):
            mix.append(hep[i])
        if i < len(zero_o):
            mix.append(zero_o[i])
    lin.run(qk0(mix))
    k('\n'.join(lin.out))
    lin.out = []
    k('L_att_go:')
    lin.add(('vmwait', ['K1', 'V0']))
    lin.add('s_barrier')
    for f in range(LA):
        lin.run(k_read(1, f, RING + (f & 7) * 4))
    k('\n'.join(lin.out))
    lin.out = []
    k('s_nop 4')
    for t in range(2):
        m = VT + t
        regs = [S_(0, u, t) + i for u in range(2) for i in range(16)]
        k(f'v_max3_f32 v{m}, v{regs[0]}, v{regs[1]}, v{regs[2]}')
        for i in range(3, 31, 2):
            k(f'v_max3_f32 v{m}, v{m}, v{regs[i]}, v{regs[i + 1]}')
        k(f'v_max_f32 v{m}, v{m}, v{regs[31]}')
    for t in range(2):
        k(f'v_mov_b32 v{VT + 2 + t}, v{VT + t}')
    k('s_nop 1')
    for t in range(2):
        k(f'v_permlane32_swap_b32 v{VT + t}, v{VT + 2 + t}')
    for t in range(2):
        k(f'v_max_f32 v{VT + t}, v{VT + t}, v{VT + 2 + t}')
    k(f"""s_cmp_eq_u32 s64, 0
    s_cbranch_scc1 L_use_m0
    v_mov_b32 v{VT}, v{VMT}
    v_mov_b32 v{VT + 1}, v{VMT + 1}
    L_use_m0:""")
    for t in range(2):
        for i in range(16):
            k(f'v_sub_f32 v{NEGM(t) + i}, 0, v{VT + t}')
        k(f'v_mov_b32 v{VL + t}, 0')
    for u in range(2):
        for t in range(2):
            for i in range(0, 16, 2):
                r = S_(0, u, t) + i
                k(f'v_pk_add_f32 {vr(r, 2)}, {vr(r, 2)}, {vr(NEGM(t), 2)}')
    for e in range(X_OFF):
        k(sm_exp(0, e))
        if e:
            k(sm_add(0, e - 1))
            if (e - 1) & 1:
                k(sm_cvt(0, e - 1))
    k('s_mov_b32 s42, 8')
    stamp(k, 3)
    body = []
    for i in range(4):
        if i == 3:
            body += ['s_sub_u32 s42, s42, 1', 's_cmp_eq_u32 s42, 0', 's_cbranch_scc1 L_att_tail']
        body += att_iter(i)
    st = steady(body)
    k('L_att:')
    k('\n'.join(st.out))
    k('s_branch L_att')
    k('L_att_tail:')
    l3 = Lin(st.lg, st.vm)
    for i in range(3):
        l3.run(att_iter(i))
    lin = Lin(l3.lg, l3.vm)
    lin.run(att_tail())
    k('\n'.join(lin.out))
    lin.out = []
    stamp(k, 4)
    for t in range(2):
        k(f'v_mov_b32 v{VT + t}, v{VL + t}')
    k('s_nop 1')
    for t in range(2):
        k(f'v_permlane32_swap_b32 v{VL + t}, v{VT + t}')
    for t in range(2):
        k(f'v_add_f32 v{VL + t}, v{VL + t}, v{VT + t}')
    k(f"""
    v_max_f32 v{VT}, v{VL}, v{VL + 1}
    v_add_f32 v{VT + 1}, v{VL}, v{VL + 1}
    s_mov_b32 s48, 0x4e800000
    v_cmp_nle_f32 vcc, v{VT + 1}, s48
    s_nop 1
    s_cmp_lg_u64 vcc, 0
    s_cselect_b32 s48, 1, 0
    s_andn2_b32 s48, s48, s64
    v_mov_b32 v{VT + 2}, s48
    v_mov_b32 v{VT + 3}, 0
    s_waitcnt vmcnt(0) lgkmcnt(0)
    s_barrier
    s_lshl_b32 s49, s3, 2
    v_mov_b32 v{VT + 3}, s49
    ds_write_b32 v{VT + 3}, v{VT + 2}
    s_waitcnt lgkmcnt(0)
    s_barrier
    v_mov_b32 v{VT + 3}, 0
    ds_read_b128 {vr(VT + 4, 4)}, v{VT + 3}
    v_rcp_f32 v{VL}, v{VL}
    v_rcp_f32 v{VL + 1}, v{VL + 1}
    s_waitcnt lgkmcnt(0)
    v_or_b32 v{VT + 4}, v{VT + 4}, v{VT + 5}
    v_or_b32 v{VT + 6}, v{VT + 6}, v{VT + 7}
    v_or_b32 v{VT + 4}, v{VT + 4}, v{VT + 6}
    s_nop 0
    v_readfirstlane_b32 s48, v{VT + 4}
    s_nop 1
    s_cmp_lg_u32 s48, 0
    s_cbranch_scc1 L_fallback
    s_lshl_b32 s50, s50, 18
    s_lshl_b32 s51, s51, 18
    s_lshl_b32 s48, s32, 13
    s_add_u32 s50, s50, s48
    s_add_u32 s51, s51, s48
    s_add_u32 s52, s50, 4096
    s_add_u32 s53, s51, 4096
    """)
    n = 0
    for t in range(2):
        k(f'v_mov_b32 v{VT + 32}, v{VL + t}\nv_mov_b32 v{VT + 33}, v{VL + t}')
        for dt in range(4):
            for hf in range(2):
                tb = (n & 3) * 8
                n += 1
                src = OACC(dt, t) + 8 * hf
                for i in range(8):
                    k(f'v_accvgpr_read_b32 v{tb + i}, a{src + i}')
                for i in range(0, 8, 2):
                    k(f'v_pk_mul_f32 {vr(tb + i, 2)}, {vr(tb + i, 2)}, {vr(VT + 32, 2)}')
                for i in range(4):
                    k(f'v_cvt_pk_bf16_f32 v{tb + i}, v{tb + 2 * i}, v{tb + 2 * i + 1}')
                ks = 2 * dt + hf
                k(f'buffer_store_dwordx4 {vr(tb, 4)}, v{VLN}, s[28:31], s{50 + t + 2 * (ks >> 2)} offen offset:{(ks & 3) * 1024}')
    if OPT['stamp']:
        stamp(k, 5)
        stamp_out(k, 'L_k2_end', 's62', 's63')
    k('L_k2_end:\ns_endpgm')
    k(f"""L_fallback:
    s_mov_b32 s64, 1
    s_mov_b32 s43, 0
    s_mov_b32 s42, 32
    v_mov_b32 v{VMT}, 0xff800000
    v_mov_b32 v{VMT + 1}, 0xff800000
    L_fb_loop:
    s_barrier""")
    lin = Lin()
    for g in kdma(0, 'K0'):
        lin.run(g)
    lin.run(['s_waitcnt vmcnt(0)', 's_barrier'])
    for f in range(LA):
        lin.run(k_read(0, f, RING + (f & 7) * 4))
    lin.run(qk0([]))
    lin.add('s_nop 15')
    for t in range(2):
        for u in range(2):
            for i in range(0, 16, 2):
                r = S_(0, u, t) + i
                lin.add(f'v_max3_f32 v{VMT + t}, v{VMT + t}, v{r}, v{r + 1}')
    k('\n'.join(lin.out))
    lin.out = []
    k('s_sub_u32 s42, s42, 1\ns_cmp_lg_u32 s42, 0\ns_cbranch_scc1 L_fb_loop')
    for t in range(2):
        k(f'v_mov_b32 v{VT + t}, v{VMT + t}')
    k('s_nop 1')
    for t in range(2):
        k(f'v_permlane32_swap_b32 v{VMT + t}, v{VT + t}')
    for t in range(2):
        k(f'v_max_f32 v{VMT + t}, v{VMT + t}, v{VT + t}')
    k('s_mov_b32 s43, 0\ns_mov_b32 s44, 0\ns_barrier')
    for g in kdma(0, 'K0') + vdma(0, 'V0') + vdma(1, 'V1') + kdma(1, 'K1') + kdma(2, 'K2') + kdma(3, 'K3'):
        lin.run(g)
    lin.run(['s_waitcnt vmcnt(0)', 's_barrier'])
    for f in range(LA):
        lin.run(k_read(0, f, RING + (f & 7) * 4))
    lin.run(qk0(zero_o))
    lin.add('s_branch L_att_go')
    k('\n'.join(lin.out))
    rings = {'G': (3, lambda n: (n * GSLOT, (n + 1) * GSLOT)),
             'A': (8, lambda n: (ABASE + n * 16384, ABASE + (n + 1) * 16384))}
    pol = [{'L_p1': [1] * 6 + [0], 'L_att_tail': [0, 0, 1], 'L_use_m0': [1]},
           {'L_p1': [1] * 6 + [0], 'L_att_tail': [0, 1, 0, 1], 'L_use_m0': [1, 0], 'L_fallback': [1, 0]}]
    return k, k.check(pol, rings=rings)


def gen_k3():
    k = Kernel('fin_kernel')
    ACC = lambda nt: nt * 16
    ACT = lambda T, s: (T & 3) * 32 + s * 4
    R3 = 128
    VA = 64
    VD = 72
    VLN3 = 80
    T0, T1, T2, T3 = 84, 85, 86, 87
    k("""
    s_cmp_ge_u32 s2, 256
    s_cbranch_scc1 L_k3_end
    s_load_dwordx2 s[52:53], s[0:1], 0      ; x
    s_load_dwordx2 s[54:55], s[0:1], 32     ; wo
    s_load_dwordx2 s[56:57], s[0:1], 56     ; w2
    s_load_dwordx2 s[58:59], s[0:1], 64     ; out
    s_load_dwordx2 s[60:61], s[0:1], 80     ; ws
    s_load_dwordx2 s[62:63], s[0:1], 72     ; dbg
    v_lshrrev_b32 v1, 6, v0
    v_and_b32 v0, 63, v0
    s_and_b32 s32, s2, 7
    v_readfirstlane_b32 s3, v1
    s_lshr_b32 s33, s2, 3
    s_lshr_b32 s34, s32, 2
    s_and_b32 s32, s32, 3
    s_lshl_b32 s32, s32, 2
    s_and_b32 s35, s33, 3
    s_add_u32 s32, s32, s35                 ; mb (0..15)
    s_lshr_b32 s33, s33, 2                  ; nb (0..7)
    s_lshl_b32 s35, s32, 2
    s_add_u32 s35, s35, s3
    s_lshl_b32 s45, s3, 13                  ; w*8192 (LDS)
    s_add_u32 s46, s45, 4096
    s_lshl_b32 s47, s32, 3
    s_add_u32 s47, s47, s33
    """)
    stamp(k, 0)
    k(f"""
    v_lshlrev_b32 v{VLN3}, 4, v0
    v_lshrrev_b32 v{T0}, 4, v0
    v_and_b32 v{T1}, 15, v0
    v_lshlrev_b32 v{T2}, 2, v{T0}
    v_xor_b32 v{T2}, v{T2}, v{T1}
    v_lshlrev_b32 v{T2}, 4, v{T2}
    s_lshl_b32 s48, s3, 5
    v_add_u32 v{T3}, s48, v{T0}             ; row = 32w + (l>>4)
    v_lshl_add_u32 v{VD}, v{T3}, 11, v{T2}
    """)
    for j in range(1, 8):
        k(f'v_add_u32 v{VD + j}, {j * 8192 - (j & 3) * 1024}, v{VD}')
    k(f"""
    s_waitcnt lgkmcnt(0)
    s_cmp_eq_u32 s34, 0
    s_cselect_b32 s54, s54, s56
    s_cselect_b32 s55, s55, s57
    s_mov_b32 s64, 0x800000
    s_mov_b32 s65, 0x40000
    s_mov_b32 s66, {O_OFF}
    s_cselect_b32 s64, s64, 0x700000
    s_cselect_b32 s65, s65, 0x38000
    s_cselect_b32 s66, s66, {H_OFF}
    s_cselect_b32 s42, 8, 7
    s_lshl_b32 s48, s33, 8
    """)
    srd_off(k, 8, 's54', 's55', 's48', 0)
    k('s_sub_u32 s10, s64, s48')
    k('s_mul_i32 s48, s35, s65\ns_add_u32 s48, s48, s66')
    srd_off(k, 4, 's60', 's61', 's48', 0)
    k('s_mov_b32 s6, s65\ns_mov_b32 s38, 0\ns_mov_b32 s36, 0\ns_mov_b32 s37, 4096')
    VPF, VPD = 83, 88
    G = OPT['pfg']
    PFD, PFP = OPT['pfd'], OPT['pfp']
    if PFD:
        sh = 5 if G == 64 else 4
        k(f'''
        s_lshr_b32 s48, s2, 3
        s_lshl_b32 s49, s48, 2
        s_lshl_b32 s50, s3, 1
        s_add_u32 s49, s49, s50
        v_lshrrev_b32 v{T0}, {sh}, v0
        v_add_u32 v{T0}, s49, v{T0}
        v_lshlrev_b32 v{T0}, 11, v{T0}
        v_and_b32 v{T1}, {(1 << sh) - 1}, v0
        v_lshl_add_u32 v{T0}, v{T1}, {6 if G == 64 else 7}, v{T0}
        v_lshlrev_b32 v{T1}, {6 if G == 64 else 7}, v0
        s_cmp_lt_u32 s3, 2
        s_cselect_b64 vcc, -1, 0
        v_cndmask_b32 v{VPF}, v{T1}, v{T0}, vcc
        s_and_b32 s49, s2, 3
        s_lshl_b32 s49, s49, 4
        s_lshr_b32 s50, s48, 1
        s_add_u32 s49, s49, s50
        s_mul_i32 s49, s49, s65
        s_and_b32 s50, s48, 1
        s_lshl_b32 s50, s50, 12
        s_add_u32 s49, s49, s50
        s_add_u32 s49, s49, s66
        s_sub_u32 s50, s65, s50
        s_add_u32 s96, s60, s49
        s_addc_u32 s97, s61, 0
        s_cmp_lt_u32 s3, 2
        s_cselect_b32 s96, s54, s96
        s_cselect_b32 s97, s55, s97
        s_cselect_b32 s98, s64, s50
        s_mov_b32 s99, 0x20000
        s_mov_b32 s41, 8192
        s_cselect_b32 s41, 0x40000, s41
        s_mov_b32 s40, 0
        s_cmp_eq_u32 s3, 3
        s_cselect_b32 s98, 0, s98
        ''')
        if G == 128:
            k(f'v_mov_b32 v{T0}, 0x7fffffff\nv_cmp_lt_u32 vcc, 31, v0\ns_nop 1\nv_cndmask_b32 v{VPF}, v{VPF}, v{T0}, vcc')

    def pf(n):
        it = []
        for j in range(n):
            it += [f'buffer_load_dword v{VPD}, v{VPF}, s[96:99], s40 offen ;#PF', 's_add_u32 s40, s40, s41']
        return it

    def loads(T):
        tag = f'L{T & 3}'
        gs = []
        for j in range(8):
            it = []
            if j == 0:
                it += [f's_add_u32 m0, s45, {(T & 3) * 32768}', 's_nop 0']
            if j == 4:
                it += [f's_add_u32 m0, s46, {(T & 3) * 32768}', 's_nop 0']
            it.append(f'buffer_load_dwordx4 v{VD + j}, s[8:11], s38 offen offset:{(j & 3) * 1024} lds ;#{tag} @W W {T & 3}')
            if j == 7:
                it.append('s_add_u32 s38, s38, 0x40000')
            gs.append(it)
            it = [f'buffer_load_dwordx4 {ar(ACT(T, j), 4)}, v{VLN3}, s[4:7], s{36 + (j >> 2)} offen offset:{(j & 3) * 1024} ;#{tag}']
            if j == 7:
                it += ['s_add_u32 s36, s36, 8192', 's_add_u32 s37, s37, 8192']
            gs.append(it)
        return gs

    def wread(T, f):
        s, nt = divmod(f, 4)
        d = R3 + (f & 15) * 4
        o = (T & 1) * 32768 + s * 4096
        a = VA + ((T >> 1) & 1) * 4 + nt
        return [f'ds_read_b64_tr_b16 {ar(d, 2)}, v{a} offset:{o} ;@R W {T & 3}',
                f'ds_read_b64_tr_b16 {ar(d + 2, 2)}, v{a} offset:{o + 1024} ;@R W {T & 3}']
    lin = Lin()
    if PFD:
        pfl = pf(PFD)
        k('\n'.join(pfl))
        lin.vm += [('PF', set())] * PFD
    for T in range(3):
        for g in loads(T):
            lin.run(g)
    k('\n'.join(lin.out))
    lin.out = []
    tr_pattern(k, T2, 0, 256, T0, T1, True)
    k(f'v_bfe_u32 v{T3}, v0, 2, 2')
    for nt in range(4):
        k(f"""v_xor_b32 v{T0}, {nt}, v{T3}
        v_lshl_add_u32 v{VA + nt}, v{T0}, 6, v{T2}
        v_add_u32 v{VA + 4 + nt}, 0x10000, v{VA + nt}""")
    k(f"""
    v_and_b32 v{T0}, 31, v0
    v_lshrrev_b32 v{T1}, 5, v0
    v_lshlrev_b32 v{T1}, 4, v{T1}
    v_lshl_add_u32 v81, v{T0}, 11, v{T1}
    v_mov_b32 v82, 0
    """)
    for i in range(64):
        k(f'v_mov_b32 v{i}, 0')
    GB3 = 25
    gap3 = lambda f: (GB3 + 1 - 32) + (f * ((GB3 - 3) - (GB3 + 1 - 32))) // 31
    npre = sum(1 for f in range(32) if gap3(f) < 0)

    def stage(T):
        mf = []
        for s in range(8):
            for nt in range(4):
                f = s * 4 + nt
                mf.append(f'{MF} {vr(ACC(nt), 16)}, {ar(R3 + (f & 15) * 4, 4)}, {ar(ACT(T, s), 4)}, {vr(ACC(nt), 16)}')
        fill = {}
        add = lambda g, it: fill.setdefault(g, []).extend(it)
        for f in range(32):
            g = gap3(f)
            assert g >= f - 16 and g <= f - 4, (f, g)
            if g >= 0:
                add(g, wread(T, f))
        for n, gr in enumerate(loads(T + 3)):
            add(min(n * 3 // 2, GB3 - 1), gr)
        if PFD and T % PFP == 0:
            add(OPT['pfgap'], pf(PFP))
        add(GB3, [('vmwait', [f'L{(T + 1) & 3}'], ' lgkmcnt(0)'), 's_barrier'])
        for f in range(npre):
            add(gap3(f) + 32, wread(T + 1, f))
        return weave(mf, fill)
    lin.add(('vmwait', ['L0']))
    lin.add('s_barrier')
    for f in range(npre):
        lin.run(wread(0, f))
    k('\n'.join(lin.out))
    stamp(k, 1)
    body = []
    for T in range(4):
        body += stage(T)
    st = steady(body)
    k('L_k3:')
    k('\n'.join(st.out))
    k('s_sub_u32 s42, s42, 1\ns_cmp_lg_u32 s42, 0\ns_cbranch_scc1 L_k3')
    stamp(k, 2)
    k(f"""
    s_lshl_b32 s48, s47, 15
    s_lshl_b32 s49, s3, 13
    s_add_u32 s48, s48, s49                 ; tile*32768 + w*8192
    s_cmp_eq_u32 s34, 0
    s_mov_b32 s49, {S_OFF}
    s_mov_b32 s50, {G_OFF}
    s_cselect_b32 s49, s49, {G_OFF}
    s_cselect_b32 s50, s50, {S_OFF}
    s_add_u32 s49, s49, s48
    s_add_u32 s50, s50, s48
    """)
    srd_off(k, 12, 's60', 's61', 's49', 8192)
    srd_off(k, 16, 's60', 's61', 's50', 8192)
    k(f's_lshl_b32 s48, s47, 7\ns_add_u32 s48, s48, {F_OFF}')
    srd_off(k, 20, 's60', 's61', 's48', 128)
    k('s_lshl_b32 s48, s35, 16\ns_lshl_b32 s49, s33, 8\ns_add_u32 s48, s48, s49')
    srd_off(k, 24, 's52', 's53', 's48', 65536)
    srd_off(k, 28, 's58', 's59', 's48', 65536)
    k('s_sub_u32 s26, s26, s49\ns_sub_u32 s30, s30, s49')
    XR, PK, OT = 96, 128, 160
    VX = 81
    k(f"""
    s_waitcnt vmcnt(0) lgkmcnt(0)
    """)
    for q in range(8):
        k(f'buffer_load_dwordx4 {vr(XR + 4 * q, 4)}, v{VX}, s[24:27], 0 offen offset:{q * 32}')
    for i in range(32):
        k(f'v_cvt_pk_bf16_f32 v{PK + i}, v{2 * i}, v{2 * i + 1}')
    k('s_cmp_eq_u32 s34, 0\ns_cbranch_scc1 L_k3_oproj')
    k(f's_mov_b32 s48, {f32(-math.log2(math.e))}')
    for i in range(32):
        k(f'v_lshlrev_b32 v{2 * i}, 16, v{PK + i}\nv_and_b32 v{2 * i + 1}, 0xffff0000, v{PK + i}')
    for c in range(0, 64, 16):
        for i in range(16):
            k(f'v_mul_f32 v{OT + i}, s48, v{c + i}')
        for i in range(16):
            k(f'v_exp_f32 v{OT + i}, v{OT + i}')
        for i in range(16):
            k(f'v_add_f32 v{OT + i}, 1.0, v{OT + i}')
        for i in range(16):
            k(f'v_rcp_f32 v{OT + i}, v{OT + i}')
        for i in range(16):
            k(f'v_mul_f32 v{c + i}, v{c + i}, v{OT + i}')
        for i in range(8):
            k(f'v_cvt_pk_bf16_f32 v{PK + c // 2 + i}, v{c + 2 * i}, v{c + 2 * i + 1}')
    k('L_k3_publish:')
    for q in range(8):
        k(f'buffer_store_dwordx4 {vr(PK + 4 * q, 4)}, v{VLN3}, s[12:15], {"0" if q < 4 else "s46"} offen offset:{(q & 3) * 1024} sc0 sc1'
          if False else
          f'buffer_store_dwordx4 {vr(PK + 4 * q, 4)}, v{VLN3}, s[12:15], s{67 + (q >> 2)} offen offset:{(q & 3) * 1024} sc0 sc1')
    k(f"""
    s_waitcnt vmcnt(0)
    s_barrier
    s_cmp_lg_u32 s3, 0
    s_cbranch_scc1 L_k3_pub_wait
    v_mov_b32 v{T0}, 1
    s_mov_b64 exec, 1
    buffer_atomic_add v{T0}, v82, s[20:23], 0 offen sc0 sc1
    s_waitcnt vmcnt(0)
    ds_write_b32 v82, v{T0}
    s_mov_b64 exec, -1
    s_waitcnt lgkmcnt(0)
    L_k3_pub_wait:
    s_barrier
    ds_read_b32 v{T0}, v82
    s_waitcnt lgkmcnt(0)
    v_readfirstlane_b32 s48, v{T0}
    s_nop 1
    s_cmp_eq_u32 s48, 0
    s_cbranch_scc1 L_k3_end
    s_branch L_k3_finish
    L_k3_oproj:
    s_mov_b32 s49, 4096
    s_cmp_lg_u32 s3, 0
    s_cbranch_scc1 L_k3_poll_done
    L_k3_poll:
    buffer_load_dword v{T0}, v82, s[20:23], 0 offen sc0 sc1
    s_waitcnt vmcnt(0)
    v_readfirstlane_b32 s48, v{T0}
    s_nop 1
    s_cmp_lg_u32 s48, 0
    s_cbranch_scc1 L_k3_poll_end
    s_sleep 4
    s_sub_u32 s49, s49, 1
    s_cmp_lg_u32 s49, 0
    s_cbranch_scc1 L_k3_poll
    L_k3_poll_end:
    ds_write_b32 v82, v{T0} offset:64
    s_waitcnt lgkmcnt(0)
    L_k3_poll_done:
    s_barrier
    ds_read_b32 v{T0}, v82 offset:64
    s_waitcnt lgkmcnt(0)
    v_readfirstlane_b32 s48, v{T0}
    s_nop 1
    s_cmp_eq_u32 s48, 0
    s_cbranch_scc1 L_k3_publish
    L_k3_finish:
    """)
    for q in range(8):
        k(f'buffer_load_dwordx4 {vr(OT + 4 * q, 4)}, v{VLN3}, s[16:19], s{67 + (q >> 2)} offen offset:{(q & 3) * 1024} sc0 sc1')
    for i in range(32):
        k(f'v_lshlrev_b32 v{2 * i}, 16, v{PK + i}\nv_and_b32 v{2 * i + 1}, 0xffff0000, v{PK + i}')
    for q in range(8):
        k(f's_waitcnt vmcnt({7 - q if q < 7 else 0})' if q == 0 else f's_waitcnt vmcnt(7)')
        for i in range(4):
            j = 4 * q + i
            k(f"""v_lshlrev_b32 v{T0}, 16, v{OT + j}
            v_and_b32 v{T1}, 0xffff0000, v{OT + j}
            v_mul_f32 v{T0}, v{T0}, v{2 * j}
            v_mul_f32 v{T1}, v{T1}, v{2 * j + 1}
            v_cvt_pk_bf16_f32 v{T0}, v{T0}, v{T1}
            v_lshlrev_b32 v{T2}, 16, v{XR + j}
            v_and_b32 v{T3}, 0xffff0000, v{XR + j}
            v_and_b32 v{T1}, 0xffff0000, v{T0}
            v_lshlrev_b32 v{T0}, 16, v{T0}
            v_add_f32 v{T0}, v{T0}, v{T2}
            v_add_f32 v{T1}, v{T1}, v{T3}
            v_cvt_pk_bf16_f32 v{OT + j}, v{T0}, v{T1}""")
        k(f'buffer_store_dwordx4 {vr(OT + 4 * q, 4)}, v{VX}, s[28:31], 0 offen offset:{q * 32}')
    if OPT['stamp']:
        stamp(k, 3)
        stamp_out(k, 'L_k3_end', 's62', 's63')
    k('L_k3_end:\ns_endpgm')
    idx = [i for i, (t, v) in enumerate(k.lines) if t == 'L' and v == 'L_k3'][0]
    k.lines[idx:idx] = [('I', Ins('s_mov_b32 s67, 0')), ('I', Ins('s_mov_b32 s68, 4096'))]
    rings = {'W': (4, lambda n: (n * 32768, (n + 1) * 32768))}
    pol = [{}, {'L_k3_oproj': [1]}, {'L_k3_oproj': [1], 'L_k3_publish': [1]},
           {'L_k3_oproj': [1], 'L_k3_poll_done': [1]}, {'L_k3_pub_wait': [1]}]
    return k, k.check(pol, rings=rings)


def main():
    out = 'cdna_kernels/' + NAME + '.s'
    for a in sys.argv[1:]:
        if '=' in a:
            kk, v = a.split('=')
            OPT[kk] = int(v)
        else:
            out = a
    ref = open('cdna_kernels/' + NAME + '.s.ref').read()
    header = '\n'.join(l for l in ref.split('\n')[:12])
    k1 = gen_ln()
    p = k1.check([{}, {'L_ln_noflag': [1]}])
    k2, p2 = gen_k2()
    k3, p3 = gen_k3()
    for x in p + p2 + p3:
        print('PROBLEM', x)
    ks = [k1, k2, k3]
    ls = [('ln_kernel', 256, 512, 0), ('att_kernel', 256, 256, 163840), ('fin_kernel', 256, 256, 131072)]
    if OPT['empty']:
        ke = Kernel('nul_kernel')
        ke('s_endpgm')
        ks.append(ke)
        ls.insert(OPT['empty'] - 1, ('nul_kernel', 256, 256, 0))
    s = build_file(header, ks, ls)
    open(out, 'w').write(s)
    for k in (k1, k2, k3):
        print(k.name, 'instrs', sum(1 for t, _ in k.lines if t == 'I'), 'regs', k.max_regs())


if __name__ == '__main__':
    main()
```

```python
import re

REG_RE = re.compile(r'^(-?)(abs\()?([vas])(?:(\d+)|\[(\d+):(\d+)\])\)?$')


def regs_of(tok):
    tok = tok.strip()
    m = REG_RE.match(tok)
    if m:
        f = m.group(3)
        if m.group(4) is not None:
            return {(f, int(m.group(4)))}
        return {(f, i) for i in range(int(m.group(5)), int(m.group(6)) + 1)}
    if tok == 'vcc':
        return {('s', 'vcc')}
    if tok in ('vcc_lo', 'vcc_hi'):
        return {('s', 'vcc')}
    if tok in ('exec', 'exec_lo', 'exec_hi'):
        return {('s', 'exec')}
    if tok == 'm0':
        return {('s', 'm0')}
    return set()


TRANS = ('v_exp_f32', 'v_log_f32', 'v_rcp_f32', 'v_rsq_f32', 'v_sqrt_f32', 'v_sin_f32', 'v_cos_f32',
         'v_rcp_iflag_f32')


class Ins:
    __slots__ = ('text', 'op', 'ops', 'mods', 'dst', 'src', 'kind', 'passes', 'srcC', 'srcAB', 'line')

    def __init__(self, text):
        self.text = text
        t = text.split(';')[0].strip()
        parts = t.split(None, 1)
        self.op = parts[0]
        rest = parts[1] if len(parts) > 1 else ''
        ops, depth, cur = [], 0, ''
        for ch in rest:
            if ch in '[(':
                depth += 1
            if ch in '])':
                depth -= 1
            if ch == ',' and depth == 0:
                ops.append(cur.strip())
                cur = ''
            else:
                cur += ch
        last = cur.strip()
        mods = []
        if last:
            lp = last.split()
            ops.append(lp[0])
            mods = lp[1:]
        self.ops, self.mods = ops, mods
        self.dst, self.src = set(), set()
        self.srcC, self.srcAB = set(), set()
        self.passes = 0
        op = self.op
        R = [regs_of(o) for o in ops]
        U = lambda l: set().union(*l) if l else set()
        base = re.sub(r'_(e32|e64|dpp|sdwa)$', '', op)
        if op.startswith('v_mfma'):
            self.kind = 'mfma'
            self.dst = R[0]
            self.srcAB = R[1] | R[2]
            self.srcC = R[3]
            self.src = self.srcAB | self.srcC
            if '32x32x16' in op:
                self.passes = 8
            elif '16x16x32' in op:
                self.passes = 4
            else:
                raise ValueError('unknown mfma ' + op)
        elif op.startswith('v_'):
            self.kind = 'valu'
            if base in TRANS:
                self.kind = 'trans'
            if base.startswith('v_cmpx'):
                raise ValueError('avoid v_cmpx')
            if base.startswith('v_permlane') and 'swap' in base:
                self.dst = R[0] | R[1]
                self.src = R[0] | R[1]
            elif base in ('v_add_co_u32', 'v_sub_co_u32', 'v_addc_co_u32', 'v_subb_co_u32', 'v_subrev_co_u32'):
                self.dst = R[0] | R[1]
                self.src = U(R[2:])
            else:
                self.dst = R[0]
                self.src = U(R[1:])
                if base in ('v_fmac_f32', 'v_dot2c_f32_bf16', 'v_writelane_b32') or op.endswith('_dpp'):
                    self.src |= R[0]
        elif op.startswith('ds_'):
            self.kind = 'ds'
            if op.startswith('ds_write') or op.startswith('ds_add') or op.startswith('ds_or') or op.startswith('ds_max'):
                if '_rtn' in op:
                    self.dst = R[0]
                    self.src = U(R[1:])
                else:
                    self.src = U(R)
            else:
                self.dst = R[0]
                self.src = U(R[1:])
        elif op.startswith('buffer_') or op.startswith('global_'):
            self.kind = 'vmem'
            if op in ('buffer_wbl2', 'buffer_inv'):
                pass
            elif 'load' in op:
                if 'lds' in self.mods or '_lds_' in op:
                    self.src = U(R) | {('s', 'm0')}
                    self.kind = 'vmem_lds'
                elif '#PF' in text:
                    self.src = U(R[1:])
                    self.srcC = R[0]
                else:
                    self.dst = R[0]
                    self.src = U(R[1:])
            elif 'store' in op:
                self.src = U(R)
                self.kind = 'vmem_st'
            elif 'atomic' in op:
                self.src = U(R)
                if 'sc0' in self.mods:
                    self.dst = R[0]
                    if op.startswith('global_'):
                        self.src = U(R[1:])
            else:
                raise ValueError(op)
        elif op.startswith('s_'):
            self.kind = 'salu'
            if op.startswith('s_load') or op.startswith('s_buffer_load') or op in ('s_memtime', 's_memrealtime'):
                self.kind = 'smem'
                self.dst = R[0]
                self.src = U(R[1:])
            elif op.startswith('s_cmp') or op.startswith('s_bitcmp'):
                self.src = U(R)
            elif op in ('s_waitcnt', 's_nop', 's_barrier', 's_endpgm', 's_setprio', 's_sleep', 's_branch') \
                    or op.startswith('s_cbranch'):
                pass
            else:
                self.dst = R[0]
                self.src = U(R[1:])
                if 'saveexec' in op:
                    self.dst |= {('s', 'exec')}
                    self.src |= {('s', 'exec')}
                if op in ('s_addk_i32', 's_mulk_i32'):
                    self.src |= R[0]
        else:
            raise ValueError('unknown instr ' + text)

    def states(self):
        if self.op == 's_nop':
            return int(self.ops[0], 0) + 1
        return 1


def _vec(rs):
    return {r for r in rs if r[0] in 'va'}


def _sca(rs):
    return {r for r in rs if r[0] == 's'}


def check_trace(trace, name=''):
    probs = []
    hist = []
    pos = 0
    vmq, lgq = [], []
    for ins in trace:
        start = pos
        if ins.op == 's_waitcnt':
            txt = ins.text.split(';')[0]
            m = re.search(r'vmcnt\((\d+)\)', txt)
            if m:
                n = int(m.group(1))
                assert n <= 63
                while len(vmq) > n:
                    vmq.pop(0)
            m = re.search(r'lgkmcnt\((\d+)\)', txt)
            if m:
                n = int(m.group(1))
                assert n <= 15
                if any(p[0].kind == 'smem' for p in lgq) and n != 0:
                    probs.append(f'{name}: counted lgkmcnt with SMEM outstanding: {ins.text}')
                while len(lgq) > n:
                    lgq.pop(0)
        touched = ins.src | ins.dst
        for q, qn in ((vmq, 'vm'), (lgq, 'lgkm')):
            for pi, pd in q:
                if pd & touched:
                    probs.append(f'{name}: [{qn} pending] {ins.text}   <- {pi.text}')
        isvalu = ins.kind in ('valu', 'trans')
        for pend, p in reversed(hist):
            d = start - pend
            if d >= 20:
                break
            pvalu = p.kind in ('valu', 'trans')

            def need(n, why):
                if d < n:
                    probs.append(f'{name}: hazard {why} need {n} have {d}: {p.text}  ->  {ins.text}')
            if pvalu and ins.kind == 'mfma' and _vec(p.dst) & ins.src:
                need(2, 'valu->mfma')
            if p.kind == 'mfma':
                tb = {4: (0, 6, 8, 8, 3), 8: (0, 10, 12, 12, 7)}[p.passes]
                if ins.kind == 'mfma':
                    if p.dst & ins.srcC:
                        if p.dst == ins.srcC and p.passes == ins.passes:
                            pass
                        else:
                            need(tb[1], 'mfmaD->srcC overlap')
                    if p.dst & ins.srcAB:
                        need(tb[2], 'mfmaD->srcAB')
                    if (p.dst & ins.dst) and not (p.dst == ins.srcC):
                        need(tb[1], 'mfmaD->mfmaD WAW')
                elif p.dst & touched:
                    need(tb[3], 'mfmaD->other')
                if isvalu and (p.srcC & ins.dst):
                    need(tb[4], 'mfma srcC WAR')
                if ins.kind in ('ds', 'vmem') and (p.srcC & ins.dst):
                    need(tb[4], 'mfma srcC WAR(load)')
            if p.kind == 'trans' and isvalu and ins.kind != 'trans' and p.dst & ins.src:
                need(1, 'trans->valu')
            if p.kind == 'trans' and ins.kind == 'trans' and p.dst & ins.src:
                need(1, 'trans->trans(conservative)')
            if pvalu and _sca(p.dst):
                if ins.kind.startswith('vmem') and _sca(p.dst) & ins.src:
                    need(5, 'valu sgpr->vmem')
                if isvalu and _sca(p.dst) & ins.src:
                    need(4 if ins.op.startswith('v_readlane') or ins.op.startswith('v_writelane') else 2,
                         'valu sgpr->valu')
                if isvalu and ins.op.startswith('v_cndmask') and len(ins.ops) == 3 and ('s', 'vcc') in p.dst:
                    need(2, 'vcc->cndmask')
                if ins.kind in ('salu', 'smem') and _sca(p.dst) & ins.src:
                    need(1, 'valu sgpr->salu (conservative)')
                if ins.op in ('s_cbranch_vccz', 's_cbranch_vccnz') and ('s', 'vcc') in p.dst:
                    need(1, 'valu vcc->branch (conservative)')
            if pvalu and _vec(p.dst) & ins.src:
                if ins.op.startswith('v_readfirstlane') or ins.op.startswith('v_readlane'):
                    need(1, 'valu->readlane')
                if ins.op.startswith('v_permlane'):
                    need(2, 'valu->permlane')
                if ins.op.endswith('_dpp'):
                    need(2, 'valu->dpp')
            if p.kind == 'salu' and ('s', 'm0') in p.dst and ins.kind == 'vmem_lds':
                need(1, 'm0->ldsdma')
            if p.kind == 'vmem_st' and ('x4' in p.op or 'x3' in p.op):
                data = regs_of(p.ops[0]) if p.op.startswith('buffer') else regs_of(p.ops[1])
                if data & ins.dst:
                    need(2, 'store data WAR')
            if p.kind == 'ds' and p.op.startswith('ds_write') and ('b128' in p.op or 'b96' in p.op):
                data = regs_of(p.ops[1])
                if data & ins.dst:
                    need(2, 'dswrite data WAR (conservative)')
        pos += ins.states()
        hist.append((pos, ins))
        if len(hist) > 40:
            hist.pop(0)
        if ins.kind in ('vmem', 'vmem_lds', 'vmem_st'):
            vmq.append((ins, set(ins.dst)))
            if len(vmq) > 63:
                probs.append(f'{name}: more than 63 vmem outstanding at {ins.text}')
        elif ins.kind == 'ds':
            lgq.append((ins, set(ins.dst)))
        elif ins.kind == 'smem':
            lgq.append((ins, set(ins.dst)))
    return probs


def check_lds(trace, rings, name=''):
    probs = []
    rot = {r: 0 for r in rings}
    wstate = {}
    rstate = {}
    vmq, lgq = [], []
    lastm0 = None

    def gran(ring, off):
        n, fn = rings[ring]
        lo, hi = fn((rot[ring] + off) % n)
        return range(lo // 4096, (hi + 4095) // 4096)
    for ins in trace:
        c = ins.text.split(';', 1)[1] if ';' in ins.text else ''
        m = re.search(r'@ROT (\w+)', c)
        if m:
            rot[m.group(1)] += 1
        m = re.search(r'@SET (\w+) (\d+)', c)
        if m:
            rot[m.group(1)] = int(m.group(2))
        if ins.op == 's_waitcnt':
            txt = ins.text.split(';')[0]
            m = re.search(r'vmcnt\((\d+)\)', txt)
            if m:
                while len(vmq) > int(m.group(1)):
                    g = vmq.pop(0)
                    for x in g:
                        if not any(x in o for o in vmq) and wstate.get(x) == 'issued':
                            wstate[x] = 'waited'
            m = re.search(r'lgkmcnt\((\d+)\)', txt)
            if m:
                while len(lgq) > int(m.group(1)):
                    k, g = lgq.pop(0)
                    for x in g:
                        if k == 'R' and not any(kk == 'R' and x in o for kk, o in lgq) and rstate.get(x) == 'issued':
                            rstate[x] = 'waited'
                        if k == 'W' and not any(kk == 'W' and x in o for kk, o in lgq) and wstate.get(x) == 'issued':
                            wstate[x] = 'waited'
        if ins.op == 's_barrier':
            for x, v in wstate.items():
                if v == 'waited':
                    wstate[x] = 'visible'
            for x, v in rstate.items():
                if v == 'waited':
                    rstate[x] = 'done'
        if ('s', 'm0') in ins.dst:
            lastm0 = ins
        mw = re.search(r'@W (\w+) ([+-]?\d+)', c)
        if mw and ins.kind == 'vmem_lds' and re.match(r'^\d+$', lastm0.ops[-1]):
            n_, fn_ = rings[mw.group(1)]
            if fn_((rot[mw.group(1)] + int(mw.group(2))) % n_)[0] != int(lastm0.ops[-1]):
                probs.append(f'{name}: m0 mismatch {lastm0.text} -> {ins.text}')
        if mw and ins.kind == 'vmem_lds' and mw.group(1) != 'G' and not re.match(r'^\d+$', lastm0.ops[-1]):
            probs.append(f'{name}: m0 stale {lastm0.text} -> {ins.text}')
        mr = re.search(r'@R (\w+) ([+-]?\d+)', c)
        g = []
        if mw:
            g = list(gran(mw.group(1), int(mw.group(2))))
            for x in g:
                if rstate.get(x, 'done') != 'done':
                    probs.append(f'{name}: LDS WAR granule {x} reads {rstate[x]}: {ins.text}')
                    break
            for x in g:
                wstate[x] = 'issued'
        if mr:
            g = list(gran(mr.group(1), int(mr.group(2))))
            for x in g:
                if wstate.get(x) != 'visible':
                    probs.append(f'{name}: LDS RAW granule {x} write {wstate.get(x)}: {ins.text}')
                    break
            for x in g:
                rstate[x] = 'issued'
        if ins.kind in ('vmem', 'vmem_lds', 'vmem_st'):
            vmq.append(g if mw else [])
        elif ins.kind in ('ds', 'smem'):
            lgq.append(('W' if mw else 'R', g))
        if ins.kind == 'vmem_lds' and not mw:
            probs.append(f'{name}: untagged LDS-DMA {ins.text}')
    seen, out = set(), []
    for p in probs:
        if p not in seen:
            seen.add(p)
            out.append(p)
    return out


class Lin:
    def __init__(self, lg=None, vm=None):
        self.lg = list(lg or [])
        self.vm = list(vm or [])
        self.out = []

    def add(self, item):
        if isinstance(item, tuple):
            if item[0] == 'vmwait':
                tag = item[1]
                last = -1
                for i, (t, _) in enumerate(self.vm):
                    if t in tag:
                        last = i
                if last >= 0:
                    n = len(self.vm) - 1 - last
                    n = min(n, 63)
                    extra = item[2] if len(item) > 2 else ''
                    self.out.append(f's_waitcnt vmcnt({n}){extra}')
                    self.vm = self.vm[len(self.vm) - n:] if n else []
                    if 'lgkmcnt(0)' in extra:
                        self.lg = []
                elif len(item) > 2:
                    self.out.append(f's_waitcnt{item[2]}')
                    if 'lgkmcnt(0)' in item[2]:
                        self.lg = []
                return
            if item[0] == 'need':
                regs = set()
                for tok in item[1]:
                    regs |= regs_of(tok)
                last = -1
                for i, d in enumerate(self.lg):
                    if d & regs:
                        last = i
                if last >= 0:
                    n = min(len(self.lg) - 1 - last, 15)
                    self.out.append(f's_waitcnt lgkmcnt({n})')
                    self.lg = self.lg[len(self.lg) - n:] if n else []
                return
            raise ValueError(item)
        t = item.strip()
        if t.endswith(':') or t.startswith(';') or t.startswith('.'):
            self.out.append(t)
            return
        ins = Ins(t)
        touched = ins.src | ins.dst
        last = -1
        for i, d in enumerate(self.lg):
            if d & touched:
                last = i
        lastv = -1
        for i, (tg, d) in enumerate(self.vm):
            if d & touched:
                lastv = i
        w = ''
        if last >= 0:
            n = min(len(self.lg) - 1 - last, 15)
            w += f' lgkmcnt({n})'
            self.lg = self.lg[len(self.lg) - n:] if n else []
        if lastv >= 0:
            n = min(len(self.vm) - 1 - lastv, 63)
            w = f' vmcnt({n})' + w
            self.vm = self.vm[len(self.vm) - n:] if n else []
        if w:
            self.out.append('s_waitcnt' + w + ' ; auto')
        if ins.op == 's_waitcnt':
            m = re.search(r'lgkmcnt\((\d+)\)', t)
            if m:
                n = int(m.group(1))
                self.lg = self.lg[max(0, len(self.lg) - n):] if n else []
            m = re.search(r'vmcnt\((\d+)\)', t)
            if m:
                n = int(m.group(1))
                self.vm = self.vm[max(0, len(self.vm) - n):] if n else []
        self.out.append(t)
        if ins.kind == 'ds':
            self.lg.append(set(ins.dst))
        elif ins.kind in ('vmem', 'vmem_lds', 'vmem_st'):
            m = re.search(r'#(\S+)', t)
            self.vm.append((m.group(1) if m else '', set(ins.dst)))

    def run(self, items):
        for it in items:
            self.add(it)
        return self


def steady(items, retag=None):
    l = Lin().run(items)
    for _ in range(2):
        vm = [((retag(t) if retag else t), d) for t, d in l.vm]
        l = Lin(l.lg, vm).run(items)
    return l


class Kernel:
    def __init__(self, name):
        self.name = name
        self.lines = []

    def __call__(self, text):
        for t in text.strip().split('\n'):
            t = t.strip()
            if not t:
                continue
            if t.startswith(';'):
                self.lines.append(('C', t))
            elif t.endswith(':'):
                self.lines.append(('L', t[:-1]))
            elif t.startswith('.'):
                self.lines.append(('D', t))
            else:
                self.lines.append(('I', Ins(t)))

    def label(self, l):
        self.lines.append(('L', l))

    def text(self):
        out = []
        for k, v in self.lines:
            if k == 'L':
                out.append(v + ':')
            elif k == 'I':
                out.append('  ' + v.text)
            else:
                out.append('  ' + v)
        return '\n'.join(out)

    def trace(self, policy=None, back=2, maxlen=400000):
        policy = {k: list(v) for k, v in (policy or {}).items()}
        labels = {v: i for i, (k, v) in enumerate(self.lines) if k == 'L'}
        cnt = {}
        pc, tr = 0, []
        while pc < len(self.lines):
            k, v = self.lines[pc]
            if k != 'I':
                pc += 1
                continue
            tr.append(v)
            assert len(tr) < maxlen, 'trace too long'
            if v.op == 's_endpgm':
                break
            if v.op == 's_branch':
                pc = labels[v.ops[0]]
                continue
            if v.op.startswith('s_cbranch'):
                tgt = v.ops[0]
                if tgt in policy and policy[tgt]:
                    take = policy[tgt].pop(0)
                elif labels[tgt] < pc:
                    c = cnt.get(pc, 0)
                    take = c < back
                    cnt[pc] = c + 1 if take else 0
                else:
                    take = False
                if take:
                    pc = labels[tgt]
                    continue
            pc += 1
        return tr

    def check(self, policies=({},), back=2, rings=None):
        probs = []
        for p in policies:
            tr = self.trace(p, back)
            probs += check_trace(tr, self.name)
            if rings:
                probs += check_lds(tr, rings, self.name)
        seen, out = set(), []
        for p in probs:
            if p not in seen:
                seen.add(p)
                out.append(p)
        return out

    def max_regs(self):
        mv = ma = ms = -1
        for k, v in self.lines:
            if k == 'I':
                for f, i in v.src | v.dst | v.srcC:
                    if isinstance(i, int):
                        if f == 'v':
                            mv = max(mv, i)
                        elif f == 'a':
                            ma = max(ma, i)
                        else:
                            ms = max(ms, i)
        return mv, ma, ms


def descriptor(k, extra=''):
    mv, ma, ms = k.max_regs()
    acc = ((mv + 1 + 3) // 4) * 4
    acc = max(acc, 4)
    nfv = acc + ma + 1 if ma >= 0 else mv + 1
    return f""".p2align 6
.amdhsa_kernel {k.name}
  .amdhsa_next_free_vgpr {nfv}
  .amdhsa_next_free_sgpr {max(ms + 1, 16)}
  .amdhsa_accum_offset {acc}
  .amdhsa_group_segment_fixed_size 0
  .amdhsa_kernarg_size 88
  .amdhsa_user_sgpr_count 2
  .amdhsa_user_sgpr_kernarg_segment_ptr 1
  .amdhsa_system_sgpr_workgroup_id_x 1
{extra}.end_amdhsa_kernel
"""


def build_file(header, kernels, launches, extras=None):
    out = [header.rstrip()]
    for n, g, b, lds in launches:
        out.append(f'; @launch kernel={n} grid=({g},1,1) block=({b},1,1) lds={lds}')
    out.append('.amdgcn_target "amdgcn-amd-amdhsa--gfx950"')
    out.append('.text')
    for k in kernels:
        out.append(f'.globl {k.name}\n.p2align 8\n.type {k.name},@function\n{k.name}:')
        out.append(k.text())
    out.append('.section .rodata,"a"')
    for k in kernels:
        out.append(descriptor(k, (extras or {}).get(k.name, '')))
    return '\n'.join(out) + '\n'


class Gaps:
    def __init__(self, n, cap=8):
        self.n = n
        self.left = [cap] * n
        self.items = [[] for _ in range(n)]
        self.seq = 0
        self.over = 0

    def put(self, g, fn, cost, prio=0, kind=''):
        k, gg = divmod(g, self.n)
        self.left[gg] -= cost
        if self.left[gg] < 0:
            self.over += min(cost, -self.left[gg])
        self.seq += 1
        self.items[gg].append((prio, self.seq, k, fn, kind, g))
        return g

    def fits(self, g, cost):
        return self.left[g % self.n] >= cost

    def place(self, lo, hi, tgt, fn, cost, prio=0, kind='', pack=False):
        tgt = max(lo, min(hi, tgt))
        cands = sorted(range(lo, hi + 1), key=lambda g: (abs(g - tgt), g))
        if pack:
            for g in cands:
                if abs(g - tgt) <= 2 and self.left[g % self.n] == cost:
                    return self.put(g, fn, cost, prio, kind)
        for g in cands:
            if self.fits(g, cost):
                return self.put(g, fn, cost, prio, kind)
        g = max(cands, key=lambda g: self.left[g % self.n])
        return self.put(g, fn, cost, prio, kind)

    def emit(self, mf, i, keep=lambda k, kind, g: True):
        out = []
        for g in range(self.n):
            if mf[g] is not None:
                out.append(mf[g])
            for prio, seq, k, fn, kind, ga in sorted(self.items[g], key=lambda x: (x[0], x[5] - g, x[1]) if False else (x[0], -x[2], x[1])):
                if keep(k, kind, ga):
                    out += fn(i - k)
        return out

    def only(self, i, keep):
        l = []
        for g in range(self.n):
            for prio, seq, k, fn, kind, ga in self.items[g]:
                if keep(k, kind, ga):
                    l.append((ga, prio, seq, fn))
        out = []
        for ga, prio, seq, fn in sorted(l, key=lambda x: x[:3]):
            out += fn(i)
        return out
```

```python
import math
import struct
import sys

sys.path.insert(0, 'work')
from asmlib import *

NAME = 'recurrent_scan__mha_block_cached__dense_activation_relu__prompt'
XN_OFF, H_OFF, O_OFF, G_OFF, S_OFF, F_OFF = 0, 0x400000, 0x1400000, 0x2400000, 0x2800000, 0x3000000
MF = 'v_mfma_f32_16x16x32_bf16'
OPT = dict(dumpq=0, empty=0, warm=1, stamp=0, x0=56, look3=2, msum=1, la=14, nodma=0, nolds=0, noexp=0, nocvt=0, nobar=0)


def f32(x):
    return '0x%08x' % struct.unpack('<I', struct.pack('<f', x))[0]


def vr(b, n=1):
    return f'v{b}' if n == 1 else f'v[{b}:{b + n - 1}]'


def ar(b, n=1):
    return f'a{b}' if n == 1 else f'a[{b}:{b + n - 1}]'


def srd(k, d, lo, hi, nbytes):
    k(f"""s_mov_b32 s{d}, {lo}
    s_mov_b32 s{d + 1}, {hi}
    s_mov_b32 s{d + 2}, {nbytes}
    s_mov_b32 s{d + 3}, 0x20000""")


def srd_off(k, d, lo, hi, off, nbytes):
    k(f"""s_add_u32 s{d}, {lo}, {off}
    s_addc_u32 s{d + 1}, {hi}, 0
    s_mov_b32 s{d + 2}, {nbytes}
    s_mov_b32 s{d + 3}, 0x20000""")


def weave(mfmas, fill):
    out = []
    for g, m in enumerate(mfmas):
        out += fill.get(('pre', g), [])
        out.append(m)
        out += fill.get(g, [])
    return out


def stamp(k, idx, sreg=92, last=False):
    if not OPT['stamp']:
        return
    k(f"""s_memtime s[{sreg}:{sreg + 1}]
    s_memrealtime s[{sreg + 2}:{sreg + 3}]
    s_waitcnt lgkmcnt(0)
    s_mov_b32 s{76 + idx}, s{sreg}
    s_mov_b32 s{84 + idx}, s{sreg + 2}""")


def stamp_out(k, endlabel, lo, hi):
    k(f"""s_cmp_lg_u32 s3, 0
    s_cbranch_scc1 {endlabel}
    s_cmp_ge_u32 s2, 4
    s_cbranch_scc1 {endlabel}""")
    srd(k, 72, lo, hi, 256)
    k('s_lshl_b32 s48, s2, 6')
    for i in range(16):
        k(f'v_mov_b32 v1, s{76 + i}\nv_mov_b32 v2, {4 * i}\nbuffer_store_dword v1, v2, s[72:75], s48 offen')


def gen_ln():
    k = Kernel('ln_kernel')
    k("""
    s_cmp_ge_u32 s2, 256
    s_cbranch_scc1 L_ln_end
    s_load_dwordx2 s[4:5], s[0:1], 0
    s_load_dwordx2 s[6:7], s[0:1], 80
    v_lshrrev_b32 v1, 6, v0
    v_and_b32 v2, 63, v0
    s_nop 0
    v_readfirstlane_b32 s3, v1
    s_lshl_b32 s16, s2, 3
    s_nop 1
    s_add_u32 s16, s16, s3            ; token T
    s_lshl_b32 s17, s16, 11
    v_lshlrev_b32 v3, 4, v2           ; lane*16
    s_waitcnt lgkmcnt(0)
    """)
    srd(k, 8, 's4', 's5', 0x400000)
    srd(k, 12, 's6', 's7', 0x400000)
    k("""
    buffer_load_dwordx4 v[4:7], v3, s[8:11], s17 offen
    buffer_load_dwordx4 v[8:11], v3, s[8:11], s17 offen offset:1024
    s_lshr_b32 s18, s16, 5
    s_lshl_b32 s18, s18, 16
    s_and_b32 s19, s16, 15
    s_lshl_b32 s19, s19, 4
    s_add_u32 s18, s18, s19
    s_and_b32 s19, s16, 16
    s_lshl_b32 s19, s19, 6
    s_add_u32 s18, s18, s19
    s_add_u32 s19, s18, 32768         ; chunk 64..127
    v_lshrrev_b32 v40, 2, v2
    v_lshlrev_b32 v40, 11, v40
    v_and_b32 v41, 3, v2
    v_lshl_add_u32 v40, v41, 8, v40   ; (c>>2)*2048 + (c&3)*256
    """)
    k(f"""
    s_cmp_ge_u32 s2, 128
    s_cbranch_scc1 L_ln_noflag
    s_cmp_lg_u32 s3, 0
    s_cbranch_scc1 L_ln_noflag
    """)
    srd_off(k, 20, 's6', 's7', F_OFF, 16384)
    k("""
    s_lshl_b32 s24, s2, 7
    v_and_b32 v41, 31, v2
    v_lshlrev_b32 v41, 2, v41
    v_mov_b32 v42, 0
    buffer_store_dword v42, v41, s[20:23], s24 offen
    L_ln_noflag:
    s_waitcnt vmcnt(0)
    """)
    for i in range(8):
        k(f'v_lshlrev_b32 v{12 + 2 * i}, 16, v{4 + i}')
        k(f'v_and_b32 v{13 + 2 * i}, 0xffff0000, v{4 + i}')

    def tree(dst, src, n):
        cur = list(range(src, src + n))
        t = dst
        while len(cur) > 1:
            nxt = []
            for i in range(0, len(cur), 2):
                k(f'v_add_f32 v{t}, v{cur[i]}, v{cur[i + 1]}')
                nxt.append(t)
                t += 1
            cur = nxt
        return cur[0]

    def wave_sum(r, tmp):
        for mode in ('quad_perm:[1,0,3,2]', 'quad_perm:[2,3,0,1]', 'row_half_mirror', 'row_mirror'):
            k('s_nop 1')
            k(f'v_add_f32_dpp v{r}, v{r}, v{r} {mode} row_mask:0xf bank_mask:0xf')
        for sw in ('v_permlane16_swap_b32', 'v_permlane32_swap_b32'):
            k(f'v_mov_b32 v{tmp}, v{r}')
            k('s_nop 1')
            k(f'{sw} v{r}, v{tmp}')
            k(f'v_add_f32 v{r}, v{r}, v{tmp}')
    r = tree(44, 12, 16)
    wave_sum(r, 43)
    k(f'v_mul_f32 v28, {f32(1 / 1024)}, v{r}')
    for i in range(16):
        k(f'v_sub_f32 v{44 + i}, v{12 + i}, v28')
    k('v_mul_f32 v30, v44, v44')
    k('v_mul_f32 v31, v45, v45')
    for i in range(2, 16):
        k(f'v_fmac_f32 v{30 + (i & 1)}, v{44 + i}, v{44 + i}')
    k('v_add_f32 v30, v30, v31')
    wave_sum(30, 43)
    k(f"""
    v_mul_f32 v30, {f32(1 / 1024)}, v30
    v_cvt_pk_bf16_f32 v29, v28, v30
    v_lshlrev_b32 v28, 16, v29             ; m_bf
    v_and_b32 v30, 0xffff0000, v29         ; var_bf
    v_add_f32 v30, {f32(1e-5)}, v30
    v_cvt_pk_bf16_f32 v30, v30, v30
    v_and_b32 v30, 0xffff0000, v30
    v_sqrt_f32 v30, v30
    s_nop 0
    v_cvt_pk_bf16_f32 v30, v30, v30
    v_and_b32 v30, 0xffff0000, v30
    v_rcp_f32 v30, v30
    """)
    for i in range(16):
        k(f'v_sub_f32 v{12 + i}, v{12 + i}, v28')
    for i in range(8):
        k(f'v_cvt_pk_bf16_f32 v{4 + i}, v{12 + 2 * i}, v{13 + 2 * i}')
    for i in range(8):
        k(f'v_lshlrev_b32 v{12 + 2 * i}, 16, v{4 + i}')
        k(f'v_and_b32 v{13 + 2 * i}, 0xffff0000, v{4 + i}')
    for i in range(16):
        k(f'v_mul_f32 v{12 + i}, v{12 + i}, v30')
    for i in range(8):
        k(f'v_cvt_pk_bf16_f32 v{4 + i}, v{12 + 2 * i}, v{13 + 2 * i}')
    k("""
    buffer_store_dwordx4 v[4:7], v40, s[12:15], s18 offen
    buffer_store_dwordx4 v[8:11], v40, s[12:15], s19 offen
    L_ln_end:
    s_endpgm
    """)
    return k


GSLOT = 45056
ABASE = 32768
KSLOT = lambda i: 4 + ((i + 3) & 3)
VSLOT = lambda i: (i + 1) & 3
S_ = lambda b, kvt, qt: b * 64 + ((kvt >> 1) * 4 + qt) * 8 + (kvt & 1) * 4
P_ = lambda b, u, qt: b * 64 + (u * 4 + qt) * 8
NEGM = lambda qt: 128 + 4 * qt
ONES = 144
VKA = 148
VVA = 152
VKD = 160
VVD = 164
VLN = 166
VPFO = 167
VMT = 168
VL = 204
VT = 208
HG = lambda p, tt: (64 + 8 * (2 * p + tt)) if 2 * p + tt < 10 else (172 + 8 * (2 * p + tt - 10))
HACC = lambda nt, tt: HG(nt >> 1, tt) + 4 * (nt & 1)
PWQ, PW1, PQ0, PCQ, P10, PC1 = 2, 6, 13, 21, 29, 31
OACC = lambda dt, qt: (dt * 4 + qt) * 4
QF = lambda qt, s: 128 + (qt * 4 + s) * 4
XN = lambda b, tt, s: 128 + b * 32 + (tt * 2 + s) * 4
RING = 192
LACC = lambda qt: 224 + 4 * qt
NR1 = 11


def lane_grc(k, g, r, c, lane=0):
    k(f"""v_lshrrev_b32 v{g}, 4, v{lane}
    v_bfe_u32 v{r}, v{lane}, 2, 2
    v_and_b32 v{c}, 3, v{lane}""")


def p1_dmas(tag, wtag):
    g = []
    for j in range(4):
        g.append((['s_add_u32 m0, s40, s45'] if j == 0 else [],
                  f'buffer_load_dwordx4 v{PWQ + j}, s[8:11], s38 offen offset:{j * 1024} lds',
                  ['s_add_u32 s38, s38, 0x80000'] if j == 3 else []))
    for j in range(7):
        g.append(([f's_add_u32 m0, s40, s{46 + (j >> 2)}'] if j in (0, 4) else [],
                  f'buffer_load_dwordx4 v{PW1 + j}, s[12:15], s39 offen offset:{(j & 3) * 1024} lds',
                  ['s_add_u32 s39, s39, 0x70000', 's_mov_b32 s41, s49', 's_mov_b32 s49, s40', f's_add_u32 s40, s40, {GSLOT}',
                   f's_cmp_lt_u32 s40, {3 * GSLOT}', 's_cselect_b32 s40, s40, 0'] if j == 6 else []))
    return g


def xn_loads(b):
    g = []
    for t in range(2):
        for s in range(2):
            for sub in range(2):
                g.append(([], f'buffer_load_dwordx4 {ar(XN(b, 2 * t + sub, s), 4)}, v{VLN}, s[4:7], s{36 + t} offen '
                              f'offset:{s * 2048 + sub * 1024} ;#X',
                          [f's_add_u32 s{36 + t}, s{36 + t}, 4096'] if s and sub else []))
    return g


def kdma(i, tag):
    return [([f's_add_u32 m0, s45, {ABASE + KSLOT(i) * 16384}'] if j == 0 else [],
             f'buffer_load_dwordx4 v{VKD + j}, s[16:19], s43 offen offset:{j * 1024} lds',
             ['s_add_u32 s43, s43, 16384'] if j == 3 else []) for j in range(4)]


def vdma(i, tag):
    return [([f's_add_u32 m0, s45, {ABASE + VSLOT(i) * 16384}'] if j == 0 else [],
             f'buffer_load_dwordx4 v{VVD + (j & 1)}, s[20:23], s44 offen offset:{j * 1024} lds',
             ['s_add_u32 s44, s44, 16384'] if j == 3 else []) for j in range(4)]


def flat(vm):
    out = []
    for pre, v, post in vm:
        out += pre + (['s_nop 0'] if pre else []) + [v] + post
    return out


def sched_vmem(G, fns, gaps):
    prev = -10 ** 6
    for n, (fn, g) in enumerate(zip(fns, gaps)):
        while not G.fits(g, 8):
            g += 1
        pre, _, post = fn(0)
        G.put(g, lambda i, fn=fn: [fn(i)[1]], 8, kind='vm')
        for j in range(len(pre)):
            G.place(max(prev + 1, g - 3, 0), g - 1, g - 1, lambda i, fn=fn, j=j: [fn(i)[0][j]], 4, kind='vm', pack=True)
        lo = g + 1
        nxt = gaps[n + 1] if n + 1 < len(gaps) else g + 8
        for j in range(len(post)):
            lo = G.place(lo, g + 6, lo, lambda i, fn=fn, j=j: [fn(i)[2][j]], 4, kind='vm')
        prev = g


P1_SEQ = ['Q0', 'F0', 'Q1', 'F1', 'Q2', 'F2', 'Q3', 'F3', 'Q4', 'F4', 'Q5', 'F5', 'F6', 'Q6', 'Q7']
P1_GB = 103


def p1_frags():
    fr = []
    for gi, name in enumerate(P1_SEQ):
        g0, x = 8 * gi, int(name[1:])
        if name[0] == 'Q':
            for s in range(2):
                fr.append(('Q', x, s, g0, g0 + 6 + s))
        else:
            for e in range(2):
                for s in range(2):
                    fr.append(('F', 2 * x + e, s, g0, g0 + 4 * e + 2 + s))
    return fr


def p1_mfmas(b):
    mf, n = [], 0
    for name in P1_SEQ:
        x = int(name[1:])
        if name[0] == 'Q':
            for tt in range(4):
                for s in range(2):
                    a = ar(RING + ((n + s) % NR1) * 4, 4)
                    mf.append(f'{MF} {ar(OACC(x, tt), 4)}, {a}, {ar(XN(b, tt, s), 4)}, {ar(OACC(x, tt), 4)}')
            n += 2
        else:
            for e in range(2):
                for tt in range(2):
                    for s in range(2):
                        a = ar(RING + ((n + 2 * e + s) % NR1) * 4, 4)
                        h = vr(HACC(2 * x + e, tt), 4)
                        mf.append(f'{MF} {h}, {a}, {ar(XN(b, tt, s), 4)}, {h}')
            n += 4
    return mf


def p1_read(n, hh):
    kind, x, s, _, _ = p1_frags()[n]
    d = RING + (n % NR1) * 4 + 2 * hh
    if kind == 'Q':
        return f'ds_read_b64_tr_b16 {ar(d, 2)}, v{PCQ + x} offset:{s * 8192 + hh * 1024} ;@R G 0'
    return f'ds_read_b64_tr_b16 {ar(d, 2)}, v{PC1 + (x & 1)} offset:{(x >> 1) * 64 + (s * 32 + hh * 4) * 448} ;@R G 0'


def p1_sched(mode):
    G = Gaps(120)
    fr = p1_frags()
    for gi in range(len(P1_SEQ)):
        regs = [ar(RING + (n % NR1) * 4, 4) for n, f in enumerate(fr) if f[3] == 8 * gi]
        G.put(8 * gi - 1, lambda i, regs=regs: [('need', regs)], 4, prio=9, kind='need')
    G.put(P1_GB, lambda i: [('vmwait', [f'G{(i + 1) & 1}'], ' lgkmcnt(0)'), 's_barrier ;@ROT G'], 8, kind='bar')
    G.put(118, lambda i: [('vmwait', ['X'])], 4, prio=8, kind='bar')
    upd = {}
    g = P1_GB + 1
    if mode == 't14':
        G.put(90, lambda i: ['s_mov_b32 s41, s49'], 4, kind='bar')
    order = [('Q', 0), ('F', 0), ('F', 1)] + [('Q', d) for d in range(1, 8)]
    for kd, x in order:
        ins = f'v_add_u32 v{PCQ + x}, s41, v{PQ0 + x}' if kd == 'Q' else f'v_add_u32 v{PC1 + x}, s41, v{P10 + x}'
        g = G.place(g, 119, g, lambda i, ins=ins: [ins], 4, kind='bar', prio=1)
        upd[(kd, x)] = g
    if mode == 'loop':
        fns = [lambda i, j=j: xn_loads((i + 1) & 1)[j] for j in range(8)] + \
              [lambda i, j=j: p1_dmas(f'G{i & 1}', '+2')[j] for j in range(11)]
        gaps = [2 + 5 * j for j in range(8)] + [42 + (11 * j) // 2 for j in range(11)]
    elif mode == 't14':
        fns = [lambda i, j=j: xn_loads(1)[j] for j in range(8)] + \
              [lambda i, j=j: (vdma(0, 'V0') + vdma(1, 'V1'))[j] for j in range(8)]
        gaps = [2 + 6 * j for j in range(8)] + [50 + 6 * j for j in range(8)]
    else:
        fns = [lambda i, j=j: (kdma(1, 'K1') + kdma(2, 'K2') + kdma(3, 'K3'))[j] for j in range(12)]
        gaps = [2 + 9 * j for j in range(12)]
    sched_vmem(G, fns, gaps)
    prev = -10 ** 6
    for n, (kd, x, s, fu, lu) in enumerate(fr):
        pl = fr[n - NR1][4] - (120 if n < NR1 else 0)
        lo = max(pl + 1, prev, upd[(kd, x if kd == 'Q' else x & 1)] - 120 + 1)
        hi = min(fu - 6, P1_GB - 3)
        assert lo <= hi, (n, lo, hi)
        for hh in range(2):
            prev = G.place(lo, hi, fu - OPT['la'], lambda i, n=n, hh=hh: [p1_read(n, hh)], 4, kind='rd', pack=True)
            lo = prev
    return G


def k_read(i, n):
    kvt, s = divmod(n, 4)
    return f'ds_read_b128 {ar(RING + (n & 7) * 4, 4)}, v{VKA + s} offset:{(KSLOT(i) - 4) * 16384 + kvt * 4096} ;@R A {KSLOT(i)}'


def v_read(i, n, hh):
    dt, u = divmod(n - 16, 2)
    return (f'ds_read_b64_tr_b16 {ar(RING + (n & 7) * 4 + 2 * hh, 2)}, v{VVA + dt} '
            f'offset:{VSLOT(i) * 16384 + u * 8192 + hh * 4096} ;@R A {VSLOT(i)}')


def elem_reg(b, e):
    kvt, qt, r = e >> 4, (e >> 2) & 3, e & 3
    return S_(b, kvt, qt) + r


def sm_exp(b, e):
    r = elem_reg(b, e)
    return f'v_exp_f32 v{r}, v{r}'


def sm_add(b, e):
    qt = (e >> 2) & 3
    return f'v_add_f32 v{VL + qt}, v{VL + qt}, v{elem_reg(b, e)}'


def sm_cvt(b, e):
    kvt, qt, r = e >> 4, (e >> 2) & 3, e & 3
    src = elem_reg(b, e)
    return f'v_cvt_pk_bf16_f32 v{P_(b, kvt >> 1, qt) + 2 * (kvt & 1) + (r >> 1)}, v{src - 1}, v{src}'


def qk_mfmas(bS, c0=None):
    mf = []
    for kvt in range(4):
        for qt in range(4):
            for s in range(4):
                d = vr(S_(bS, kvt, qt), 4)
                c = d if s else (c0 if c0 is not None else vr(NEGM(qt), 4))
                mf.append(f'{MF} {d}, {ar(RING + ((kvt * 4 + s) & 7) * 4, 4)}, {ar(QF(qt, s), 4)}, {c}')
    return mf


def pv_mfmas(bS):
    mf = []
    for dt in range(8):
        for qt in range(4):
            for u in range(2):
                o = ar(OACC(dt, qt), 4)
                mf.append(f'{MF} {o}, {ar(RING + ((16 + dt * 2 + u) & 7) * 4, 4)}, {vr(P_(bS, u, qt), 4)}, {o}')
        if OPT['msum']:
            qt, u = dt >> 1, dt & 1
            mf.append(f'{MF} {ar(LACC(qt), 4)}, {vr(ONES, 4)}, {vr(P_(bS, u, qt), 4)}, {ar(LACC(qt), 4)}')
    return mf


def att_sched():
    PW = 9 if OPT['msum'] else 8
    NG = 64 + 8 * PW
    G = Gaps(NG)
    fu = [16 * (n >> 2) for n in range(16)] + [64 + PW * (n >> 1) for n in range(16)]
    lu = [16 * (n >> 2) + 12 + (n & 3) for n in range(16)] + [64 + PW * (n >> 1) + 6 + (n & 1) for n in range(16)]
    for g0 in sorted(set(fu)):
        regs = [ar(RING + (n & 7) * 4, 4) for n in range(32) if fu[n] == g0]
        G.put(g0 - 1, lambda i, regs=regs: [('need', regs)], 4, prio=9, kind='need')
    GB = lu[24] - 3
    G.put(GB, lambda i: [('vmwait', [f'V{(i + 1) & 3}', f'K{(i + 2) & 3}']), 's_barrier'], 8, kind='bar')
    fns = [lambda i, j=j: (vdma(i + 2, f'V{(i + 2) & 3}') + kdma(i + 4, f'K{i & 3}'))[j] for j in range(8)]
    gaps = [4 + (NG * j) // 8 for j in range(8)]
    if OPT['warm']:
        fns.append(lambda i: ([], f'buffer_load_dword v{VT + 40}, v{VPFO}, s[68:71], s65 offen ;#PF', ['s_add_u32 s65, s65, 2048'])
                   if (i & 3) == 1 else ([], 's_nop 0', ['s_nop 0']))
        gaps.append(NG - 6)
    sched_vmem(G, fns, gaps)
    X0 = OPT['x0']
    eg = []
    prev = -1
    for e in range(64):
        ready = 16 * (e >> 4) + 4 * ((e >> 2) & 3) + 3 + 5
        prev = G.place(max(ready, prev + 1), NG + 58, X0 + (e * NG) // 64, lambda i, e=e: [sm_exp((i + 1) & 1, e)], 8, kind='exp')
        eg.append(prev)
    prev = -10 ** 6
    for n in range(32):
        pl = lu[n - 8] - (NG if n < 8 else 0)
        lo = max(pl + 1, prev)
        if n < 16:
            lo = max(lo, GB + 1 - NG)
            prev = G.place(lo, fu[n] - 6, fu[n] - OPT['la'], lambda i, n=n: [k_read(i + 1, n)], 4, kind='rd', pack=True)
        else:
            for hh in range(2):
                prev = G.place(lo, fu[n] - 6, fu[n] - OPT['la'], lambda i, n=n, hh=hh: [v_read(i, n, hh)], 4, kind='rd', pack=True)
                lo = prev
    prev = -1
    for e in range(1, 64, 2):
        prev = G.place(max(eg[e] + 1, prev), NG + 61, eg[e] + 1, lambda i, e=e: [sm_cvt((i + 1) & 1, e)], 4, kind='cvt', pack=True, prio=2)
        if not OPT['msum']:
            for x in (e - 1, e):
                G.place(eg[e] + 1, prev, eg[e] + 1, lambda i, x=x: [sm_add((i + 1) & 1, x)], 4, kind='cvt', prio=1)
    return G, NG


def drop(items):
    d = []
    if OPT['nodma']:
        d += ['buffer_load', 's_add_u32']
    if OPT['nobar']:
        d += ['s_barrier']
    if OPT['nolds']:
        d += ['ds_read']
    if OPT['noexp']:
        d += ['v_exp']
    if OPT['nocvt']:
        d += ['v_cvt']
    return [x for x in items if x != 's_nop 0' and (isinstance(x, tuple) or not any(x.startswith(p) for p in d))]


def xgroup(k, op, regs, tmp):
    for sw in ('v_permlane32_swap_b32', 'v_permlane16_swap_b32'):
        for j, r in enumerate(regs):
            k(f'v_mov_b32 v{tmp + j}, v{r}')
        k('s_nop 1')
        for j, r in enumerate(regs):
            k(f'{sw} v{r}, v{tmp + j}')
        for j, r in enumerate(regs):
            k(f'{op} v{r}, v{r}, v{tmp + j}')


def flush(k, lin):
    k('\n'.join(lin.out))
    lin.out = []


def gen_k2():
    k = Kernel('att_kernel')
    C = math.log2(math.e) / math.sqrt(128.0)
    k("""
    s_cmp_ge_u32 s2, 256
    s_cbranch_scc1 L_k2_end
    s_load_dwordx4 s[52:55], s[0:1], 8      ; K, V
    s_load_dwordx2 s[56:57], s[0:1], 24     ; wq
    s_load_dwordx2 s[58:59], s[0:1], 48     ; w1
    s_load_dwordx2 s[60:61], s[0:1], 80     ; ws
    s_load_dwordx2 s[62:63], s[0:1], 72     ; dbg
    s_load_dwordx2 s[96:97], s[0:1], 32     ; wo
    s_load_dwordx2 s[98:99], s[0:1], 56     ; w2
    v_lshrrev_b32 v1, 6, v0
    v_and_b32 v0, 63, v0
    s_and_b32 s32, s2, 7
    v_readfirstlane_b32 s3, v1
    s_lshl_b32 s32, s32, 2
    s_lshr_b32 s33, s2, 3
    s_and_b32 s34, s33, 3
    s_add_u32 s32, s32, s34                 ; head
    s_lshr_b32 s33, s33, 2                  ; q block
    s_and_b32 s34, s32, 1                   ; parity
    s_lshl_b32 s45, s3, 12                  ; w*4096
    s_mul_i32 s46, s3, 7168
    s_add_u32 s46, s46, 16384
    s_add_u32 s47, s46, 4096
    s_lshl_b32 s35, s33, 3
    s_lshl_b32 s50, s3, 1
    s_add_u32 s35, s35, s50
    s_add_u32 s50, s35, s34
    s_xor_b32 s51, s34, 1
    s_add_u32 s51, s35, s51
    s_lshl_b32 s36, s50, 16
    s_lshl_b32 s37, s51, 16
    s_mov_b32 s38, 0
    s_mov_b32 s39, 0
    s_mov_b32 s40, 0
    s_mov_b32 s41, 0
    s_mov_b32 s43, 0
    s_mov_b32 s44, 0
    s_mov_b32 s64, 0
    """)
    stamp(k, 0)
    T0, T1, T2, T3, T4, T5 = range(VT, VT + 6)
    k(f"""
    v_lshlrev_b32 v{VLN}, 4, v0
    v_lshrrev_b32 v{T0}, 4, v0              ; l>>4
    v_and_b32 v{T1}, 15, v0                 ; l&15
    s_lshl_b32 s48, s3, 4
    v_add_u32 v{T3}, s48, v{T0}             ; row = 16w + (l>>4)
    """)
    for j in range(4):
        k(f"""v_or_b32 v{T2}, {(j >> 1) << 2}, v{T0}
        v_lshlrev_b32 v{T2}, 1, v{T2}
        v_xor_b32 v{T2}, v{T2}, v{T1}
        v_lshlrev_b32 v{T2}, 4, v{T2}
        v_lshl_add_u32 v{PWQ + j}, v{T3}, 13, v{T2}""")
        if j:
            k(f'v_add_u32 v{PWQ + j}, {j * 31744}, v{PWQ + j}')
    k('s_mul_i32 s48, s3, 114688')
    for j in range(7):
        k(f"""v_add_u32 v{T2}, {64 * j}, v0
        v_mul_u32_u24 v{T4}, 2341, v{T2}
        v_lshrrev_b32 v{T4}, 16, v{T4}          ; row = x/28
        v_mul_u32_u24 v{T5}, 28, v{T4}
        v_sub_u32 v{T2}, v{T2}, v{T5}           ; pos
        v_lshrrev_b32 v{T5}, 2, v{T4}
        v_and_b32 v{T5}, 2, v{T5}
        v_xor_b32 v{T2}, v{T2}, v{T5}
        v_mul_u32_u24 v{PW1 + j}, 7168, v{T4}
        v_lshl_add_u32 v{PW1 + j}, v{T2}, 4, v{PW1 + j}
        v_add_u32 v{PW1 + j}, s48, v{PW1 + j}""")
        if j & 3:
            k(f'v_subrev_u32 v{PW1 + j}, {(j & 3) * 1024}, v{PW1 + j}')
    for j in range(4):
        k(f"""v_add_u32 v{T2}, {4 * j}, v{T0}
        v_xor_b32 v{T2}, v{T2}, v{T1}
        v_lshlrev_b32 v{T2}, 4, v{T2}
        v_lshl_add_u32 v{VKD + j}, v{T3}, 8, v{T2}""")
    k('s_waitcnt lgkmcnt(0)')
    srd_off(k, 4, 's60', 's61', XN_OFF, 0x400000)
    k('s_lshl_b32 s48, s32, 8')
    srd_off(k, 8, 's56', 's57', 's48', 0)
    k('s_mov_b32 s10, 0x800000\ns_sub_u32 s10, s10, s48')
    k('s_lshr_b32 s48, s32, 1\ns_mul_i32 s48, s48, 448')
    srd_off(k, 12, 's58', 's59', 's48', 0)
    k('s_sub_u32 s14, 0x700000, s48')
    k('s_lshl_b32 s48, s32, 19')
    srd_off(k, 16, 's52', 's53', 's48', 0x80000)
    srd_off(k, 20, 's54', 's55', 's48', 0x80000)
    lin = Lin()
    lin.run(flat(p1_dmas('G0', '+0')))
    lin.run(flat(xn_loads(0)))
    lin.run(flat(p1_dmas('G1', '+1')))
    lin.run(flat(kdma(0, 'K0')))
    flush(k, lin)
    srd_off(k, 24, 's60', 's61', H_OFF, 0xE00000)
    srd_off(k, 28, 's60', 's61', O_OFF, 0x1000000)
    for j in range(2):
        k(f"""v_add_u32 v{T2}, {4 * j}, v{T0}
        v_lshlrev_b32 v{T2}, 1, v{T2}
        v_xor_b32 v{T2}, v{T2}, v{T1}
        v_lshlrev_b32 v{T2}, 4, v{T2}
        v_lshl_add_u32 v{VVD + j}, v{T3}, 8, v{T2}""")
    for s in range(4):
        k(f"""v_add_u32 v{T2}, {4 * s}, v{T0}
        v_xor_b32 v{T2}, v{T2}, v{T1}
        v_lshlrev_b32 v{T2}, 4, v{T2}
        v_lshl_add_u32 v{VKA + s}, v{T1}, 8, v{T2}
        v_add_u32 v{VKA + s}, {ABASE + 4 * 16384}, v{VKA + s}""")
    lane_grc(k, T0, T1, T2)
    k(f"""
    v_lshlrev_b32 v{T2}, 3, v{T2}           ; c*8
    v_lshl_add_u32 v{T3}, v{T0}, 2, v{T1}   ; V row = 4g + r
    v_and_b32 v{T4}, 7, v{T3}
    v_lshl_add_u32 v{T3}, v{T3}, 8, v{T2}
    v_add_u32 v{T3}, {ABASE}, v{T3}
    """)
    for dt in range(8):
        k(f"""v_xor_b32 v{T5}, {dt}, v{T4}
        v_lshl_add_u32 v{VVA + dt}, v{T5}, 5, v{T3}""")
    k(f"""
    v_lshl_add_u32 v{T3}, v{T0}, 3, v{T1}   ; w row = 8g + r
    v_and_b32 v{T0}, 1, v{T0}               ; g&1
    v_lshl_or_b32 v{T4}, v{T0}, 2, v{T1}    ; f
    v_mul_u32_u24 v{T1}, 448, v{T3}
    v_add_u32 v{T1}, v{T1}, v{T2}
    v_add_u32 v{T1}, 16384, v{T1}
    v_lshl_add_u32 v{T3}, v{T3}, 8, v{T2}
    """)
    for dt in range(8):
        k(f"""v_xor_b32 v{T5}, {dt}, v{T4}
        v_lshl_add_u32 v{PQ0 + dt}, v{T5}, 5, v{T3}
        v_mov_b32 v{PCQ + dt}, v{PQ0 + dt}""")
    for p in range(2):
        k(f"""v_xor_b32 v{T5}, {p}, v{T0}
        v_lshl_add_u32 v{P10 + p}, v{T5}, 5, v{T1}
        v_mov_b32 v{PC1 + p}, v{P10 + p}""")
    if OPT['warm']:
        k(f'''
        v_lshlrev_b32 v{VPFO}, 6, v0
        v_mov_b32 v{T5}, 0x7fffffff
        v_cmp_lt_u32 vcc, 31, v0
        s_and_b32 s49, s3, 1
        s_lshl_b32 s48, s2, 1
        v_cndmask_b32 v{VPFO}, v{VPFO}, v{T5}, vcc
        s_add_u32 s48, s48, s49          ; 2*wg + (w&1)
        s_cmp_lt_u32 s3, 2
        s_mov_b32 s70, 14336
        s_cselect_b32 s70, 16384, s70
        s_cselect_b32 s68, s96, s98
        s_cselect_b32 s69, s97, s99
        s_mul_i32 s48, s48, s70
        s_add_u32 s68, s68, s48
        s_addc_u32 s69, s69, 0
        s_mov_b32 s71, 0x20000
        s_mov_b32 s65, 0
        ''')
    k(f's_mov_b32 s49, {GSLOT}')
    for i in range(4):
        k(f'v_mov_b32 v{ONES + i}, 0x3f803f80')
    for i in range(128):
        k(f'v_accvgpr_write_b32 a{i}, 0')
    for p in range(7):
        for tt in range(2):
            for i in range(8):
                k(f'v_mov_b32 v{HG(p, tt) + i}, 0')
    GL = p1_sched('loop')
    print('p1 overflow', GL.over)
    lin.add(('vmwait', ['G0', 'X']))
    lin.add('s_barrier')
    lin.run(GL.only(0, lambda kk, kind, g: kk < 0 and kind in ('rd', 'need')))
    flush(k, lin)
    k('s_mov_b32 s42, 7')
    stamp(k, 1)
    st = steady(drop(GL.emit(p1_mfmas(0), 0)) + drop(GL.emit(p1_mfmas(1), 1)))
    k('L_p1:')
    k('\n'.join(st.out))
    k('s_sub_u32 s42, s42, 1\ns_cmp_lg_u32 s42, 0\ns_cbranch_scc1 L_p1')
    lin = Lin(st.lg, st.vm)
    lin.run(p1_sched('t14').emit(p1_mfmas(0), 14))
    lin.run(p1_sched('t15').emit(p1_mfmas(1), 15, keep=lambda kk, kind, g: kk >= 0 and kind != 'bar'))
    flush(k, lin)
    stamp(k, 2)
    k(f's_mov_b32 s66, {f32(C)}\ns_mov_b32 s67, {f32(C)}')
    k('s_nop 3')
    for n in range(8):
        lin.add(k_read(0, n))
    n = 0
    for tt in range(4):
        for s in range(4):
            tb = VT + (n & 1) * 8
            n += 1
            for e in range(2):
                for i in range(4):
                    lin.add(f'v_accvgpr_read_b32 v{tb + 4 * e + i}, a{OACC(2 * s + e, tt) + i}')
            for i in range(0, 8, 2):
                lin.add(f'v_pk_mul_f32 {vr(tb + i, 2)}, {vr(tb + i, 2)}, s[66:67]')
            for i in range(4):
                lin.add(f'v_cvt_pk_bf16_f32 v{tb + i}, v{tb + 2 * i}, v{tb + 2 * i + 1}')
            lin.add('s_nop 0')
            lin.add(f'v_permlane32_swap_b32 v{tb}, v{tb + 2}')
            lin.add(f'v_permlane32_swap_b32 v{tb + 1}, v{tb + 3}')
            lin.add('s_nop 0')
            lin.add(f'v_permlane16_swap_b32 v{tb}, v{tb + 2}')
            lin.add(f'v_permlane16_swap_b32 v{tb + 1}, v{tb + 3}')
            for i in range(4):
                lin.add(f'v_accvgpr_write_b32 a{QF(tt, s) + i}, v{tb + i}')
    flush(k, lin)
    if OPT['dumpq']:
        k('s_lshl_b32 s48, s2, 16\ns_lshl_b32 s49, s3, 14\ns_add_u32 s48, s48, s49\ns_add_u32 s48, s48, 0x4000000')
        srd_off(k, 72, 's60', 's61', 's48', 16384)
        for n in range(16):
            k(f's_mov_b32 s48, {n * 1024}')
            lin.add(f'buffer_store_dwordx4 {ar(128 + 4 * n, 4)}, v{VLN}, s[72:75], s48 offen')
            flush(k, lin)
    k("""s_mul_i32 s48, s50, 229376
    s_lshr_b32 s49, s32, 1
    s_mul_i32 s49, s49, 14336
    s_add_u32 s48, s48, s49""")
    hep = []
    for p in range(7):
        for tt in range(2):
            b = HG(p, tt)
            for i in range(4):
                hep.append(f'v_cvt_pk_bf16_f32 v{b + i}, v{b + 2 * i}, v{b + 2 * i + 1}')
            for i in range(4):
                hep.append(f'v_pk_max_i16 v{b + i}, v{b + i}, 0')
            ks = p * 2 + tt
            if ks % 4 == 0 and ks:
                hep.append('s_add_u32 s48, s48, 4096')
            hep.append(f'buffer_store_dwordx4 {vr(b, 4)}, v{VLN}, s[24:27], s48 offen offset:{(ks & 3) * 1024} ;#H')

    def qk0(extra):
        mf = qk_mfmas(0, c0='0')
        fill = {}
        add = lambda g, it: fill.setdefault(g, []).extend(it)
        per = (len(extra) + 63) // 64
        for n, it in enumerate(extra):
            add(n // per, [it])
        for n in range(8, 16):
            add(16 * ((n - 8) >> 2) + 13 + (n & 3), [k_read(0, n)])
        return weave(mf, fill)
    zero_o = [f'v_accvgpr_write_b32 a{i}, 0' for i in list(range(128)) + list(range(LACC(0), LACC(0) + 16))]
    mix = []
    for i in range(max(len(hep), len(zero_o))):
        if i < len(hep):
            mix.append(hep[i])
        if i < len(zero_o):
            mix.append(zero_o[i])
    lin.run(qk0(mix))
    flush(k, lin)
    GA, NG = att_sched()
    print('att overflow', GA.over, 'NG', NG)
    k('L_att_go:')
    lin.add(('vmwait', ['K1', 'V0']))
    lin.add('s_barrier')
    lin.run(GA.only(0, lambda kk, kind, g: kk < 0 and kind == 'rd'))
    flush(k, lin)
    k('s_nop 4')
    for qt in range(4):
        m = VT + qt
        regs = [S_(0, kvt, qt) + i for kvt in range(4) for i in range(4)]
        k(f'v_max3_f32 v{m}, v{regs[0]}, v{regs[1]}, v{regs[2]}')
        for i in range(3, 15, 2):
            k(f'v_max3_f32 v{m}, v{m}, v{regs[i]}, v{regs[i + 1]}')
        k(f'v_max_f32 v{m}, v{m}, v{regs[15]}')
    xgroup(k, 'v_max_f32', [VT + q for q in range(4)], VT + 4)
    k('s_cmp_eq_u32 s64, 0\ns_cbranch_scc1 L_use_m0')
    for qt in range(4):
        k(f'v_mov_b32 v{VT + qt}, v{VMT + qt}')
    k('L_use_m0:')
    for qt in range(4):
        for i in range(4):
            k(f'v_sub_f32 v{NEGM(qt) + i}, 0, v{VT + qt}')
        k(f'v_mov_b32 v{VL + qt}, 0')
    for kvt in range(4):
        for qt in range(4):
            for i in range(0, 4, 2):
                r = S_(0, kvt, qt) + i
                k(f'v_pk_add_f32 {vr(r, 2)}, {vr(r, 2)}, {vr(NEGM(qt), 2)}')
    pre = GA.only(-1, lambda kk, kind, g: kk == 0 and kind in ('exp', 'cvt'))
    for a, b in zip(pre, pre[1:] + ['']):
        k(a)
        if a.startswith('v_exp') and not b.startswith('v_exp') and a.split()[1].strip(',') in b:
            k('s_nop 0')
    lin.run(GA.only(0, lambda kk, kind, g: kk < 0 and kind == 'need'))
    flush(k, lin)
    k('s_mov_b32 s42, 8')
    stamp(k, 3)
    it = lambda i: drop(GA.emit(qk_mfmas((i + 1) & 1) + pv_mfmas(i & 1), i))
    body = []
    for i in range(4):
        if i == 3:
            body += ['s_sub_u32 s42, s42, 1', 's_cmp_eq_u32 s42, 0', 's_cbranch_scc1 L_att_tail']
        body += it(i)
    st = steady(body)
    k('L_att:')
    k('\n'.join(st.out))
    k('s_branch L_att')
    k('L_att_tail:')
    l3 = Lin(st.lg, st.vm)
    for i in range(3):
        l3.run(it(i))
    lin = Lin(l3.lg, l3.vm)
    tail = GA.emit([None] * 64 + pv_mfmas(1), 3,
                   keep=lambda kk, kind, g: (kk == 1 and kind in ('exp', 'cvt')) or
                   (kk == 0 and kind in ('rd', 'need') and g >= 40))
    tail = [x for x in tail if isinstance(x, tuple) or not x.startswith('ds_read_b128')]
    t2 = []
    for a, b in zip(tail, tail[1:] + ['']):
        t2.append(a)
        if isinstance(a, str) and isinstance(b, str) and a.startswith('v_exp') and b.startswith('v_') and not b.startswith('v_exp'):
            t2.append('s_nop 0')
        if isinstance(a, str) and a.startswith('v_cvt') and (isinstance(b, tuple) or b.startswith('v_mfma')):
            t2.append('s_nop 1')
    lin.run(t2)
    flush(k, lin)
    stamp(k, 4)
    k('s_nop 7')
    if OPT['msum']:
        for qt in range(4):
            k(f'v_accvgpr_read_b32 v{VL + qt}, a{LACC(qt)}')
    else:
        xgroup(k, 'v_add_f32', [VL + q for q in range(4)], VT + 4)
    k(f"""
    v_add_f32 v{VT}, v{VL}, v{VL + 1}
    v_add_f32 v{VT + 1}, v{VL + 2}, v{VL + 3}
    v_add_f32 v{VT + 1}, v{VT}, v{VT + 1}
    s_mov_b32 s48, 0x4e800000
    v_cmp_nle_f32 vcc, v{VT + 1}, s48
    s_nop 1
    s_cmp_lg_u64 vcc, 0
    s_cselect_b32 s48, 1, 0
    s_andn2_b32 s48, s48, s64
    v_mov_b32 v{VT + 2}, s48
    s_lshl_b32 s49, s3, 2
    v_mov_b32 v{VT + 3}, s49
    ds_write_b32 v{VT + 3}, v{VT + 2}
    v_rcp_f32 v{VL}, v{VL}
    v_rcp_f32 v{VL + 1}, v{VL + 1}
    v_rcp_f32 v{VL + 2}, v{VL + 2}
    v_rcp_f32 v{VL + 3}, v{VL + 3}
    s_waitcnt lgkmcnt(0)
    s_barrier
    v_mov_b32 v{VT + 3}, 0
    ds_read_b128 {vr(VT + 4, 4)}, v{VT + 3}
    s_waitcnt lgkmcnt(0)
    v_or_b32 v{VT + 4}, v{VT + 4}, v{VT + 5}
    v_or_b32 v{VT + 6}, v{VT + 6}, v{VT + 7}
    v_or_b32 v{VT + 4}, v{VT + 4}, v{VT + 6}
    s_nop 0
    v_readfirstlane_b32 s48, v{VT + 4}
    s_nop 1
    s_cmp_lg_u32 s48, 0
    s_cbranch_scc1 L_fallback
    s_lshl_b32 s50, s50, 18
    s_lshl_b32 s51, s51, 18
    s_lshl_b32 s48, s32, 13
    s_add_u32 s50, s50, s48
    s_add_u32 s51, s51, s48
    s_add_u32 s52, s50, 4096
    s_add_u32 s53, s51, 4096
    """)
    n = 0
    for qt in range(4):
        k(f'v_mov_b32 v{VT + 32}, v{VL + qt}\nv_mov_b32 v{VT + 33}, v{VL + qt}')
        for s in range(4):
            tb = (n & 3) * 8
            n += 1
            for e in range(2):
                for i in range(4):
                    k(f'v_accvgpr_read_b32 v{tb + 4 * e + i}, a{OACC(2 * s + e, qt) + i}')
            for i in range(0, 8, 2):
                k(f'v_pk_mul_f32 {vr(tb + i, 2)}, {vr(tb + i, 2)}, {vr(VT + 32, 2)}')
            for i in range(4):
                k(f'v_cvt_pk_bf16_f32 v{tb + i}, v{tb + 2 * i}, v{tb + 2 * i + 1}')
            k(f'buffer_store_dwordx4 {vr(tb, 4)}, v{VLN}, s[28:31], s{50 + (qt >> 1) + 2 * (s >> 1)} offen '
              f'offset:{(s & 1) * 2048 + (qt & 1) * 1024}')
    if OPT['stamp']:
        stamp(k, 5)
        stamp_out(k, 'L_k2_end', 's62', 's63')
    k('L_k2_end:\ns_endpgm')
    k(f"""L_fallback:
    s_mov_b32 s64, 1
    s_mov_b32 s43, 0
    s_mov_b32 s42, 32
    s_waitcnt vmcnt(0)""")
    for qt in range(4):
        k(f'v_mov_b32 v{VMT + qt}, 0xff800000')
    k('L_fb_loop:\ns_barrier')
    lin = Lin()
    lin.run(flat(kdma(0, 'K0')))
    lin.run(['s_waitcnt vmcnt(0)', 's_barrier'])
    for n in range(8):
        lin.add(k_read(0, n))
    lin.run(qk0([]))
    lin.add('s_nop 15')
    for qt in range(4):
        for kvt in range(4):
            for i in range(0, 4, 2):
                r = S_(0, kvt, qt) + i
                lin.add(f'v_max3_f32 v{VMT + qt}, v{VMT + qt}, v{r}, v{r + 1}')
    flush(k, lin)
    k('s_sub_u32 s42, s42, 1\ns_cmp_lg_u32 s42, 0\ns_cbranch_scc1 L_fb_loop')
    xgroup(k, 'v_max_f32', [VMT + q for q in range(4)], VT)
    k('s_mov_b32 s43, 0\ns_mov_b32 s44, 0\ns_barrier')
    lin.run(flat(kdma(0, 'K0') + vdma(0, 'V0') + vdma(1, 'V1') + kdma(1, 'K1') + kdma(2, 'K2') + kdma(3, 'K3')))
    lin.run(['s_waitcnt vmcnt(0)', 's_barrier'])
    for n in range(8):
        lin.add(k_read(0, n))
    lin.run(qk0(zero_o))
    lin.add('s_branch L_att_go')
    flush(k, lin)
    rings = {'G': (3, lambda n: (n * GSLOT, (n + 1) * GSLOT)),
             'A': (8, lambda n: (ABASE + n * 16384, ABASE + (n + 1) * 16384))}
    pol = [{'L_p1': [1] * 6 + [0], 'L_att_tail': [0, 0, 1], 'L_use_m0': [1]},
           {'L_p1': [1] * 6 + [0], 'L_att_tail': [0, 1, 0, 1], 'L_use_m0': [1, 0], 'L_fallback': [1, 0]}]
    return k, k.check(pol, rings=rings)


def gen_k3():
    k = Kernel('fin_kernel')
    AG = lambda p, tt: (p * 2 + tt) * 8
    ACC = lambda nt, tt: AG(nt >> 1, tt) + 4 * (nt & 1)
    ACT = lambda T, j: (T & 3) * 32 + j * 4
    R3 = 128
    VA = 64
    VD = 80
    VLN3, VX, VZ = 88, 89, 90
    T0, T1, T2, T3, T4, T5 = 91, 92, 93, 94, 95, 96
    LOOK = OPT['look3']
    k("""
    s_cmp_ge_u32 s2, 256
    s_cbranch_scc1 L_k3_end
    s_load_dwordx2 s[52:53], s[0:1], 0      ; x
    s_load_dwordx2 s[54:55], s[0:1], 32     ; wo
    s_load_dwordx2 s[56:57], s[0:1], 56     ; w2
    s_load_dwordx2 s[58:59], s[0:1], 64     ; out
    s_load_dwordx2 s[60:61], s[0:1], 80     ; ws
    s_load_dwordx2 s[62:63], s[0:1], 72     ; dbg
    v_lshrrev_b32 v1, 6, v0
    v_and_b32 v0, 63, v0
    s_and_b32 s32, s2, 7
    v_readfirstlane_b32 s3, v1
    s_lshr_b32 s33, s2, 3
    s_lshr_b32 s34, s32, 2
    s_and_b32 s32, s32, 3
    s_lshl_b32 s32, s32, 2
    s_and_b32 s35, s33, 3
    s_add_u32 s32, s32, s35                 ; mb (0..15)
    s_lshr_b32 s33, s33, 2                  ; nb (0..7)
    s_lshl_b32 s35, s32, 2
    s_add_u32 s35, s35, s3
    s_lshl_b32 s45, s3, 13                  ; w*8192 (LDS)
    s_add_u32 s46, s45, 4096
    s_lshl_b32 s47, s32, 3
    s_add_u32 s47, s47, s33
    """)
    stamp(k, 0)
    k(f"""
    v_lshlrev_b32 v{VLN3}, 4, v0
    v_lshrrev_b32 v{T0}, 4, v0
    v_and_b32 v{T1}, 15, v0
    s_lshl_b32 s48, s3, 5
    v_add_u32 v{T3}, s48, v{T0}             ; row = 32w + (l>>4)
    """)
    for j in range(2):
        k(f"""v_add_u32 v{T2}, {4 * j}, v{T0}
        v_lshlrev_b32 v{T2}, 1, v{T2}
        v_xor_b32 v{T2}, v{T2}, v{T1}
        v_lshlrev_b32 v{T2}, 4, v{T2}
        v_lshl_add_u32 v{VD + j}, v{T3}, 11, v{T2}""")
    for j in range(7, 0, -1):
        k(f'v_add_u32 v{VD + j}, {j * 8192 - (j & 3) * 1024}, v{VD + (j & 1)}')
    k(f"""
    s_waitcnt lgkmcnt(0)
    s_cmp_eq_u32 s34, 0
    s_cselect_b32 s54, s54, s56
    s_cselect_b32 s55, s55, s57
    s_mov_b32 s64, 0x800000
    s_mov_b32 s65, 0x40000
    s_mov_b32 s66, {O_OFF}
    s_cselect_b32 s64, s64, 0x700000
    s_cselect_b32 s65, s65, 0x38000
    s_cselect_b32 s66, s66, {H_OFF}
    s_cselect_b32 s42, 8, 7
    s_lshl_b32 s48, s33, 8
    """)
    srd_off(k, 8, 's54', 's55', 's48', 0)
    k('s_sub_u32 s10, s64, s48')
    k('s_mul_i32 s48, s35, s65\ns_add_u32 s48, s48, s66')
    srd_off(k, 4, 's60', 's61', 's48', 0)
    k('s_mov_b32 s6, s65\ns_mov_b32 s38, 0\ns_mov_b32 s36, 0\ns_mov_b32 s37, 4096')

    def loads(T):
        tag = f'L{T & 3}'
        gs = []
        for j in range(8):
            gs.append(([f's_add_u32 m0, s{45 + (j >> 2)}, {(T & 3) * 32768}'] if j in (0, 4) else [],
                       f'buffer_load_dwordx4 v{VD + j}, s[8:11], s38 offen offset:{(j & 3) * 1024} lds ;#{tag} @W W {T & 3}',
                       ['s_add_u32 s38, s38, 0x40000'] if j == 7 else []))
            gs.append(([], f'buffer_load_dwordx4 {ar(ACT(T, j), 4)}, v{VLN3}, s[4:7], s{36 + (j >> 2)} offen offset:{(j & 3) * 1024} ;#{tag}',
                       [f's_add_u32 s{36 + (j >> 2)}, s{36 + (j >> 2)}, 8192'] if (j & 3) == 3 else []))
        return gs

    def wread(T, n, hh):
        nt, ks = divmod(n, 4)
        a = VA + ((T >> 1) & 1) * 8 + nt
        return (f'ds_read_b64_tr_b16 {ar(R3 + (n & 15) * 4 + 2 * hh, 2)}, v{a} '
                f'offset:{(T & 1) * 32768 + ks * 8192 + hh * 4096} ;@R W {T & 3}')
    lin = Lin()
    for T in range(LOOK):
        lin.run(flat(loads(T)))
    flush(k, lin)
    k(f"""
    v_lshlrev_b32 v{VX}, 11, v{T1}
    v_lshl_add_u32 v{VX}, v{T0}, 4, v{VX}
    v_mov_b32 v{VZ}, 0
    """)
    lane_grc(k, T0, T1, T2)
    k(f"""
    v_lshlrev_b32 v{T2}, 3, v{T2}
    v_lshl_add_u32 v{T3}, v{T0}, 2, v{T1}   ; row = 4g + r
    v_and_b32 v{T4}, 7, v{T3}
    v_lshl_add_u32 v{T3}, v{T3}, 8, v{T2}
    """)
    for nt in range(8):
        k(f"""v_xor_b32 v{T5}, {nt}, v{T4}
        v_lshl_add_u32 v{VA + nt}, v{T5}, 5, v{T3}
        v_add_u32 v{VA + 8 + nt}, 0x10000, v{VA + nt}""")
    for i in range(64):
        k(f'v_mov_b32 v{i}, 0')
    G = Gaps(64)
    GB = 46
    for nt in range(8):
        regs = [ar(R3 + ((nt * 4 + ks) & 15) * 4, 4) for ks in range(4)]
        G.put(8 * nt - 1, lambda i, regs=regs: [('need', regs)], 4, prio=9, kind='need')
    G.put(GB, lambda i: [('vmwait', [f'L{(i + 1) & 3}'], ' lgkmcnt(0)' if LOOK == 3 else ''), 's_barrier'], 8, kind='bar')
    sched_vmem(G, [lambda i, j=j: loads(i + LOOK)[j] for j in range(16)],
               [1 + 4 * j for j in range(16)] if LOOK == 2 else [1 + (j * 11) // 4 for j in range(16)])
    prev = -10 ** 6
    for n in range(32):
        fu, lu16 = 8 * (n >> 2), 8 * ((n - 16) >> 2) + 4 + (n & 3)
        lo = max(lu16 + 1, prev, GB + 1 - 64)
        hi = fu - 5 if LOOK == 2 else min(fu - 5, GB - 2)
        for hh in range(2):
            prev = G.place(lo, hi, fu - OPT['la'], lambda i, n=n, hh=hh: [wread(i, n, hh)], 4, kind='rd', pack=True)
            lo = prev
    print('k3 overflow', G.over)

    def mfs(T):
        return [f'{MF} {vr(ACC(nt, tt), 4)}, {ar(R3 + ((nt * 4 + ks) & 15) * 4, 4)}, {ar(ACT(T, ks * 2 + tt), 4)}, {vr(ACC(nt, tt), 4)}'
                for nt in range(8) for tt in range(2) for ks in range(4)]
    lin.add(('vmwait', ['L0']))
    lin.add('s_barrier')
    lin.run(G.only(0, lambda kk, kind, g: kk < 0))
    flush(k, lin)
    k('s_mov_b32 s67, 0\ns_mov_b32 s68, 4096\ns_mov_b32 s69, 32768')
    stamp(k, 1)
    body = []
    for T in range(4):
        body += G.emit(mfs(T), T)
    st = steady(body)
    k('L_k3:')
    k('\n'.join(st.out))
    k('s_sub_u32 s42, s42, 1\ns_cmp_lg_u32 s42, 0\ns_cbranch_scc1 L_k3')
    stamp(k, 2)
    k(f"""
    s_lshl_b32 s48, s47, 15
    s_lshl_b32 s49, s3, 13
    s_add_u32 s48, s48, s49                 ; tile*32768 + w*8192
    s_cmp_eq_u32 s34, 0
    s_mov_b32 s49, {S_OFF}
    s_mov_b32 s50, {G_OFF}
    s_cselect_b32 s49, s49, {G_OFF}
    s_cselect_b32 s50, s50, {S_OFF}
    s_add_u32 s49, s49, s48
    s_add_u32 s50, s50, s48
    """)
    srd_off(k, 12, 's60', 's61', 's49', 8192)
    srd_off(k, 16, 's60', 's61', 's50', 8192)
    k(f's_lshl_b32 s48, s47, 7\ns_add_u32 s48, s48, {F_OFF}')
    srd_off(k, 20, 's60', 's61', 's48', 128)
    k('s_lshl_b32 s48, s35, 16\ns_lshl_b32 s49, s33, 8\ns_add_u32 s48, s48, s49')
    srd_off(k, 24, 's52', 's53', 's48', 65536)
    srd_off(k, 28, 's58', 's59', 's48', 65536)
    k('s_sub_u32 s26, s26, s49\ns_sub_u32 s30, s30, s49')
    XR, PK, OT = 100, 132, 164
    xo = lambda q: f'{"s69" if q & 1 else "0"} offen offset:{(q >> 1) * 64}'
    k('s_waitcnt vmcnt(0) lgkmcnt(0)')
    for q in range(8):
        k(f'buffer_load_dwordx4 {vr(XR + 4 * q, 4)}, v{VX}, s[24:27], {xo(q)}')
    for i in range(32):
        k(f'v_cvt_pk_bf16_f32 v{PK + i}, v{2 * i}, v{2 * i + 1}')
    k('s_cmp_eq_u32 s34, 0\ns_cbranch_scc1 L_k3_oproj')
    k(f's_mov_b32 s48, {f32(-math.log2(math.e))}')
    for i in range(32):
        k(f'v_lshlrev_b32 v{2 * i}, 16, v{PK + i}\nv_and_b32 v{2 * i + 1}, 0xffff0000, v{PK + i}')
    for c in range(0, 64, 16):
        for i in range(16):
            k(f'v_mul_f32 v{OT + i}, s48, v{c + i}')
        for i in range(16):
            k(f'v_exp_f32 v{OT + i}, v{OT + i}')
        for i in range(16):
            k(f'v_add_f32 v{OT + i}, 1.0, v{OT + i}')
        for i in range(16):
            k(f'v_rcp_f32 v{OT + i}, v{OT + i}')
        for i in range(16):
            k(f'v_mul_f32 v{c + i}, v{c + i}, v{OT + i}')
        for i in range(8):
            k(f'v_cvt_pk_bf16_f32 v{PK + c // 2 + i}, v{c + 2 * i}, v{c + 2 * i + 1}')
    k('L_k3_publish:')
    for q in range(8):
        k(f'buffer_store_dwordx4 {vr(PK + 4 * q, 4)}, v{VLN3}, s[12:15], s{67 + (q >> 2)} offen offset:{(q & 3) * 1024} sc0 sc1')
    k(f"""
    s_waitcnt vmcnt(0)
    s_barrier
    s_cmp_lg_u32 s3, 0
    s_cbranch_scc1 L_k3_pub_wait
    v_mov_b32 v{T0}, 1
    s_mov_b64 exec, 1
    buffer_atomic_add v{T0}, v{VZ}, s[20:23], 0 offen sc0 sc1
    s_waitcnt vmcnt(0)
    ds_write_b32 v{VZ}, v{T0}
    s_mov_b64 exec, -1
    s_waitcnt lgkmcnt(0)
    L_k3_pub_wait:
    s_barrier
    ds_read_b32 v{T0}, v{VZ}
    s_waitcnt lgkmcnt(0)
    v_readfirstlane_b32 s48, v{T0}
    s_nop 1
    s_cmp_eq_u32 s48, 0
    s_cbranch_scc1 L_k3_end
    s_branch L_k3_finish
    L_k3_oproj:
    s_mov_b32 s49, 4096
    s_cmp_lg_u32 s3, 0
    s_cbranch_scc1 L_k3_poll_done
    L_k3_poll:
    buffer_load_dword v{T0}, v{VZ}, s[20:23], 0 offen sc0 sc1
    s_waitcnt vmcnt(0)
    v_readfirstlane_b32 s48, v{T0}
    s_nop 1
    s_cmp_lg_u32 s48, 0
    s_cbranch_scc1 L_k3_poll_end
    s_sleep 4
    s_sub_u32 s49, s49, 1
    s_cmp_lg_u32 s49, 0
    s_cbranch_scc1 L_k3_poll
    L_k3_poll_end:
    ds_write_b32 v{VZ}, v{T0} offset:64
    s_waitcnt lgkmcnt(0)
    L_k3_poll_done:
    s_barrier
    ds_read_b32 v{T0}, v{VZ} offset:64
    s_waitcnt lgkmcnt(0)
    v_readfirstlane_b32 s48, v{T0}
    s_nop 1
    s_cmp_eq_u32 s48, 0
    s_cbranch_scc1 L_k3_publish
    L_k3_finish:
    """)
    for q in range(8):
        k(f'buffer_load_dwordx4 {vr(OT + 4 * q, 4)}, v{VLN3}, s[16:19], s{67 + (q >> 2)} offen offset:{(q & 3) * 1024} sc0 sc1')
    for i in range(32):
        k(f'v_lshlrev_b32 v{2 * i}, 16, v{PK + i}\nv_and_b32 v{2 * i + 1}, 0xffff0000, v{PK + i}')
    for q in range(8):
        k('s_waitcnt vmcnt(7)')
        o = OT + 4 * q
        for i in range(4):
            j = 4 * q + i
            k(f"""v_lshlrev_b32 v{T0}, 16, v{OT + j}
            v_and_b32 v{T1}, 0xffff0000, v{OT + j}
            v_mul_f32 v{T0}, v{T0}, v{2 * j}
            v_mul_f32 v{T1}, v{T1}, v{2 * j + 1}
            v_cvt_pk_bf16_f32 v{OT + j}, v{T0}, v{T1}""")
        k(f"""s_nop 0
        v_permlane32_swap_b32 v{o}, v{o + 2}
        v_permlane32_swap_b32 v{o + 1}, v{o + 3}
        s_nop 0
        v_permlane16_swap_b32 v{o}, v{o + 2}
        v_permlane16_swap_b32 v{o + 1}, v{o + 3}""")
        for i in range(4):
            j = 4 * q + i
            k(f"""v_lshlrev_b32 v{T2}, 16, v{XR + j}
            v_and_b32 v{T3}, 0xffff0000, v{XR + j}
            v_lshlrev_b32 v{T0}, 16, v{OT + j}
            v_and_b32 v{T1}, 0xffff0000, v{OT + j}
            v_add_f32 v{T0}, v{T0}, v{T2}
            v_add_f32 v{T1}, v{T1}, v{T3}
            v_cvt_pk_bf16_f32 v{OT + j}, v{T0}, v{T1}""")
        k(f'buffer_store_dwordx4 {vr(o, 4)}, v{VX}, s[28:31], {xo(q)}')
    if OPT['stamp']:
        stamp(k, 3)
        stamp_out(k, 'L_k3_end', 's62', 's63')
    k('L_k3_end:\ns_endpgm')
    rings = {'W': (4, lambda n: (n * 32768, (n + 1) * 32768))}
    pol = [{}, {'L_k3_oproj': [1]}, {'L_k3_oproj': [1], 'L_k3_publish': [1]},
           {'L_k3_oproj': [1], 'L_k3_poll_done': [1]}, {'L_k3_pub_wait': [1]}]
    return k, k.check(pol, rings=rings)


def main():
    out = 'cdna_kernels/' + NAME + '.s'
    for a in sys.argv[1:]:
        if '=' in a:
            kk, v = a.split('=')
            assert kk in OPT, kk
            OPT[kk] = int(v)
        else:
            out = a
    ref = open('cdna_kernels/' + NAME + '.s.ref').read()
    header = '\n'.join(l for l in ref.split('\n')[:12])
    k1 = gen_ln()
    p = k1.check([{}, {'L_ln_noflag': [1]}])
    k2, p2 = gen_k2()
    k3, p3 = gen_k3()
    for x in p + p2 + p3:
        print('PROBLEM', x)
    ks = [k1, k2, k3]
    ls = [('ln_kernel', 256, 512, 0), ('att_kernel', 256, 256, 163840), ('fin_kernel', 256, 256, 131072)]
    s = build_file(header, ks, ls)
    open(out, 'w').write(s)
    for k in ks:
        print(k.name, 'instrs', sum(1 for t, _ in k.lines if t == 'I'), 'regs', k.max_regs(),
              'autowaits', sum(1 for t, v in k.lines if t == 'I' and '; auto' in v.text))


if __name__ == '__main__':
    main()
```

```python
import math
import struct
import sys

sys.path.insert(0, 'work')
from asmlib import *

NAME = 'recurrent_scan__mha_block_cached__dense_activation_relu__prompt'
XN_OFF, H_OFF, O_OFF, G_OFF, S_OFF, F_OFF = 0, 0x400000, 0x1400000, 0x2400000, 0x2800000, 0x3000000
WP_OFF = 0x3800000
MF = 'v_mfma_f32_16x16x32_bf16'
OPT = dict(dbgtest=0, rp=1, p1pf=0, k1w=0, k1pos=1, span=0, dumpq=0, empty=0, warm=1, stamp=0, x0=56, look3=2, msum=1, la=14, nodma=0, nolds=0, noexp=0, nocvt=0, nobar=0)


def f32(x):
    return '0x%08x' % struct.unpack('<I', struct.pack('<f', x))[0]


def vr(b, n=1):
    return f'v{b}' if n == 1 else f'v[{b}:{b + n - 1}]'


def ar(b, n=1):
    return f'a{b}' if n == 1 else f'a[{b}:{b + n - 1}]'


def srd(k, d, lo, hi, nbytes):
    k(f"""s_mov_b32 s{d}, {lo}
    s_mov_b32 s{d + 1}, {hi}
    s_mov_b32 s{d + 2}, {nbytes}
    s_mov_b32 s{d + 3}, 0x20000""")


def srd_off(k, d, lo, hi, off, nbytes):
    k(f"""s_add_u32 s{d}, {lo}, {off}
    s_addc_u32 s{d + 1}, {hi}, 0
    s_mov_b32 s{d + 2}, {nbytes}
    s_mov_b32 s{d + 3}, 0x20000""")


def weave(mfmas, fill):
    out = []
    for g, m in enumerate(mfmas):
        out += fill.get(('pre', g), [])
        out.append(m)
        out += fill.get(g, [])
    return out


def stamp(k, idx, sreg=92, last=False):
    if not OPT['stamp']:
        return
    k(f"""s_memtime s[{sreg}:{sreg + 1}]
    s_memrealtime s[{sreg + 2}:{sreg + 3}]
    s_waitcnt lgkmcnt(0)
    s_mov_b32 s{76 + idx}, s{sreg}
    s_mov_b32 s{84 + idx}, s{sreg + 2}""")


def span_begin(k):
    if OPT['span']:
        k('s_memrealtime s[100:101]')


def span_end(k, v0, idx):
    if not OPT['span']:
        return
    k(f'''s_load_dwordx2 s[72:73], s[0:1], 80
    s_waitcnt {'vmcnt(0) ' if idx else ''}lgkmcnt(0)
    s_mov_b32 s76, s100
    s_memrealtime s[100:101]
    s_add_u32 s72, s72, {0x5000000 + idx * 65536}
    s_addc_u32 s73, s73, 0
    s_mov_b32 s74, 65536
    s_mov_b32 s75, 0x20000
    s_mov_b64 exec, 1
    s_lshl_b32 s77, s2, 3
    s_add_u32 s77, s77, s3
    s_lshl_b32 s77, s77, 3
    s_waitcnt lgkmcnt(0)
    v_mov_b32 v{v0}, 0
    v_mov_b32 v{v0 + 2}, s76
    v_mov_b32 v{v0 + 3}, s100
    buffer_store_dwordx2 v[{v0 + 2}:{v0 + 3}], v{v0}, s[72:75], s77 offen''')


def stamp_out(k, endlabel, lo, hi):
    k(f"""s_cmp_lg_u32 s3, 0
    s_cbranch_scc1 {endlabel}
    s_cmp_ge_u32 s2, 4
    s_cbranch_scc1 {endlabel}""")
    srd(k, 72, lo, hi, 256)
    k('s_lshl_b32 s48, s2, 6')
    for i in range(16):
        k(f'v_mov_b32 v1, s{76 + i}\nv_mov_b32 v2, {4 * i}\nbuffer_store_dword v1, v2, s[72:75], s48 offen')


def gen_ln():
    k = Kernel('ln_kernel')
    span_begin(k)
    k("""
    s_cmp_ge_u32 s2, 256
    s_cbranch_scc1 L_ln_end
    s_load_dwordx2 s[4:5], s[0:1], 0
    s_load_dwordx2 s[6:7], s[0:1], 80
    s_load_dwordx2 s[26:27], s[0:1], 24
    s_load_dwordx2 s[28:29], s[0:1], 48
    v_lshrrev_b32 v1, 6, v0
    v_and_b32 v2, 63, v0
    s_nop 0
    v_readfirstlane_b32 s3, v1
    s_lshl_b32 s16, s2, 3
    s_nop 1
    s_add_u32 s16, s16, s3            ; token T
    s_lshl_b32 s17, s16, 11
    v_lshlrev_b32 v3, 4, v2           ; lane*16
    s_waitcnt lgkmcnt(0)
    """)
    srd(k, 8, 's4', 's5', 0x400000)
    srd(k, 12, 's6', 's7', 0x400000)
    k("""
    buffer_load_dwordx4 v[4:7], v3, s[8:11], s17 offen
    buffer_load_dwordx4 v[8:11], v3, s[8:11], s17 offen offset:1024
    s_lshr_b32 s18, s16, 5
    s_lshl_b32 s18, s18, 16
    s_and_b32 s19, s16, 15
    s_lshl_b32 s19, s19, 4
    s_add_u32 s18, s18, s19
    s_and_b32 s19, s16, 16
    s_lshl_b32 s19, s19, 6
    s_add_u32 s18, s18, s19
    s_add_u32 s19, s18, 32768         ; chunk 64..127
    v_lshrrev_b32 v40, 2, v2
    v_lshlrev_b32 v40, 11, v40
    v_and_b32 v41, 3, v2
    v_lshl_add_u32 v40, v41, 8, v40   ; (c>>2)*2048 + (c&3)*256
    """)
    k(f"""
    s_cmp_ge_u32 s2, 128
    s_cbranch_scc1 L_ln_noflag
    s_cmp_lg_u32 s3, 0
    s_cbranch_scc1 L_ln_noflag
    """)
    srd_off(k, 20, 's6', 's7', F_OFF, 16384)
    k("""
    s_lshl_b32 s24, s2, 7
    v_and_b32 v41, 31, v2
    v_lshlrev_b32 v41, 2, v41
    v_mov_b32 v42, 0
    buffer_store_dword v42, v41, s[20:23], s24 offen
    L_ln_noflag:
    """)

    def warm():
        n = OPT['k1w']
        k(f'''s_lshl_b32 s30, s2, 2
        s_and_b32 s31, s3, 3
        s_add_u32 s30, s30, s31          ; 0..1023
        s_cmp_lt_u32 s3, 4
        s_cselect_b32 s32, s26, s28
        s_cselect_b32 s33, s27, s29
        s_mov_b32 s34, {896 * n}
        s_cselect_b32 s34, {1024 * n}, s34
        s_mul_i32 s30, s30, s34
        s_add_u32 s32, s32, s30
        s_addc_u32 s33, s33, 0
        s_mov_b32 s35, 0x20000
        v_lshlrev_b32 v43, 7, v2
        buffer_load_dword v60, v43, s[32:35], 0 offen ;#PF''')
    if OPT['k1w'] and OPT['k1pos'] == 0:
        warm()
        k('s_waitcnt vmcnt(1)')
    else:
        k('s_waitcnt vmcnt(0)')
    if OPT['k1w'] and OPT['k1pos'] == 1:
        warm()
    for i in range(8):
        k(f'v_lshlrev_b32 v{12 + 2 * i}, 16, v{4 + i}')
        k(f'v_and_b32 v{13 + 2 * i}, 0xffff0000, v{4 + i}')

    def tree(dst, src, n):
        cur = list(range(src, src + n))
        t = dst
        while len(cur) > 1:
            nxt = []
            for i in range(0, len(cur), 2):
                k(f'v_add_f32 v{t}, v{cur[i]}, v{cur[i + 1]}')
                nxt.append(t)
                t += 1
            cur = nxt
        return cur[0]

    def wave_sum(r, tmp):
        for mode in ('quad_perm:[1,0,3,2]', 'quad_perm:[2,3,0,1]', 'row_half_mirror', 'row_mirror'):
            k('s_nop 1')
            k(f'v_add_f32_dpp v{r}, v{r}, v{r} {mode} row_mask:0xf bank_mask:0xf')
        for sw in ('v_permlane16_swap_b32', 'v_permlane32_swap_b32'):
            k(f'v_mov_b32 v{tmp}, v{r}')
            k('s_nop 1')
            k(f'{sw} v{r}, v{tmp}')
            k(f'v_add_f32 v{r}, v{r}, v{tmp}')
    r = tree(44, 12, 16)
    wave_sum(r, 43)
    k(f'v_mul_f32 v28, {f32(1 / 1024)}, v{r}')
    for i in range(16):
        k(f'v_sub_f32 v{44 + i}, v{12 + i}, v28')
    k('v_mul_f32 v30, v44, v44')
    k('v_mul_f32 v31, v45, v45')
    for i in range(2, 16):
        k(f'v_fmac_f32 v{30 + (i & 1)}, v{44 + i}, v{44 + i}')
    k('v_add_f32 v30, v30, v31')
    wave_sum(30, 43)
    k(f"""
    v_mul_f32 v30, {f32(1 / 1024)}, v30
    v_cvt_pk_bf16_f32 v29, v28, v30
    v_lshlrev_b32 v28, 16, v29             ; m_bf
    v_and_b32 v30, 0xffff0000, v29         ; var_bf
    v_add_f32 v30, {f32(1e-5)}, v30
    v_cvt_pk_bf16_f32 v30, v30, v30
    v_and_b32 v30, 0xffff0000, v30
    v_sqrt_f32 v30, v30
    s_nop 0
    v_cvt_pk_bf16_f32 v30, v30, v30
    v_and_b32 v30, 0xffff0000, v30
    v_rcp_f32 v30, v30
    """)
    for i in range(16):
        k(f'v_sub_f32 v{12 + i}, v{12 + i}, v28')
    for i in range(8):
        k(f'v_cvt_pk_bf16_f32 v{4 + i}, v{12 + 2 * i}, v{13 + 2 * i}')
    for i in range(8):
        k(f'v_lshlrev_b32 v{12 + 2 * i}, 16, v{4 + i}')
        k(f'v_and_b32 v{13 + 2 * i}, 0xffff0000, v{4 + i}')
    for i in range(16):
        k(f'v_mul_f32 v{12 + i}, v{12 + i}, v30')
    for i in range(8):
        k(f'v_cvt_pk_bf16_f32 v{4 + i}, v{12 + 2 * i}, v{13 + 2 * i}')
    k("""
    buffer_store_dwordx4 v[4:7], v40, s[12:15], s18 offen
    buffer_store_dwordx4 v[8:11], v40, s[12:15], s19 offen
    """)
    if OPT['dbgtest']:
        k('''s_or_b32 s30, s2, s3
        s_cmp_lg_u32 s30, 0
        s_cbranch_scc1 L_ln_end
        s_load_dwordx2 s[32:33], s[0:1], 72
        s_waitcnt lgkmcnt(0)
        s_mov_b32 s34, 256
        s_mov_b32 s35, 0x20000
        v_mov_b32 v50, 0
        buffer_load_dword v51, v50, s[32:35], 0 offen sc0 sc1
        s_waitcnt vmcnt(0)
        v_readfirstlane_b32 s30, v51
        v_mov_b32 v51, 1
        s_nop 3
        buffer_store_dword v51, v50, s[32:35], 0 offen sc0 sc1
        s_cmp_eq_u32 s30, 0
        s_cbranch_scc1 L_ln_end
        s_mov_b32 s30, 60
        L_ln_spin:
        s_sleep 64
        s_sub_u32 s30, s30, 1
        s_cmp_lg_u32 s30, 0
        s_cbranch_scc1 L_ln_spin''')
    span_end(k, 50, 0)
    if OPT['k1w'] and OPT['k1pos'] == 2:
        k('s_mov_b64 exec, -1')
        warm()
    k('L_ln_end:\ns_endpgm')
    return k


GSLOT = 45056
ABASE = 32768
KSLOT = lambda i: 4 + ((i + 3) & 3)
VSLOT = lambda i: (i + 1) & 3
S_ = lambda b, kvt, qt: b * 64 + ((kvt >> 1) * 4 + qt) * 8 + (kvt & 1) * 4
P_ = lambda b, u, qt: b * 64 + (u * 4 + qt) * 8
NEGM = lambda qt: 128 + 4 * qt
ONES = 144
VKA = 148
VVA = 152
VKD = 160
VVD = 164
VLN = 166
VPFO = 167
VMT = 168
VL = 204
VT = 208
RPV, RPD = 250, 252
HG = lambda p, tt: (64 + 8 * (2 * p + tt)) if 2 * p + tt < 10 else (172 + 8 * (2 * p + tt - 10))
HACC = lambda nt, tt: HG(nt >> 1, tt) + 4 * (nt & 1)
PWQ, PW1, PQ0, PCQ, P10, PC1 = 2, 6, 13, 21, 29, 31
OACC = lambda dt, qt: (dt * 4 + qt) * 4
QF = lambda qt, s: 128 + (qt * 4 + s) * 4
XN = lambda b, tt, s: 128 + b * 32 + (tt * 2 + s) * 4
RING = 192
LACC = lambda qt: 224 + 4 * qt
NR1 = 11


def lane_grc(k, g, r, c, lane=0):
    k(f"""v_lshrrev_b32 v{g}, 4, v{lane}
    v_bfe_u32 v{r}, v{lane}, 2, 2
    v_and_b32 v{c}, 3, v{lane}""")


def p1_dmas(tag, wtag):
    g = []
    for j in range(4):
        g.append((['s_add_u32 m0, s40, s45'] if j == 0 else [],
                  f'buffer_load_dwordx4 v{PWQ + j}, s[8:11], s38 offen offset:{j * 1024} lds',
                  ['s_add_u32 s38, s38, 0x80000'] if j == 3 else []))
    for j in range(7):
        g.append(([f's_add_u32 m0, s40, s{46 + (j >> 2)}'] if j in (0, 4) else [],
                  f'buffer_load_dwordx4 v{PW1 + j}, s[12:15], s39 offen offset:{(j & 3) * 1024} lds',
                  ['s_add_u32 s39, s39, 0x70000', 's_mov_b32 s41, s49', 's_mov_b32 s49, s40', f's_add_u32 s40, s40, {GSLOT}',
                   f's_cmp_lt_u32 s40, {3 * GSLOT}', 's_cselect_b32 s40, s40, 0'] if j == 6 else []))
    return g


def xn_loads(b):
    g = []
    for t in range(2):
        for s in range(2):
            for sub in range(2):
                g.append(([], f'buffer_load_dwordx4 {ar(XN(b, 2 * t + sub, s), 4)}, v{VLN}, s[4:7], s{36 + t} offen '
                              f'offset:{s * 2048 + sub * 1024} ;#X',
                          [f's_add_u32 s{36 + t}, s{36 + t}, 4096'] if s and sub else []))
    return g


def kdma(i, tag):
    return [([f's_add_u32 m0, s45, {ABASE + KSLOT(i) * 16384}'] if j == 0 else [],
             f'buffer_load_dwordx4 v{VKD + j}, s[16:19], s43 offen offset:{j * 1024} lds',
             ['s_add_u32 s43, s43, 16384'] if j == 3 else []) for j in range(4)]


def vdma(i, tag):
    return [([f's_add_u32 m0, s45, {ABASE + VSLOT(i) * 16384}'] if j == 0 else [],
             f'buffer_load_dwordx4 v{VVD + (j & 1)}, s[20:23], s44 offen offset:{j * 1024} lds',
             ['s_add_u32 s44, s44, 16384'] if j == 3 else []) for j in range(4)]


def flat(vm):
    out = []
    for pre, v, post in vm:
        out += pre + (['s_nop 0'] if pre else []) + [v] + post
    return out


def sched_vmem(G, fns, gaps):
    prev = -10 ** 6
    for n, (fn, g) in enumerate(zip(fns, gaps)):
        while not G.fits(g, 8):
            g += 1
        pre, _, post = fn(0)
        G.put(g, lambda i, fn=fn: [fn(i)[1]], 8, kind='vm')
        for j in range(len(pre)):
            G.place(max(prev + 1, g - 3, 0), g - 1, g - 1, lambda i, fn=fn, j=j: [fn(i)[0][j]], 4, kind='vm', pack=True)
        lo = g + 1
        nxt = gaps[n + 1] if n + 1 < len(gaps) else g + 8
        for j in range(len(post)):
            lo = G.place(lo, g + 6, lo, lambda i, fn=fn, j=j: [fn(i)[2][j]], 4, kind='vm')
        prev = g


P1_SEQ = ['Q0', 'F0', 'Q1', 'F1', 'Q2', 'F2', 'Q3', 'F3', 'Q4', 'F4', 'Q5', 'F5', 'F6', 'Q6', 'Q7']
P1_GB = 103


def p1_frags():
    fr = []
    for gi, name in enumerate(P1_SEQ):
        g0, x = 8 * gi, int(name[1:])
        if name[0] == 'Q':
            for s in range(2):
                fr.append(('Q', x, s, g0, g0 + 6 + s))
        else:
            for e in range(2):
                for s in range(2):
                    fr.append(('F', 2 * x + e, s, g0, g0 + 4 * e + 2 + s))
    return fr


def p1_mfmas(b):
    mf, n = [], 0
    for name in P1_SEQ:
        x = int(name[1:])
        if name[0] == 'Q':
            for tt in range(4):
                for s in range(2):
                    a = ar(RING + ((n + s) % NR1) * 4, 4)
                    mf.append(f'{MF} {ar(OACC(x, tt), 4)}, {a}, {ar(XN(b, tt, s), 4)}, {ar(OACC(x, tt), 4)}')
            n += 2
        else:
            for e in range(2):
                for tt in range(2):
                    for s in range(2):
                        a = ar(RING + ((n + 2 * e + s) % NR1) * 4, 4)
                        h = vr(HACC(2 * x + e, tt), 4)
                        mf.append(f'{MF} {h}, {a}, {ar(XN(b, tt, s), 4)}, {h}')
            n += 4
    return mf


def p1_read(n, hh):
    kind, x, s, _, _ = p1_frags()[n]
    d = RING + (n % NR1) * 4 + 2 * hh
    if kind == 'Q':
        return f'ds_read_b64_tr_b16 {ar(d, 2)}, v{PCQ + x} offset:{s * 8192 + hh * 1024} ;@R G 0'
    return f'ds_read_b64_tr_b16 {ar(d, 2)}, v{PC1 + (x & 1)} offset:{(x >> 1) * 64 + (s * 32 + hh * 4) * 448} ;@R G 0'


def p1_sched(mode):
    G = Gaps(120)
    fr = p1_frags()
    for gi in range(len(P1_SEQ)):
        regs = [ar(RING + (n % NR1) * 4, 4) for n, f in enumerate(fr) if f[3] == 8 * gi]
        G.put(8 * gi - 1, lambda i, regs=regs: [('need', regs)], 4, prio=9, kind='need')
    G.put(P1_GB, lambda i: [('vmwait', [f'G{(i + 1) & 1}'], ' lgkmcnt(0)'), 's_barrier ;@ROT G'], 8, kind='bar')
    G.put(118, lambda i: [('vmwait', ['X'])], 4, prio=8, kind='bar')
    upd = {}
    g = P1_GB + 1
    if mode == 't14':
        G.put(90, lambda i: ['s_mov_b32 s41, s49'], 4, kind='bar')
    order = [('Q', 0), ('F', 0), ('F', 1)] + [('Q', d) for d in range(1, 8)]
    for kd, x in order:
        ins = f'v_add_u32 v{PCQ + x}, s41, v{PQ0 + x}' if kd == 'Q' else f'v_add_u32 v{PC1 + x}, s41, v{P10 + x}'
        g = G.place(g, 119, g, lambda i, ins=ins: [ins], 4, kind='bar', prio=1)
        upd[(kd, x)] = g
    if mode == 'loop':
        fns = [lambda i, j=j: xn_loads((i + 1) & 1)[j] for j in range(8)] + \
              [lambda i, j=j: p1_dmas(f'G{i & 1}', '+2')[j] for j in range(11)]
        gaps = [2 + 5 * j for j in range(8)] + [42 + (11 * j) // 2 for j in range(11)]
    elif mode == 't14':
        fns = [lambda i, j=j: xn_loads(1)[j] for j in range(8)] + \
              [lambda i, j=j: (vdma(0, 'V0') + vdma(1, 'V1'))[j] for j in range(8)]
        gaps = [2 + 6 * j for j in range(8)] + [50 + 6 * j for j in range(8)]
    else:
        fns = [lambda i, j=j: (kdma(1, 'K1') + kdma(2, 'K2') + kdma(3, 'K3'))[j] for j in range(12)]
        gaps = [2 + 9 * j for j in range(12)]
    sched_vmem(G, fns, gaps)
    prev = -10 ** 6
    for n, (kd, x, s, fu, lu) in enumerate(fr):
        pl = fr[n - NR1][4] - (120 if n < NR1 else 0)
        lo = max(pl + 1, prev, upd[(kd, x if kd == 'Q' else x & 1)] - 120 + 1)
        hi = min(fu - 6, P1_GB - 3)
        assert lo <= hi, (n, lo, hi)
        for hh in range(2):
            prev = G.place(lo, hi, fu - OPT['la'], lambda i, n=n, hh=hh: [p1_read(n, hh)], 4, kind='rd', pack=True)
            lo = prev
    return G


def k_read(i, n):
    kvt, s = divmod(n, 4)
    return f'ds_read_b128 {ar(RING + (n & 7) * 4, 4)}, v{VKA + s} offset:{(KSLOT(i) - 4) * 16384 + kvt * 4096} ;@R A {KSLOT(i)}'


def v_read(i, n, hh):
    dt, u = divmod(n - 16, 2)
    return (f'ds_read_b64_tr_b16 {ar(RING + (n & 7) * 4 + 2 * hh, 2)}, v{VVA + dt} '
            f'offset:{VSLOT(i) * 16384 + u * 8192 + hh * 4096} ;@R A {VSLOT(i)}')


def elem_reg(b, e):
    kvt, qt, r = e >> 4, (e >> 2) & 3, e & 3
    return S_(b, kvt, qt) + r


def sm_exp(b, e):
    r = elem_reg(b, e)
    return f'v_exp_f32 v{r}, v{r}'


def sm_add(b, e):
    qt = (e >> 2) & 3
    return f'v_add_f32 v{VL + qt}, v{VL + qt}, v{elem_reg(b, e)}'


def sm_cvt(b, e):
    kvt, qt, r = e >> 4, (e >> 2) & 3, e & 3
    src = elem_reg(b, e)
    return f'v_cvt_pk_bf16_f32 v{P_(b, kvt >> 1, qt) + 2 * (kvt & 1) + (r >> 1)}, v{src - 1}, v{src}'


def qk_mfmas(bS, c0=None):
    mf = []
    for kvt in range(4):
        for qt in range(4):
            for s in range(4):
                d = vr(S_(bS, kvt, qt), 4)
                c = d if s else (c0 if c0 is not None else vr(NEGM(qt), 4))
                mf.append(f'{MF} {d}, {ar(RING + ((kvt * 4 + s) & 7) * 4, 4)}, {ar(QF(qt, s), 4)}, {c}')
    return mf


def pv_mfmas(bS):
    mf = []
    for dt in range(8):
        for qt in range(4):
            for u in range(2):
                o = ar(OACC(dt, qt), 4)
                mf.append(f'{MF} {o}, {ar(RING + ((16 + dt * 2 + u) & 7) * 4, 4)}, {vr(P_(bS, u, qt), 4)}, {o}')
        if OPT['msum']:
            qt, u = dt >> 1, dt & 1
            mf.append(f'{MF} {ar(LACC(qt), 4)}, {vr(ONES, 4)}, {vr(P_(bS, u, qt), 4)}, {ar(LACC(qt), 4)}')
    return mf


def rp_item(i):
    if i & 1 == 0:
        return ([], f'buffer_load_dwordx4 {vr(RPD, 4)}, v{RPV + ((i >> 1) & 1)}, s[68:71], s65 offen ;#RP', ['s_add_u32 s65, s65, 8192'])
    return ([], f'buffer_store_dwordx4 {vr(RPD, 4)}, v{VLN}, s[96:99], s34 offen ;#RS', ['s_add_u32 s34, s34, 1024'])


def att_sched():
    PW = 9 if OPT['msum'] else 8
    NG = 64 + 8 * PW
    G = Gaps(NG)
    fu = [16 * (n >> 2) for n in range(16)] + [64 + PW * (n >> 1) for n in range(16)]
    lu = [16 * (n >> 2) + 12 + (n & 3) for n in range(16)] + [64 + PW * (n >> 1) + 6 + (n & 1) for n in range(16)]
    for g0 in sorted(set(fu)):
        regs = [ar(RING + (n & 7) * 4, 4) for n in range(32) if fu[n] == g0]
        G.put(g0 - 1, lambda i, regs=regs: [('need', regs)], 4, prio=9, kind='need')
    GB = lu[24] - 3
    G.put(GB, lambda i: [('vmwait', [f'V{(i + 1) & 3}', f'K{(i + 2) & 3}']), 's_barrier'], 8, kind='bar')
    fns = [lambda i, j=j: (vdma(i + 2, f'V{(i + 2) & 3}') + kdma(i + 4, f'K{i & 3}'))[j] for j in range(8)]
    gaps = [4 + (NG * j) // 8 for j in range(8)]
    if OPT['rp']:
        fns.append(lambda i: rp_item(i))
        gaps.append(NG - 6)
    elif OPT['warm']:
        fns.append(lambda i: ([], f'buffer_load_dword v{VT + 40}, v{VPFO}, s[68:71], s65 offen ;#PF', ['s_add_u32 s65, s65, 2048'])
                   if (i & 3) == 1 else ([], 's_nop 0', ['s_nop 0']))
        gaps.append(NG - 6)
    sched_vmem(G, fns, gaps)
    X0 = OPT['x0']
    eg = []
    prev = -1
    for e in range(64):
        ready = 16 * (e >> 4) + 4 * ((e >> 2) & 3) + 3 + 5
        prev = G.place(max(ready, prev + 1), NG + 58, X0 + (e * NG) // 64, lambda i, e=e: [sm_exp((i + 1) & 1, e)], 8, kind='exp')
        eg.append(prev)
    prev = -10 ** 6
    for n in range(32):
        pl = lu[n - 8] - (NG if n < 8 else 0)
        lo = max(pl + 1, prev)
        if n < 16:
            lo = max(lo, GB + 1 - NG)
            prev = G.place(lo, fu[n] - 6, fu[n] - OPT['la'], lambda i, n=n: [k_read(i + 1, n)], 4, kind='rd', pack=True)
        else:
            for hh in range(2):
                prev = G.place(lo, fu[n] - 6, fu[n] - OPT['la'], lambda i, n=n, hh=hh: [v_read(i, n, hh)], 4, kind='rd', pack=True)
                lo = prev
    prev = -1
    for e in range(1, 64, 2):
        prev = G.place(max(eg[e] + 1, prev), NG + 61, eg[e] + 1, lambda i, e=e: [sm_cvt((i + 1) & 1, e)], 4, kind='cvt', pack=True, prio=2)
        if not OPT['msum']:
            for x in (e - 1, e):
                G.place(eg[e] + 1, prev, eg[e] + 1, lambda i, x=x: [sm_add((i + 1) & 1, x)], 4, kind='cvt', prio=1)
    return G, NG


def drop(items):
    d = []
    if OPT['nodma']:
        d += ['buffer_load', 's_add_u32']
    if OPT['nobar']:
        d += ['s_barrier']
    if OPT['nolds']:
        d += ['ds_read']
    if OPT['noexp']:
        d += ['v_exp']
    if OPT['nocvt']:
        d += ['v_cvt']
    return [x for x in items if x != 's_nop 0' and (isinstance(x, tuple) or not any(x.startswith(p) for p in d))]


def xgroup(k, op, regs, tmp):
    for sw in ('v_permlane32_swap_b32', 'v_permlane16_swap_b32'):
        for j, r in enumerate(regs):
            k(f'v_mov_b32 v{tmp + j}, v{r}')
        k('s_nop 1')
        for j, r in enumerate(regs):
            k(f'{sw} v{r}, v{tmp + j}')
        for j, r in enumerate(regs):
            k(f'{op} v{r}, v{r}, v{tmp + j}')


def flush(k, lin):
    k('\n'.join(lin.out))
    lin.out = []


def gen_k2():
    k = Kernel('att_kernel')
    span_begin(k)
    C = math.log2(math.e) / math.sqrt(128.0)
    k("""
    s_cmp_ge_u32 s2, 256
    s_cbranch_scc1 L_k2_end
    s_load_dwordx4 s[52:55], s[0:1], 8      ; K, V
    s_load_dwordx2 s[56:57], s[0:1], 24     ; wq
    s_load_dwordx2 s[58:59], s[0:1], 48     ; w1
    s_load_dwordx2 s[60:61], s[0:1], 80     ; ws
    s_load_dwordx2 s[62:63], s[0:1], 72     ; dbg
    s_load_dwordx2 s[96:97], s[0:1], 32     ; wo
    s_load_dwordx2 s[98:99], s[0:1], 56     ; w2
    v_lshrrev_b32 v1, 6, v0
    v_and_b32 v0, 63, v0
    s_and_b32 s32, s2, 7
    v_readfirstlane_b32 s3, v1
    s_lshl_b32 s32, s32, 2
    s_lshr_b32 s33, s2, 3
    s_and_b32 s34, s33, 3
    s_add_u32 s32, s32, s34                 ; head
    s_lshr_b32 s33, s33, 2                  ; q block
    s_and_b32 s34, s32, 1                   ; parity
    s_lshl_b32 s45, s3, 12                  ; w*4096
    s_mul_i32 s46, s3, 7168
    s_add_u32 s46, s46, 16384
    s_add_u32 s47, s46, 4096
    s_lshl_b32 s35, s33, 3
    s_lshl_b32 s50, s3, 1
    s_add_u32 s35, s35, s50
    s_add_u32 s50, s35, s34
    s_xor_b32 s51, s34, 1
    s_add_u32 s51, s35, s51
    s_lshl_b32 s36, s50, 16
    s_lshl_b32 s37, s51, 16
    s_mov_b32 s38, 0
    s_mov_b32 s39, 0
    s_mov_b32 s40, 0
    s_mov_b32 s41, 0
    s_mov_b32 s43, 0
    s_mov_b32 s44, 0
    s_mov_b32 s64, 0
    """)
    stamp(k, 0)
    T0, T1, T2, T3, T4, T5 = range(VT, VT + 6)
    k(f"""
    v_lshlrev_b32 v{VLN}, 4, v0
    v_lshrrev_b32 v{T0}, 4, v0              ; l>>4
    v_and_b32 v{T1}, 15, v0                 ; l&15
    s_lshl_b32 s48, s3, 4
    v_add_u32 v{T3}, s48, v{T0}             ; row = 16w + (l>>4)
    """)
    for j in range(4):
        k(f"""v_or_b32 v{T2}, {(j >> 1) << 2}, v{T0}
        v_lshlrev_b32 v{T2}, 1, v{T2}
        v_xor_b32 v{T2}, v{T2}, v{T1}
        v_lshlrev_b32 v{T2}, 4, v{T2}
        v_lshl_add_u32 v{PWQ + j}, v{T3}, 13, v{T2}""")
        if j:
            k(f'v_add_u32 v{PWQ + j}, {j * 31744}, v{PWQ + j}')
    k('s_mul_i32 s48, s3, 114688')
    for j in range(7):
        k(f"""v_add_u32 v{T2}, {64 * j}, v0
        v_mul_u32_u24 v{T4}, 2341, v{T2}
        v_lshrrev_b32 v{T4}, 16, v{T4}          ; row = x/28
        v_mul_u32_u24 v{T5}, 28, v{T4}
        v_sub_u32 v{T2}, v{T2}, v{T5}           ; pos
        v_lshrrev_b32 v{T5}, 2, v{T4}
        v_and_b32 v{T5}, 2, v{T5}
        v_xor_b32 v{T2}, v{T2}, v{T5}
        v_mul_u32_u24 v{PW1 + j}, 7168, v{T4}
        v_lshl_add_u32 v{PW1 + j}, v{T2}, 4, v{PW1 + j}
        v_add_u32 v{PW1 + j}, s48, v{PW1 + j}""")
        if j & 3:
            k(f'v_subrev_u32 v{PW1 + j}, {(j & 3) * 1024}, v{PW1 + j}')
    for j in range(4):
        k(f"""v_add_u32 v{T2}, {4 * j}, v{T0}
        v_xor_b32 v{T2}, v{T2}, v{T1}
        v_lshlrev_b32 v{T2}, 4, v{T2}
        v_lshl_add_u32 v{VKD + j}, v{T3}, 8, v{T2}""")
    k('s_waitcnt lgkmcnt(0)')
    srd_off(k, 4, 's60', 's61', XN_OFF, 0x400000)
    k('s_lshl_b32 s48, s32, 8')
    srd_off(k, 8, 's56', 's57', 's48', 0)
    k('s_mov_b32 s10, 0x800000\ns_sub_u32 s10, s10, s48')
    k('s_lshr_b32 s48, s32, 1\ns_mul_i32 s48, s48, 448')
    srd_off(k, 12, 's58', 's59', 's48', 0)
    k('s_sub_u32 s14, 0x700000, s48')
    k('s_lshl_b32 s48, s32, 19')
    srd_off(k, 16, 's52', 's53', 's48', 0x80000)
    srd_off(k, 20, 's54', 's55', 's48', 0x80000)
    lin = Lin()
    lin.run(flat(p1_dmas('G0', '+0')))
    lin.run(flat(xn_loads(0)))
    lin.run(flat(p1_dmas('G1', '+1')))
    lin.run(flat(kdma(0, 'K0')))
    flush(k, lin)
    if OPT['p1pf']:
        k(f'''
        s_and_b32 s48, s2, 7
        s_cmp_lt_u32 s3, 2
        s_cselect_b32 s68, s56, s58
        s_cselect_b32 s69, s57, s59
        s_mov_b32 s70, 896
        s_cselect_b32 s70, 1024, s70
        s_mul_i32 s48, s48, s70
        s_add_u32 s68, s68, s48
        s_addc_u32 s69, s69, 0
        s_lshl_b32 s65, s70, 3
        s_lshl_b32 s70, s70, 13
        s_sub_u32 s70, s70, s48
        s_mov_b32 s71, 0x20000
        s_lshr_b32 s48, s2, 3
        s_lshl_b32 s48, s48, 1
        s_and_b32 s49, s3, 1
        s_add_u32 s48, s48, s49
        s_mul_i32 s48, s48, 7
        s_add_u32 s48, s48, 128
        v_lshrrev_b32 v{T2}, 3, v0
        v_add_u32 v{T4}, s48, v{T2}
        v_mul_lo_u32 v{T4}, v{T4}, s65
        v_and_b32 v{T5}, 7, v0
        v_lshl_add_u32 v{T4}, v{T5}, 7, v{T4}
        v_cmp_lt_u32 vcc, 6, v{T2}
        v_mov_b32 v{T2}, 0x7fffffff
        s_mul_i32 s65, s65, 448
        v_cndmask_b32 v{T4}, v{T4}, v{T2}, vcc
        ''')
        lin.add(f'buffer_load_dword v{VT + 40}, v{T4}, s[68:71], 0 offen ;#PF')
        if OPT['p1pf'] == 1:
            lin.add(f'buffer_load_dword v{VT + 40}, v{T4}, s[68:71], s65 offen ;#PF')
        flush(k, lin)
    srd_off(k, 24, 's60', 's61', H_OFF, 0xE00000)
    srd_off(k, 28, 's60', 's61', O_OFF, 0x1000000)
    for j in range(2):
        k(f"""v_add_u32 v{T2}, {4 * j}, v{T0}
        v_lshlrev_b32 v{T2}, 1, v{T2}
        v_xor_b32 v{T2}, v{T2}, v{T1}
        v_lshlrev_b32 v{T2}, 4, v{T2}
        v_lshl_add_u32 v{VVD + j}, v{T3}, 8, v{T2}""")
    for s in range(4):
        k(f"""v_add_u32 v{T2}, {4 * s}, v{T0}
        v_xor_b32 v{T2}, v{T2}, v{T1}
        v_lshlrev_b32 v{T2}, 4, v{T2}
        v_lshl_add_u32 v{VKA + s}, v{T1}, 8, v{T2}
        v_add_u32 v{VKA + s}, {ABASE + 4 * 16384}, v{VKA + s}""")
    lane_grc(k, T0, T1, T2)
    k(f"""
    v_lshlrev_b32 v{T2}, 3, v{T2}           ; c*8
    v_lshl_add_u32 v{T3}, v{T0}, 2, v{T1}   ; V row = 4g + r
    v_and_b32 v{T4}, 7, v{T3}
    v_lshl_add_u32 v{T3}, v{T3}, 8, v{T2}
    v_add_u32 v{T3}, {ABASE}, v{T3}
    """)
    for dt in range(8):
        k(f"""v_xor_b32 v{T5}, {dt}, v{T4}
        v_lshl_add_u32 v{VVA + dt}, v{T5}, 5, v{T3}""")
    k(f"""
    v_lshl_add_u32 v{T3}, v{T0}, 3, v{T1}   ; w row = 8g + r
    v_and_b32 v{T0}, 1, v{T0}               ; g&1
    v_lshl_or_b32 v{T4}, v{T0}, 2, v{T1}    ; f
    v_mul_u32_u24 v{T1}, 448, v{T3}
    v_add_u32 v{T1}, v{T1}, v{T2}
    v_add_u32 v{T1}, 16384, v{T1}
    v_lshl_add_u32 v{T3}, v{T3}, 8, v{T2}
    """)
    for dt in range(8):
        k(f"""v_xor_b32 v{T5}, {dt}, v{T4}
        v_lshl_add_u32 v{PQ0 + dt}, v{T5}, 5, v{T3}
        v_mov_b32 v{PCQ + dt}, v{PQ0 + dt}""")
    for p in range(2):
        k(f"""v_xor_b32 v{T5}, {p}, v{T0}
        v_lshl_add_u32 v{P10 + p}, v{T5}, 5, v{T1}
        v_mov_b32 v{PC1 + p}, v{P10 + p}""")
    if OPT['rp']:
        k(f'''
        v_lshrrev_b32 v{T0}, 4, v0
        v_and_b32 v{T1}, 15, v0
        s_and_b32 s49, s3, 1
        s_lshl_b32 s48, s2, 1
        s_add_u32 s48, s48, s49
        s_and_b32 s49, s48, 7            ; nb
        s_lshr_b32 s48, s48, 3
        s_cmp_lt_u32 s3, 2
        s_cselect_b32 s35, 16, 14        ; pieces
        s_cselect_b32 s68, s96, s98
        s_cselect_b32 s69, s97, s99
        s_mov_b32 s34, {WP_OFF}
        s_cselect_b32 s34, s34, {WP_OFF + 0x800000}
        s_mul_i32 s48, s48, s35
        s_lshl_b32 s65, s48, 13
        s_lshl_b32 s70, s49, 8
        s_add_u32 s65, s65, s70
        s_add_u32 s68, s68, s65
        s_addc_u32 s69, s69, 0
        s_lshl_b32 s70, s35, 13
        s_sub_u32 s70, s70, 1792
        s_mov_b32 s71, 0x20000
        s_mul_i32 s49, s49, s35
        s_lshl_b32 s49, s49, 6
        s_add_u32 s48, s48, s49
        s_lshl_b32 s48, s48, 10
        s_add_u32 s34, s34, s48
        s_add_u32 s96, s60, s34
        s_addc_u32 s97, s61, 0
        s_lshl_b32 s98, s35, 10
        s_mov_b32 s99, 0x20000
        s_mov_b32 s65, 0
        s_mov_b32 s34, 0
        ''')
        for j in range(2):
            k(f'''v_add_u32 v{T2}, {4 * j}, v{T0}
            v_lshlrev_b32 v{T2}, 1, v{T2}
            v_xor_b32 v{T2}, v{T2}, v{T1}
            v_lshlrev_b32 v{T2}, 4, v{T2}
            v_lshl_add_u32 v{RPV + j}, v{T0}, 11, v{T2}''')
    elif OPT['warm']:
        k(f'''
        v_lshlrev_b32 v{VPFO}, 6, v0
        v_mov_b32 v{T5}, 0x7fffffff
        v_cmp_lt_u32 vcc, 31, v0
        s_and_b32 s49, s3, 1
        s_lshl_b32 s48, s2, 1
        v_cndmask_b32 v{VPFO}, v{VPFO}, v{T5}, vcc
        s_add_u32 s48, s48, s49          ; 2*wg + (w&1)
        s_cmp_lt_u32 s3, 2
        s_mov_b32 s70, 14336
        s_cselect_b32 s70, 16384, s70
        s_cselect_b32 s68, s96, s98
        s_cselect_b32 s69, s97, s99
        s_mul_i32 s48, s48, s70
        s_add_u32 s68, s68, s48
        s_addc_u32 s69, s69, 0
        s_mov_b32 s71, 0x20000
        s_mov_b32 s65, 0
        ''')
    k(f's_mov_b32 s49, {GSLOT}')
    for i in range(4):
        k(f'v_mov_b32 v{ONES + i}, 0x3f803f80')
    for i in range(128):
        k(f'v_accvgpr_write_b32 a{i}, 0')
    for p in range(7):
        for tt in range(2):
            for i in range(8):
                k(f'v_mov_b32 v{HG(p, tt) + i}, 0')
    GL = p1_sched('loop')
    print('p1 overflow', GL.over)
    lin.add(('vmwait', ['G0', 'X']))
    lin.add('s_barrier')
    lin.run(GL.only(0, lambda kk, kind, g: kk < 0 and kind in ('rd', 'need')))
    flush(k, lin)
    k('s_mov_b32 s42, 7')
    stamp(k, 1)
    st = steady(drop(GL.emit(p1_mfmas(0), 0)) + drop(GL.emit(p1_mfmas(1), 1)))
    k('L_p1:')
    k('\n'.join(st.out))
    k('s_sub_u32 s42, s42, 1\ns_cmp_lg_u32 s42, 0\ns_cbranch_scc1 L_p1')
    lin = Lin(st.lg, st.vm)
    lin.run(p1_sched('t14').emit(p1_mfmas(0), 14))
    lin.run(p1_sched('t15').emit(p1_mfmas(1), 15, keep=lambda kk, kind, g: kk >= 0 and kind != 'bar'))
    flush(k, lin)
    stamp(k, 2)
    k(f's_mov_b32 s66, {f32(C)}\ns_mov_b32 s67, {f32(C)}')
    k('s_nop 3')
    for n in range(8):
        lin.add(k_read(0, n))
    n = 0
    for tt in range(4):
        for s in range(4):
            tb = VT + (n & 1) * 8
            n += 1
            for e in range(2):
                for i in range(4):
                    lin.add(f'v_accvgpr_read_b32 v{tb + 4 * e + i}, a{OACC(2 * s + e, tt) + i}')
            for i in range(0, 8, 2):
                lin.add(f'v_pk_mul_f32 {vr(tb + i, 2)}, {vr(tb + i, 2)}, s[66:67]')
            for i in range(4):
                lin.add(f'v_cvt_pk_bf16_f32 v{tb + i}, v{tb + 2 * i}, v{tb + 2 * i + 1}')
            lin.add('s_nop 0')
            lin.add(f'v_permlane32_swap_b32 v{tb}, v{tb + 2}')
            lin.add(f'v_permlane32_swap_b32 v{tb + 1}, v{tb + 3}')
            lin.add('s_nop 0')
            lin.add(f'v_permlane16_swap_b32 v{tb}, v{tb + 2}')
            lin.add(f'v_permlane16_swap_b32 v{tb + 1}, v{tb + 3}')
            for i in range(4):
                lin.add(f'v_accvgpr_write_b32 a{QF(tt, s) + i}, v{tb + i}')
    flush(k, lin)
    if OPT['dumpq']:
        k('s_lshl_b32 s48, s2, 16\ns_lshl_b32 s49, s3, 14\ns_add_u32 s48, s48, s49\ns_add_u32 s48, s48, 0x6000000')
        srd_off(k, 72, 's60', 's61', 's48', 16384)
        for n in range(16):
            k(f's_mov_b32 s48, {n * 1024}')
            lin.add(f'buffer_store_dwordx4 {ar(128 + 4 * n, 4)}, v{VLN}, s[72:75], s48 offen')
            flush(k, lin)
    k("""s_mul_i32 s48, s50, 229376
    s_lshr_b32 s49, s32, 1
    s_mul_i32 s49, s49, 14336
    s_add_u32 s48, s48, s49""")
    hep = []
    for p in range(7):
        for tt in range(2):
            b = HG(p, tt)
            for i in range(4):
                hep.append(f'v_cvt_pk_bf16_f32 v{b + i}, v{b + 2 * i}, v{b + 2 * i + 1}')
            for i in range(4):
                hep.append(f'v_pk_max_i16 v{b + i}, v{b + i}, 0')
            ks = p * 2 + tt
            if ks % 4 == 0 and ks:
                hep.append('s_add_u32 s48, s48, 4096')
            hep.append(f'buffer_store_dwordx4 {vr(b, 4)}, v{VLN}, s[24:27], s48 offen offset:{(ks & 3) * 1024} ;#H')

    def qk0(extra):
        mf = qk_mfmas(0, c0='0')
        fill = {}
        add = lambda g, it: fill.setdefault(g, []).extend(it)
        per = (len(extra) + 63) // 64
        for n, it in enumerate(extra):
            add(n // per, [it])
        for n in range(8, 16):
            add(16 * ((n - 8) >> 2) + 13 + (n & 3), [k_read(0, n)])
        return weave(mf, fill)
    zero_o = [f'v_accvgpr_write_b32 a{i}, 0' for i in list(range(128)) + list(range(LACC(0), LACC(0) + 16))]
    mix = []
    for i in range(max(len(hep), len(zero_o))):
        if i < len(hep):
            mix.append(hep[i])
        if i < len(zero_o):
            mix.append(zero_o[i])
    lin.run(qk0(mix))
    flush(k, lin)
    GA, NG = att_sched()
    print('att overflow', GA.over, 'NG', NG)
    k('L_att_go:')
    lin.add(('vmwait', ['K1', 'V0']))
    lin.add('s_barrier')
    lin.run(GA.only(0, lambda kk, kind, g: kk < 0 and kind == 'rd'))
    flush(k, lin)
    k('s_nop 4')
    for qt in range(4):
        m = VT + qt
        regs = [S_(0, kvt, qt) + i for kvt in range(4) for i in range(4)]
        k(f'v_max3_f32 v{m}, v{regs[0]}, v{regs[1]}, v{regs[2]}')
        for i in range(3, 15, 2):
            k(f'v_max3_f32 v{m}, v{m}, v{regs[i]}, v{regs[i + 1]}')
        k(f'v_max_f32 v{m}, v{m}, v{regs[15]}')
    xgroup(k, 'v_max_f32', [VT + q for q in range(4)], VT + 4)
    k('s_cmp_eq_u32 s64, 0\ns_cbranch_scc1 L_use_m0')
    for qt in range(4):
        k(f'v_mov_b32 v{VT + qt}, v{VMT + qt}')
    k('L_use_m0:')
    for qt in range(4):
        for i in range(4):
            k(f'v_sub_f32 v{NEGM(qt) + i}, 0, v{VT + qt}')
        k(f'v_mov_b32 v{VL + qt}, 0')
    for kvt in range(4):
        for qt in range(4):
            for i in range(0, 4, 2):
                r = S_(0, kvt, qt) + i
                k(f'v_pk_add_f32 {vr(r, 2)}, {vr(r, 2)}, {vr(NEGM(qt), 2)}')
    pre = GA.only(-1, lambda kk, kind, g: kk == 0 and kind in ('exp', 'cvt'))
    for a, b in zip(pre, pre[1:] + ['']):
        k(a)
        if a.startswith('v_exp') and not b.startswith('v_exp') and a.split()[1].strip(',') in b:
            k('s_nop 0')
    lin.run(GA.only(0, lambda kk, kind, g: kk < 0 and kind == 'need'))
    flush(k, lin)
    k('s_mov_b32 s42, 8')
    stamp(k, 3)
    it = lambda i: drop(GA.emit(qk_mfmas((i + 1) & 1) + pv_mfmas(i & 1), i))
    body = []
    for i in range(4):
        if i == 3:
            body += ['s_sub_u32 s42, s42, 1', 's_cmp_eq_u32 s42, 0', 's_cbranch_scc1 L_att_tail']
        body += it(i)
    st = steady(body)
    k('L_att:')
    k('\n'.join(st.out))
    k('s_branch L_att')
    k('L_att_tail:')
    l3 = Lin(st.lg, st.vm)
    for i in range(3):
        l3.run(it(i))
    lin = Lin(l3.lg, l3.vm)
    tail = GA.emit([None] * 64 + pv_mfmas(1), 3,
                   keep=lambda kk, kind, g: (kk == 1 and kind in ('exp', 'cvt')) or
                   (kk == 0 and kind in ('rd', 'need') and g >= 40))
    tail = [x for x in tail if isinstance(x, tuple) or not x.startswith('ds_read_b128')]
    t2 = []
    for a, b in zip(tail, tail[1:] + ['']):
        t2.append(a)
        if isinstance(a, str) and isinstance(b, str) and a.startswith('v_exp') and b.startswith('v_') and not b.startswith('v_exp'):
            t2.append('s_nop 0')
        if isinstance(a, str) and a.startswith('v_cvt') and (isinstance(b, tuple) or b.startswith('v_mfma')):
            t2.append('s_nop 1')
    if OPT['rp']:
        t2.insert(len(t2) // 2, rp_item(3)[1])
    lin.run(t2)
    flush(k, lin)
    stamp(k, 4)
    k('s_nop 7')
    if OPT['msum']:
        for qt in range(4):
            k(f'v_accvgpr_read_b32 v{VL + qt}, a{LACC(qt)}')
    else:
        xgroup(k, 'v_add_f32', [VL + q for q in range(4)], VT + 4)
    k(f"""
    v_add_f32 v{VT}, v{VL}, v{VL + 1}
    v_add_f32 v{VT + 1}, v{VL + 2}, v{VL + 3}
    v_add_f32 v{VT + 1}, v{VT}, v{VT + 1}
    s_mov_b32 s48, 0x4e800000
    v_cmp_nle_f32 vcc, v{VT + 1}, s48
    s_nop 1
    s_cmp_lg_u64 vcc, 0
    s_cselect_b32 s48, 1, 0
    s_andn2_b32 s48, s48, s64
    v_mov_b32 v{VT + 2}, s48
    s_lshl_b32 s49, s3, 2
    v_mov_b32 v{VT + 3}, s49
    ds_write_b32 v{VT + 3}, v{VT + 2}
    v_rcp_f32 v{VL}, v{VL}
    v_rcp_f32 v{VL + 1}, v{VL + 1}
    v_rcp_f32 v{VL + 2}, v{VL + 2}
    v_rcp_f32 v{VL + 3}, v{VL + 3}
    s_waitcnt lgkmcnt(0)
    s_barrier
    v_mov_b32 v{VT + 3}, 0
    ds_read_b128 {vr(VT + 4, 4)}, v{VT + 3}
    s_waitcnt lgkmcnt(0)
    v_or_b32 v{VT + 4}, v{VT + 4}, v{VT + 5}
    v_or_b32 v{VT + 6}, v{VT + 6}, v{VT + 7}
    v_or_b32 v{VT + 4}, v{VT + 4}, v{VT + 6}
    s_nop 0
    v_readfirstlane_b32 s48, v{VT + 4}
    s_nop 1
    s_cmp_lg_u32 s48, 0
    s_cbranch_scc1 L_fallback
    s_lshl_b32 s50, s50, 18
    s_lshl_b32 s51, s51, 18
    s_lshl_b32 s48, s32, 13
    s_add_u32 s50, s50, s48
    s_add_u32 s51, s51, s48
    s_add_u32 s52, s50, 4096
    s_add_u32 s53, s51, 4096
    """)
    n = 0
    for qt in range(4):
        k(f'v_mov_b32 v{VT + 32}, v{VL + qt}\nv_mov_b32 v{VT + 33}, v{VL + qt}')
        for s in range(4):
            tb = (n & 3) * 8
            n += 1
            for e in range(2):
                for i in range(4):
                    k(f'v_accvgpr_read_b32 v{tb + 4 * e + i}, a{OACC(2 * s + e, qt) + i}')
            for i in range(0, 8, 2):
                k(f'v_pk_mul_f32 {vr(tb + i, 2)}, {vr(tb + i, 2)}, {vr(VT + 32, 2)}')
            for i in range(4):
                k(f'v_cvt_pk_bf16_f32 v{tb + i}, v{tb + 2 * i}, v{tb + 2 * i + 1}')
            k(f'buffer_store_dwordx4 {vr(tb, 4)}, v{VLN}, s[28:31], s{50 + (qt >> 1) + 2 * (s >> 1)} offen '
              f'offset:{(s & 1) * 2048 + (qt & 1) * 1024}')
    if OPT['stamp']:
        stamp(k, 5)
        stamp_out(k, 'L_k2_end', 's62', 's63')
    span_end(k, 40, 1)
    k('L_k2_end:\ns_endpgm')
    k(f"""L_fallback:
    s_mov_b32 s64, 1
    s_mov_b32 s43, 0
    s_mov_b32 s42, 32
    s_waitcnt vmcnt(0)""")
    for qt in range(4):
        k(f'v_mov_b32 v{VMT + qt}, 0xff800000')
    k('L_fb_loop:\ns_barrier')
    lin = Lin()
    lin.run(flat(kdma(0, 'K0')))
    lin.run(['s_waitcnt vmcnt(0)', 's_barrier'])
    for n in range(8):
        lin.add(k_read(0, n))
    lin.run(qk0([]))
    lin.add('s_nop 15')
    for qt in range(4):
        for kvt in range(4):
            for i in range(0, 4, 2):
                r = S_(0, kvt, qt) + i
                lin.add(f'v_max3_f32 v{VMT + qt}, v{VMT + qt}, v{r}, v{r + 1}')
    flush(k, lin)
    k('s_sub_u32 s42, s42, 1\ns_cmp_lg_u32 s42, 0\ns_cbranch_scc1 L_fb_loop')
    xgroup(k, 'v_max_f32', [VMT + q for q in range(4)], VT)
    k('s_mov_b32 s43, 0\ns_mov_b32 s44, 0\ns_barrier')
    lin.run(flat(kdma(0, 'K0') + vdma(0, 'V0') + vdma(1, 'V1') + kdma(1, 'K1') + kdma(2, 'K2') + kdma(3, 'K3')))
    lin.run(['s_waitcnt vmcnt(0)', 's_barrier'])
    for n in range(8):
        lin.add(k_read(0, n))
    lin.run(qk0(zero_o))
    lin.add('s_branch L_att_go')
    flush(k, lin)
    rings = {'G': (3, lambda n: (n * GSLOT, (n + 1) * GSLOT)),
             'A': (8, lambda n: (ABASE + n * 16384, ABASE + (n + 1) * 16384))}
    pol = [{'L_p1': [1] * 6 + [0], 'L_att_tail': [0, 0, 1], 'L_use_m0': [1]},
           {'L_p1': [1] * 6 + [0], 'L_att_tail': [0, 1, 0, 1], 'L_use_m0': [1, 0], 'L_fallback': [1, 0]}]
    return k, k.check(pol, rings=rings)


def gen_k3():
    k = Kernel('fin_kernel')
    span_begin(k)
    AG = lambda p, tt: (p * 2 + tt) * 8
    ACC = lambda nt, tt: AG(nt >> 1, tt) + 4 * (nt & 1)
    ACT = lambda T, j: (T & 3) * 32 + j * 4
    R3 = 128
    VA = 64
    VD = 80
    VLN3, VX, VZ = 88, 89, 90
    T0, T1, T2, T3, T4, T5 = 91, 92, 93, 94, 95, 96
    LOOK = OPT['look3']
    k("""
    s_cmp_ge_u32 s2, 256
    s_cbranch_scc1 L_k3_end
    s_load_dwordx2 s[52:53], s[0:1], 0      ; x
    s_load_dwordx2 s[54:55], s[0:1], 32     ; wo
    s_load_dwordx2 s[56:57], s[0:1], 56     ; w2
    s_load_dwordx2 s[58:59], s[0:1], 64     ; out
    s_load_dwordx2 s[60:61], s[0:1], 80     ; ws
    s_load_dwordx2 s[62:63], s[0:1], 72     ; dbg
    v_lshrrev_b32 v1, 6, v0
    v_and_b32 v0, 63, v0
    s_and_b32 s32, s2, 7
    v_readfirstlane_b32 s3, v1
    s_lshr_b32 s33, s2, 3
    s_lshr_b32 s34, s32, 2
    s_and_b32 s32, s32, 3
    s_lshl_b32 s32, s32, 2
    s_and_b32 s35, s33, 3
    s_add_u32 s32, s32, s35                 ; mb (0..15)
    s_lshr_b32 s33, s33, 2                  ; nb (0..7)
    s_lshl_b32 s35, s32, 2
    s_add_u32 s35, s35, s3
    s_lshl_b32 s45, s3, 13                  ; w*8192 (LDS)
    s_add_u32 s46, s45, 4096
    s_lshl_b32 s47, s32, 3
    s_add_u32 s47, s47, s33
    """)
    stamp(k, 0)
    k(f"""
    v_lshlrev_b32 v{VLN3}, 4, v0
    v_lshrrev_b32 v{T0}, 4, v0
    v_and_b32 v{T1}, 15, v0
    s_lshl_b32 s48, s3, 5
    v_add_u32 v{T3}, s48, v{T0}             ; row = 32w + (l>>4)
    """)
    if OPT['rp']:
        k(f'v_add_u32 v{VD}, s45, v{VLN3}\nv_add_u32 v{VD + 4}, s46, v{VLN3}')
    else:
        for j in range(2):
            k(f"""v_add_u32 v{T2}, {4 * j}, v{T0}
            v_lshlrev_b32 v{T2}, 1, v{T2}
            v_xor_b32 v{T2}, v{T2}, v{T1}
            v_lshlrev_b32 v{T2}, 4, v{T2}
            v_lshl_add_u32 v{VD + j}, v{T3}, 11, v{T2}""")
        for j in range(7, 0, -1):
            k(f'v_add_u32 v{VD + j}, {j * 8192 - (j & 3) * 1024}, v{VD + (j & 1)}')
    k(f"""
    s_waitcnt lgkmcnt(0)
    s_cmp_eq_u32 s34, 0
    s_cselect_b32 s54, s54, s56
    s_cselect_b32 s55, s55, s57
    s_mov_b32 s64, 0x800000
    s_mov_b32 s65, 0x40000
    s_mov_b32 s66, {O_OFF}
    s_cselect_b32 s64, s64, 0x700000
    s_cselect_b32 s65, s65, 0x38000
    s_cselect_b32 s66, s66, {H_OFF}
    s_cselect_b32 s42, 8, 7
    s_lshl_b32 s48, s33, 8
    """)
    if OPT['rp']:
        k(f'''s_lshr_b32 s64, s64, 3
        s_mul_i32 s48, s33, s64
        s_lshl_b32 s49, s34, 23
        s_add_u32 s48, s48, s49
        s_add_u32 s48, s48, {WP_OFF}''')
        srd_off(k, 8, 's60', 's61', 's48', 0)
        k('s_mov_b32 s10, s64')
    else:
        srd_off(k, 8, 's54', 's55', 's48', 0)
        k('s_sub_u32 s10, s64, s48')
    k('s_mul_i32 s48, s35, s65\ns_add_u32 s48, s48, s66')
    srd_off(k, 4, 's60', 's61', 's48', 0)
    k('s_mov_b32 s6, s65\ns_mov_b32 s38, 0\ns_mov_b32 s36, 0\ns_mov_b32 s37, 4096')

    def loads(T):
        tag = f'L{T & 3}'
        gs = []
        for j in range(8):
            gs.append(([f's_add_u32 m0, s{45 + (j >> 2)}, {(T & 3) * 32768}'] if j in (0, 4) else [],
                       f'buffer_load_dwordx4 v{VD + (j & 4 if OPT["rp"] else j)}, s[8:11], s38 offen offset:{(j & 3) * 1024} lds ;#{tag} @W W {T & 3}',
                       [f's_add_u32 s38, s38, {0x8000 if OPT["rp"] else 0x40000}'] if j == 7 else []))
            gs.append(([], f'buffer_load_dwordx4 {ar(ACT(T, j), 4)}, v{VLN3}, s[4:7], s{36 + (j >> 2)} offen offset:{(j & 3) * 1024} ;#{tag}',
                       [f's_add_u32 s{36 + (j >> 2)}, s{36 + (j >> 2)}, 8192'] if (j & 3) == 3 else []))
        return gs

    def wread(T, n, hh):
        nt, ks = divmod(n, 4)
        a = VA + ((T >> 1) & 1) * 8 + nt
        return (f'ds_read_b64_tr_b16 {ar(R3 + (n & 15) * 4 + 2 * hh, 2)}, v{a} '
                f'offset:{(T & 1) * 32768 + ks * 8192 + hh * 4096} ;@R W {T & 3}')
    lin = Lin()
    for T in range(LOOK):
        lin.run(flat(loads(T)))
    flush(k, lin)
    k(f"""
    v_lshlrev_b32 v{VX}, 11, v{T1}
    v_lshl_add_u32 v{VX}, v{T0}, 4, v{VX}
    v_mov_b32 v{VZ}, 0
    """)
    lane_grc(k, T0, T1, T2)
    k(f"""
    v_lshlrev_b32 v{T2}, 3, v{T2}
    v_lshl_add_u32 v{T3}, v{T0}, 2, v{T1}   ; row = 4g + r
    v_and_b32 v{T4}, 7, v{T3}
    v_lshl_add_u32 v{T3}, v{T3}, 8, v{T2}
    """)
    for nt in range(8):
        k(f"""v_xor_b32 v{T5}, {nt}, v{T4}
        v_lshl_add_u32 v{VA + nt}, v{T5}, 5, v{T3}
        v_add_u32 v{VA + 8 + nt}, 0x10000, v{VA + nt}""")
    for i in range(64):
        k(f'v_mov_b32 v{i}, 0')
    G = Gaps(64)
    GB = 46
    for nt in range(8):
        regs = [ar(R3 + ((nt * 4 + ks) & 15) * 4, 4) for ks in range(4)]
        G.put(8 * nt - 1, lambda i, regs=regs: [('need', regs)], 4, prio=9, kind='need')
    G.put(GB, lambda i: [('vmwait', [f'L{(i + 1) & 3}'], ' lgkmcnt(0)' if LOOK == 3 else ''), 's_barrier'], 8, kind='bar')
    sched_vmem(G, [lambda i, j=j: loads(i + LOOK)[j] for j in range(16)],
               [1 + 4 * j for j in range(16)] if LOOK == 2 else [1 + (j * 11) // 4 for j in range(16)])
    prev = -10 ** 6
    for n in range(32):
        fu, lu16 = 8 * (n >> 2), 8 * ((n - 16) >> 2) + 4 + (n & 3)
        lo = max(lu16 + 1, prev, GB + 1 - 64)
        hi = fu - 5 if LOOK == 2 else min(fu - 5, GB - 2)
        for hh in range(2):
            prev = G.place(lo, hi, fu - OPT['la'], lambda i, n=n, hh=hh: [wread(i, n, hh)], 4, kind='rd', pack=True)
            lo = prev
    print('k3 overflow', G.over)

    def mfs(T):
        return [f'{MF} {vr(ACC(nt, tt), 4)}, {ar(R3 + ((nt * 4 + ks) & 15) * 4, 4)}, {ar(ACT(T, ks * 2 + tt), 4)}, {vr(ACC(nt, tt), 4)}'
                for nt in range(8) for tt in range(2) for ks in range(4)]
    lin.add(('vmwait', ['L0']))
    lin.add('s_barrier')
    lin.run(G.only(0, lambda kk, kind, g: kk < 0))
    flush(k, lin)
    k('s_mov_b32 s67, 0\ns_mov_b32 s68, 4096\ns_mov_b32 s69, 32768')
    stamp(k, 1)
    body = []
    for T in range(4):
        body += G.emit(mfs(T), T)
    st = steady(body)
    k('L_k3:')
    k('\n'.join(st.out))
    k('s_sub_u32 s42, s42, 1\ns_cmp_lg_u32 s42, 0\ns_cbranch_scc1 L_k3')
    stamp(k, 2)
    k(f"""
    s_lshl_b32 s48, s47, 15
    s_lshl_b32 s49, s3, 13
    s_add_u32 s48, s48, s49                 ; tile*32768 + w*8192
    s_cmp_eq_u32 s34, 0
    s_mov_b32 s49, {S_OFF}
    s_mov_b32 s50, {G_OFF}
    s_cselect_b32 s49, s49, {G_OFF}
    s_cselect_b32 s50, s50, {S_OFF}
    s_add_u32 s49, s49, s48
    s_add_u32 s50, s50, s48
    """)
    srd_off(k, 12, 's60', 's61', 's49', 8192)
    srd_off(k, 16, 's60', 's61', 's50', 8192)
    k(f's_lshl_b32 s48, s47, 7\ns_add_u32 s48, s48, {F_OFF}')
    srd_off(k, 20, 's60', 's61', 's48', 128)
    k('s_lshl_b32 s48, s35, 16\ns_lshl_b32 s49, s33, 8\ns_add_u32 s48, s48, s49')
    srd_off(k, 24, 's52', 's53', 's48', 65536)
    srd_off(k, 28, 's58', 's59', 's48', 65536)
    k('s_sub_u32 s26, s26, s49\ns_sub_u32 s30, s30, s49')
    XR, PK, OT = 100, 132, 164
    xo = lambda q: f'{"s69" if q & 1 else "0"} offen offset:{(q >> 1) * 64}'
    k('s_waitcnt vmcnt(0) lgkmcnt(0)')
    for q in range(8):
        k(f'buffer_load_dwordx4 {vr(XR + 4 * q, 4)}, v{VX}, s[24:27], {xo(q)}')
    for i in range(32):
        k(f'v_cvt_pk_bf16_f32 v{PK + i}, v{2 * i}, v{2 * i + 1}')
    k('s_cmp_eq_u32 s34, 0\ns_cbranch_scc1 L_k3_oproj')
    k(f's_mov_b32 s48, {f32(-math.log2(math.e))}')
    for i in range(32):
        k(f'v_lshlrev_b32 v{2 * i}, 16, v{PK + i}\nv_and_b32 v{2 * i + 1}, 0xffff0000, v{PK + i}')
    for c in range(0, 64, 16):
        for i in range(16):
            k(f'v_mul_f32 v{OT + i}, s48, v{c + i}')
        for i in range(16):
            k(f'v_exp_f32 v{OT + i}, v{OT + i}')
        for i in range(16):
            k(f'v_add_f32 v{OT + i}, 1.0, v{OT + i}')
        for i in range(16):
            k(f'v_rcp_f32 v{OT + i}, v{OT + i}')
        for i in range(16):
            k(f'v_mul_f32 v{c + i}, v{c + i}, v{OT + i}')
        for i in range(8):
            k(f'v_cvt_pk_bf16_f32 v{PK + c // 2 + i}, v{c + 2 * i}, v{c + 2 * i + 1}')
    k('L_k3_publish:')
    for q in range(8):
        k(f'buffer_store_dwordx4 {vr(PK + 4 * q, 4)}, v{VLN3}, s[12:15], s{67 + (q >> 2)} offen offset:{(q & 3) * 1024} sc0 sc1')
    k(f"""
    s_waitcnt vmcnt(0)
    s_barrier
    s_cmp_lg_u32 s3, 0
    s_cbranch_scc1 L_k3_pub_wait
    v_mov_b32 v{T0}, 1
    s_mov_b64 exec, 1
    buffer_atomic_add v{T0}, v{VZ}, s[20:23], 0 offen sc0 sc1
    s_waitcnt vmcnt(0)
    ds_write_b32 v{VZ}, v{T0}
    s_mov_b64 exec, -1
    s_waitcnt lgkmcnt(0)
    L_k3_pub_wait:
    s_barrier
    ds_read_b32 v{T0}, v{VZ}
    s_waitcnt lgkmcnt(0)
    v_readfirstlane_b32 s48, v{T0}
    s_nop 1
    s_cmp_eq_u32 s48, 0
    s_cbranch_scc1 L_k3_end
    s_branch L_k3_finish
    L_k3_oproj:
    s_mov_b32 s49, 4096
    s_cmp_lg_u32 s3, 0
    s_cbranch_scc1 L_k3_poll_done
    L_k3_poll:
    buffer_load_dword v{T0}, v{VZ}, s[20:23], 0 offen sc0 sc1
    s_waitcnt vmcnt(0)
    v_readfirstlane_b32 s48, v{T0}
    s_nop 1
    s_cmp_lg_u32 s48, 0
    s_cbranch_scc1 L_k3_poll_end
    s_sleep 4
    s_sub_u32 s49, s49, 1
    s_cmp_lg_u32 s49, 0
    s_cbranch_scc1 L_k3_poll
    L_k3_poll_end:
    ds_write_b32 v{VZ}, v{T0} offset:64
    s_waitcnt lgkmcnt(0)
    L_k3_poll_done:
    s_barrier
    ds_read_b32 v{T0}, v{VZ} offset:64
    s_waitcnt lgkmcnt(0)
    v_readfirstlane_b32 s48, v{T0}
    s_nop 1
    s_cmp_eq_u32 s48, 0
    s_cbranch_scc1 L_k3_publish
    L_k3_finish:
    """)
    for q in range(8):
        k(f'buffer_load_dwordx4 {vr(OT + 4 * q, 4)}, v{VLN3}, s[16:19], s{67 + (q >> 2)} offen offset:{(q & 3) * 1024} sc0 sc1')
    for i in range(32):
        k(f'v_lshlrev_b32 v{2 * i}, 16, v{PK + i}\nv_and_b32 v{2 * i + 1}, 0xffff0000, v{PK + i}')
    for q in range(8):
        k('s_waitcnt vmcnt(7)')
        o = OT + 4 * q
        for i in range(4):
            j = 4 * q + i
            k(f"""v_lshlrev_b32 v{T0}, 16, v{OT + j}
            v_and_b32 v{T1}, 0xffff0000, v{OT + j}
            v_mul_f32 v{T0}, v{T0}, v{2 * j}
            v_mul_f32 v{T1}, v{T1}, v{2 * j + 1}
            v_cvt_pk_bf16_f32 v{OT + j}, v{T0}, v{T1}""")
        k(f"""s_nop 0
        v_permlane32_swap_b32 v{o}, v{o + 2}
        v_permlane32_swap_b32 v{o + 1}, v{o + 3}
        s_nop 0
        v_permlane16_swap_b32 v{o}, v{o + 2}
        v_permlane16_swap_b32 v{o + 1}, v{o + 3}""")
        for i in range(4):
            j = 4 * q + i
            k(f"""v_lshlrev_b32 v{T2}, 16, v{XR + j}
            v_and_b32 v{T3}, 0xffff0000, v{XR + j}
            v_lshlrev_b32 v{T0}, 16, v{OT + j}
            v_and_b32 v{T1}, 0xffff0000, v{OT + j}
            v_add_f32 v{T0}, v{T0}, v{T2}
            v_add_f32 v{T1}, v{T1}, v{T3}
            v_cvt_pk_bf16_f32 v{OT + j}, v{T0}, v{T1}""")
        k(f'buffer_store_dwordx4 {vr(o, 4)}, v{VX}, s[28:31], {xo(q)}')
    if OPT['stamp']:
        stamp(k, 3)
        stamp_out(k, 'L_k3_end', 's62', 's63')
    if OPT['span']:
        k('L_k3_end:')
        span_end(k, 70, 2)
        k('s_endpgm')
    else:
        k('L_k3_end:\ns_endpgm')
    rings = {'W': (4, lambda n: (n * 32768, (n + 1) * 32768))}
    pol = [{}, {'L_k3_oproj': [1]}, {'L_k3_oproj': [1], 'L_k3_publish': [1]},
           {'L_k3_oproj': [1], 'L_k3_poll_done': [1]}, {'L_k3_pub_wait': [1]}]
    return k, k.check(pol, rings=rings)


def main():
    out = 'cdna_kernels/' + NAME + '.s'
    for a in sys.argv[1:]:
        if '=' in a:
            kk, v = a.split('=')
            assert kk in OPT, kk
            OPT[kk] = int(v)
        else:
            out = a
    ref = open('cdna_kernels/' + NAME + '.s.ref').read()
    header = '\n'.join(l for l in ref.split('\n')[:12])
    k1 = gen_ln()
    p = k1.check([{}, {'L_ln_noflag': [1]}])
    k2, p2 = gen_k2()
    k3, p3 = gen_k3()
    for x in p + p2 + p3:
        print('PROBLEM', x)
    ks = [k1, k2, k3]
    ls = [('ln_kernel', 256, 512, 0), ('att_kernel', 256, 256, 163840), ('fin_kernel', 256, 256, 131072)]
    s = build_file(header, ks, ls)
    open(out, 'w').write(s)
    for k in ks:
        print(k.name, 'instrs', sum(1 for t, _ in k.lines if t == 'I'), 'regs', k.max_regs(),
              'autowaits', sum(1 for t, v in k.lines if t == 'I' and '; auto' in v.text))


if __name__ == '__main__':
    main()
```

```python
import math
import struct
import sys

sys.path.insert(0, 'work')
from asmlib import *

NAME = 'recurrent_scan__mha_block_cached__dense_activation_relu__prompt'
XN_OFF, H_OFF, O_OFF, G_OFF, S_OFF, F_OFF = 0, 0x400000, 0x1400000, 0x2400000, 0x2800000, 0x3000000
WP_OFF = 0x3800000
MF = 'v_mfma_f32_16x16x32_bf16'
OPT = dict(g0e=0, g1e=0, pf3=8, pf4=0, thr=20, pfr=64, st2=0, mln=1, pf1=2, pf2=0, lnto=0, sy=1, xsc=1, dbgtest=0, rp=1, p1pf=0, k1w=0, k1pos=1, span=0, dumpq=0, empty=0, warm=1, stamp=0, x0=56, look3=2, msum=1, la=14, nodma=0, nolds=0, noexp=0, nocvt=0, nobar=0)


def f32(x):
    return '0x%08x' % struct.unpack('<I', struct.pack('<f', x))[0]


def vr(b, n=1):
    return f'v{b}' if n == 1 else f'v[{b}:{b + n - 1}]'


def ar(b, n=1):
    return f'a{b}' if n == 1 else f'a[{b}:{b + n - 1}]'


def srd(k, d, lo, hi, nbytes):
    k(f"""s_mov_b32 s{d}, {lo}
    s_mov_b32 s{d + 1}, {hi}
    s_mov_b32 s{d + 2}, {nbytes}
    s_mov_b32 s{d + 3}, 0x20000""")


def srd_off(k, d, lo, hi, off, nbytes):
    k(f"""s_add_u32 s{d}, {lo}, {off}
    s_addc_u32 s{d + 1}, {hi}, 0
    s_mov_b32 s{d + 2}, {nbytes}
    s_mov_b32 s{d + 3}, 0x20000""")


def weave(mfmas, fill):
    out = []
    for g, m in enumerate(mfmas):
        out += fill.get(('pre', g), [])
        out.append(m)
        out += fill.get(g, [])
    return out


def stamp(k, idx, sreg=92, last=False):
    if not OPT['stamp']:
        return
    k(f"""s_memtime s[{sreg}:{sreg + 1}]
    s_memrealtime s[{sreg + 2}:{sreg + 3}]
    s_waitcnt lgkmcnt(0)
    s_mov_b32 s{76 + idx}, s{sreg}
    s_mov_b32 s{84 + idx}, s{sreg + 2}""")


def stamp2(k, idx):
    if OPT['st2']:
        k(f"""s_memrealtime s[92:93]
        s_waitcnt lgkmcnt(0)
        s_mov_b32 s{76 + idx}, s92""")


def stamp2_out(k, reg):
    if not OPT['st2']:
        return
    k(f"""s_load_dwordx2 s[72:73], s[0:1], 80
    s_waitcnt lgkmcnt(0)
    s_add_u32 s72, s72, {0x5040000 + reg * 65536}
    s_addc_u32 s73, s73, 0
    s_mov_b32 s74, 65536
    s_mov_b32 s75, 0x20000
    s_lshl_b32 s48, s2, 2
    s_add_u32 s48, s48, s3
    s_lshl_b32 s48, s48, 6""")
    for i in range(16):
        k(f'v_mov_b32 v1, s{76 + i}\nv_mov_b32 v2, {4 * i}\nbuffer_store_dword v1, v2, s[72:75], s48 offen')


def span_begin(k):
    if OPT['span']:
        k('s_memrealtime s[100:101]')


def span_end(k, v0, idx):
    if not OPT['span']:
        return
    k(f'''s_load_dwordx2 s[72:73], s[0:1], 80
    s_waitcnt {'vmcnt(0) ' if idx else ''}lgkmcnt(0)
    s_mov_b32 s76, s100
    s_memrealtime s[100:101]
    s_add_u32 s72, s72, {0x5000000 + idx * 65536}
    s_addc_u32 s73, s73, 0
    s_mov_b32 s74, 65536
    s_mov_b32 s75, 0x20000
    s_mov_b64 exec, 1
    s_lshl_b32 s77, s2, 3
    s_add_u32 s77, s77, s3
    s_lshl_b32 s77, s77, 3
    s_waitcnt lgkmcnt(0)
    v_mov_b32 v{v0}, 0
    v_mov_b32 v{v0 + 2}, s76
    v_mov_b32 v{v0 + 3}, s100
    buffer_store_dwordx2 v[{v0 + 2}:{v0 + 3}], v{v0}, s[72:75], s77 offen''')


def stamp_out(k, endlabel, lo, hi):
    k(f"""s_cmp_lg_u32 s3, 0
    s_cbranch_scc1 {endlabel}
    s_cmp_ge_u32 s2, 4
    s_cbranch_scc1 {endlabel}""")
    srd(k, 72, lo, hi, 256)
    k('s_lshl_b32 s48, s2, 6')
    for i in range(16):
        k(f'v_mov_b32 v1, s{76 + i}\nv_mov_b32 v2, {4 * i}\nbuffer_store_dword v1, v2, s[72:75], s48 offen')


def gen_ln():
    k = Kernel('ln_kernel')
    span_begin(k)
    k("""
    s_cmp_ge_u32 s2, 256
    s_cbranch_scc1 L_ln_end
    s_load_dwordx2 s[4:5], s[0:1], 0
    s_load_dwordx2 s[6:7], s[0:1], 80
    s_load_dwordx2 s[26:27], s[0:1], 24
    s_load_dwordx2 s[28:29], s[0:1], 48
    v_lshrrev_b32 v1, 6, v0
    v_and_b32 v2, 63, v0
    s_nop 0
    v_readfirstlane_b32 s3, v1
    s_lshl_b32 s16, s2, 3
    s_nop 1
    s_add_u32 s16, s16, s3            ; token T
    s_lshl_b32 s17, s16, 11
    v_lshlrev_b32 v3, 4, v2           ; lane*16
    s_waitcnt lgkmcnt(0)
    """)
    srd(k, 8, 's4', 's5', 0x400000)
    srd(k, 12, 's6', 's7', 0x400000)
    k("""
    buffer_load_dwordx4 v[4:7], v3, s[8:11], s17 offen
    buffer_load_dwordx4 v[8:11], v3, s[8:11], s17 offen offset:1024
    s_lshr_b32 s18, s16, 5
    s_lshl_b32 s18, s18, 16
    s_and_b32 s19, s16, 15
    s_lshl_b32 s19, s19, 4
    s_add_u32 s18, s18, s19
    s_and_b32 s19, s16, 16
    s_lshl_b32 s19, s19, 6
    s_add_u32 s18, s18, s19
    s_add_u32 s19, s18, 32768         ; chunk 64..127
    v_lshrrev_b32 v40, 2, v2
    v_lshlrev_b32 v40, 11, v40
    v_and_b32 v41, 3, v2
    v_lshl_add_u32 v40, v41, 8, v40   ; (c>>2)*2048 + (c&3)*256
    """)
    k(f"""
    s_cmp_ge_u32 s2, 128
    s_cbranch_scc1 L_ln_noflag
    s_cmp_lg_u32 s3, 0
    s_cbranch_scc1 L_ln_noflag
    """)
    srd_off(k, 20, 's6', 's7', F_OFF, 32768)
    k("""
    s_lshr_b32 s24, s2, 4
    s_lshl_b32 s24, s24, 12
    s_and_b32 s25, s2, 15
    s_lshl_b32 s25, s25, 7
    s_add_u32 s24, s24, s25
    v_and_b32 v41, 31, v2
    v_lshlrev_b32 v41, 2, v41
    v_mov_b32 v42, 0
    buffer_store_dword v42, v41, s[20:23], s24 offen
    L_ln_noflag:
    """)

    def warm():
        n = OPT['k1w']
        k(f'''s_lshl_b32 s30, s2, 2
        s_and_b32 s31, s3, 3
        s_add_u32 s30, s30, s31          ; 0..1023
        s_cmp_lt_u32 s3, 4
        s_cselect_b32 s32, s26, s28
        s_cselect_b32 s33, s27, s29
        s_mov_b32 s34, {896 * n}
        s_cselect_b32 s34, {1024 * n}, s34
        s_mul_i32 s30, s30, s34
        s_add_u32 s32, s32, s30
        s_addc_u32 s33, s33, 0
        s_mov_b32 s35, 0x20000
        v_lshlrev_b32 v43, 7, v2
        buffer_load_dword v60, v43, s[32:35], 0 offen ;#PF''')
    if OPT['k1w'] and OPT['k1pos'] == 0:
        warm()
        k('s_waitcnt vmcnt(1)')
    else:
        k('s_waitcnt vmcnt(0)')
    if OPT['k1w'] and OPT['k1pos'] == 1:
        warm()
    for i in range(8):
        k(f'v_lshlrev_b32 v{12 + 2 * i}, 16, v{4 + i}')
        k(f'v_and_b32 v{13 + 2 * i}, 0xffff0000, v{4 + i}')

    def tree(dst, src, n):
        cur = list(range(src, src + n))
        t = dst
        while len(cur) > 1:
            nxt = []
            for i in range(0, len(cur), 2):
                k(f'v_add_f32 v{t}, v{cur[i]}, v{cur[i + 1]}')
                nxt.append(t)
                t += 1
            cur = nxt
        return cur[0]

    def wave_sum(r, tmp):
        for mode in ('quad_perm:[1,0,3,2]', 'quad_perm:[2,3,0,1]', 'row_half_mirror', 'row_mirror'):
            k('s_nop 1')
            k(f'v_add_f32_dpp v{r}, v{r}, v{r} {mode} row_mask:0xf bank_mask:0xf')
        for sw in ('v_permlane16_swap_b32', 'v_permlane32_swap_b32'):
            k(f'v_mov_b32 v{tmp}, v{r}')
            k('s_nop 1')
            k(f'{sw} v{r}, v{tmp}')
            k(f'v_add_f32 v{r}, v{r}, v{tmp}')
    r = tree(44, 12, 16)
    wave_sum(r, 43)
    k(f'v_mul_f32 v28, {f32(1 / 1024)}, v{r}')
    for i in range(16):
        k(f'v_sub_f32 v{44 + i}, v{12 + i}, v28')
    k('v_mul_f32 v30, v44, v44')
    k('v_mul_f32 v31, v45, v45')
    for i in range(2, 16):
        k(f'v_fmac_f32 v{30 + (i & 1)}, v{44 + i}, v{44 + i}')
    k('v_add_f32 v30, v30, v31')
    wave_sum(30, 43)
    k(f"""
    v_mul_f32 v30, {f32(1 / 1024)}, v30
    v_cvt_pk_bf16_f32 v29, v28, v30
    v_lshlrev_b32 v28, 16, v29             ; m_bf
    v_and_b32 v30, 0xffff0000, v29         ; var_bf
    v_add_f32 v30, {f32(1e-5)}, v30
    v_cvt_pk_bf16_f32 v30, v30, v30
    v_and_b32 v30, 0xffff0000, v30
    v_sqrt_f32 v30, v30
    s_nop 0
    v_cvt_pk_bf16_f32 v30, v30, v30
    v_and_b32 v30, 0xffff0000, v30
    v_rcp_f32 v30, v30
    """)
    for i in range(16):
        k(f'v_sub_f32 v{12 + i}, v{12 + i}, v28')
    for i in range(8):
        k(f'v_cvt_pk_bf16_f32 v{4 + i}, v{12 + 2 * i}, v{13 + 2 * i}')
    for i in range(8):
        k(f'v_lshlrev_b32 v{12 + 2 * i}, 16, v{4 + i}')
        k(f'v_and_b32 v{13 + 2 * i}, 0xffff0000, v{4 + i}')
    for i in range(16):
        k(f'v_mul_f32 v{12 + i}, v{12 + i}, v30')
    for i in range(8):
        k(f'v_cvt_pk_bf16_f32 v{4 + i}, v{12 + 2 * i}, v{13 + 2 * i}')
    k("""
    buffer_store_dwordx4 v[4:7], v40, s[12:15], s18 offen
    buffer_store_dwordx4 v[8:11], v40, s[12:15], s19 offen
    """)
    if OPT['dbgtest']:
        k('''s_or_b32 s30, s2, s3
        s_cmp_lg_u32 s30, 0
        s_cbranch_scc1 L_ln_end
        s_load_dwordx2 s[32:33], s[0:1], 72
        s_waitcnt lgkmcnt(0)
        s_mov_b32 s34, 256
        s_mov_b32 s35, 0x20000
        v_mov_b32 v50, 0
        buffer_load_dword v51, v50, s[32:35], 0 offen sc0 sc1
        s_waitcnt vmcnt(0)
        v_readfirstlane_b32 s30, v51
        v_mov_b32 v51, 1
        s_nop 3
        buffer_store_dword v51, v50, s[32:35], 0 offen sc0 sc1
        s_cmp_eq_u32 s30, 0
        s_cbranch_scc1 L_ln_end
        s_mov_b32 s30, 60
        L_ln_spin:
        s_sleep 64
        s_sub_u32 s30, s30, 1
        s_cmp_lg_u32 s30, 0
        s_cbranch_scc1 L_ln_spin''')
    span_end(k, 50, 0)
    if OPT['k1w'] and OPT['k1pos'] == 2:
        k('s_mov_b64 exec, -1')
        warm()
    k('L_ln_end:\ns_endpgm')
    return k


LX = 139264
SYB = 4096
CX_O, CO_O = 2048, 2304
LR, LF, LT = 64, 80, 112


def ln_offsets(k, vld, vst, vex):
    k(f"""v_and_b32 v{vex}, 7, v0
    v_lshrrev_b32 v{vst}, 3, v0
    v_lshlrev_b32 v{vld}, 11, v{vex}
    v_lshl_add_u32 v{vld}, v{vst}, 4, v{vld}      ; tok*2048 + c*16
    v_lshrrev_b32 v{LT}, 2, v{vst}
    v_and_b32 v{vst}, 3, v{vst}
    v_lshlrev_b32 v{vst}, 8, v{vst}
    v_lshl_add_u32 v{vst}, v{LT}, 11, v{vst}
    v_lshl_add_u32 v{vst}, v{vex}, 4, v{vst}      ; (c>>2)*2048 + (c&3)*256 + tok*16
    v_lshlrev_b32 v{vex}, 5, v{vex}
    v_add_u32 v{vex}, {LX}, v{vex}""")


def ln_scalars(k, sj, sld, sst, t):
    k(f"""s_lshl_b32 s{sld}, s{sj}, 14
    s_lshl_b32 s{t}, s3, 9
    s_add_u32 s{sld}, s{sld}, s{t}          ; row0*2048 + w*512
    s_lshr_b32 s{sst}, s{sj}, 2
    s_lshl_b32 s{sst}, s{sst}, 16           ; tb*65536
    s_and_b32 s{t}, s{sj}, 2
    s_lshl_b32 s{t}, s{t}, 9
    s_add_u32 s{sst}, s{sst}, s{t}          ; sub*1024
    s_and_b32 s{t}, s{sj}, 1
    s_lshl_b32 s{t}, s{t}, 7
    s_add_u32 s{sst}, s{sst}, s{t}          ; tok0*16
    s_lshl_b32 s{t}, s3, 14
    s_add_u32 s{sst}, s{sst}, s{t}          ; w*8 k-steps""")


def ln_loads(vld, srd_, sld):
    return [f'buffer_load_dwordx4 {vr(LR + 4 * i, 4)}, v{vld}, s[{srd_}:{srd_ + 3}], s{sld} offen offset:{i * 128} ;#LX' for i in range(4)]


def ln_compute(k0, vex, extra=(), every=12):
    extra = list(extra)
    st = dict(n=0, hold=False)

    def k(text):
        for t in text.strip().split('\n'):
            t = t.strip()
            if not t:
                continue
            k0(t)
            st['n'] += 1
            if 'exec' in t:
                st['hold'] = t.endswith('0xff')
            if extra and st['n'] % every == 0 and not st['hold']:
                for x in extra.pop(0):
                    k0(x)

    def unpack():
        for i in range(16):
            k(f'v_lshlrev_b32 v{LF + 2 * i}, 16, v{LR + i}')
            k(f'v_and_b32 v{LF + 2 * i + 1}, 0xffff0000, v{LR + i}')

    def xsum(r, tmp):
        k('s_nop 1')
        k(f'v_add_f32_dpp v{r}, v{r}, v{r} row_ror:8 row_mask:0xf bank_mask:0xf')
        for sw in ('v_permlane16_swap_b32', 'v_permlane32_swap_b32'):
            k(f'v_mov_b32 v{tmp}, v{r}')
            k('s_nop 1')
            k(f'{sw} v{r}, v{tmp}')
            k(f'v_add_f32 v{r}, v{r}, v{tmp}')
    unpack()
    for i in range(8):
        k(f'v_pk_add_f32 {vr(LT + 2 * i, 2)}, {vr(LF + 4 * i, 2)}, {vr(LF + 4 * i + 2, 2)}')
    for n in (4, 2, 1):
        for i in range(n):
            k(f'v_pk_add_f32 {vr(LT + 2 * i, 2)}, {vr(LT + 4 * i, 2)}, {vr(LT + 4 * i + 2, 2)}')
    MW = LR
    k(f'v_add_f32 v{MW}, v{LT}, v{LT + 1}')
    xsum(MW, MW + 1)
    k(f'v_mul_f32 v{MW + 2}, {f32(-1 / 256)}, v{MW}')
    k(f'v_mul_f32 v{MW}, {f32(1 / 256)}, v{MW}')
    k(f'v_mov_b32 v{MW + 3}, v{MW + 2}')
    for i in range(16):
        k(f'v_pk_add_f32 {vr(LT + 2 * i, 2)}, {vr(LF + 2 * i, 2)}, {vr(MW + 2, 2)}')
    for i in range(4):
        k(f'v_pk_mul_f32 {vr(MW + 4 + 2 * i, 2)}, {vr(LT + 2 * i, 2)}, {vr(LT + 2 * i, 2)}')
    for i in range(4, 16):
        a = vr(MW + 4 + 2 * (i & 3), 2)
        k(f'v_pk_fma_f32 {a}, {vr(LT + 2 * i, 2)}, {vr(LT + 2 * i, 2)}, {a}')
    k(f'v_pk_add_f32 {vr(MW + 4, 2)}, {vr(MW + 4, 2)}, {vr(MW + 6, 2)}')
    k(f'v_pk_add_f32 {vr(MW + 8, 2)}, {vr(MW + 8, 2)}, {vr(MW + 10, 2)}')
    k(f'v_pk_add_f32 {vr(MW + 4, 2)}, {vr(MW + 4, 2)}, {vr(MW + 8, 2)}')
    k(f'v_add_f32 v{MW + 1}, v{MW + 4}, v{MW + 5}')
    xsum(MW + 1, MW + 4)
    E = LT
    k(f"""s_lshl_b32 s48, s3, 3
    v_add_u32 v{MW + 4}, s48, v{vex}
    s_mov_b64 exec, 0xff
    ds_write_b64 v{MW + 4}, {vr(MW, 2)}
    s_mov_b64 exec, -1
    s_waitcnt lgkmcnt(0)
    s_barrier
    ds_read_b128 {vr(E, 4)}, v{vex}
    ds_read_b128 {vr(E + 4, 4)}, v{vex} offset:16
    s_waitcnt lgkmcnt(0)
    v_add_f32 v{MW}, v{E}, v{E + 2}
    v_add_f32 v{MW + 1}, v{E + 4}, v{E + 6}
    v_add_f32 v{MW + 2}, v{E + 1}, v{E + 3}
    v_add_f32 v{MW + 3}, v{E + 5}, v{E + 7}
    v_add_f32 v{MW}, v{MW}, v{MW + 1}
    v_add_f32 v{MW + 2}, v{MW + 2}, v{MW + 3}
    v_mul_f32 v{MW}, 0.25, v{MW}                   ; mean
    v_sub_f32 v{E}, v{E}, v{MW}
    v_sub_f32 v{E + 2}, v{E + 2}, v{MW}
    v_sub_f32 v{E + 4}, v{E + 4}, v{MW}
    v_sub_f32 v{E + 6}, v{E + 6}, v{MW}
    v_mul_f32 v{E}, v{E}, v{E}
    v_mul_f32 v{E + 4}, v{E + 4}, v{E + 4}
    v_fmac_f32 v{E}, v{E + 2}, v{E + 2}
    v_fmac_f32 v{E + 4}, v{E + 6}, v{E + 6}
    v_add_f32 v{E}, v{E}, v{E + 4}
    v_fmac_f32 v{MW + 2}, {f32(256.0)}, v{E}
    v_mul_f32 v{MW + 2}, {f32(1 / 1024)}, v{MW + 2}   ; variance
    v_cvt_pk_bf16_f32 v{MW + 1}, v{MW}, v{MW + 2}
    v_lshlrev_b32 v{MW}, 16, v{MW + 1}
    v_and_b32 v{MW + 2}, 0xffff0000, v{MW + 1}
    v_add_f32 v{MW + 2}, {f32(1e-5)}, v{MW + 2}
    v_cvt_pk_bf16_f32 v{MW + 2}, v{MW + 2}, v{MW + 2}
    v_and_b32 v{MW + 2}, 0xffff0000, v{MW + 2}
    v_sqrt_f32 v{MW + 2}, v{MW + 2}
    v_sub_f32 v{E}, 0, v{MW}
    v_sub_f32 v{E + 1}, 0, v{MW}
    v_cvt_pk_bf16_f32 v{MW + 2}, v{MW + 2}, v{MW + 2}
    v_and_b32 v{MW + 2}, 0xffff0000, v{MW + 2}
    v_rcp_f32 v{E + 2}, v{MW + 2}
    v_rcp_f32 v{E + 3}, v{MW + 2}
    """)
    for i in range(16):
        k(f'v_pk_add_f32 {vr(LF + 2 * i, 2)}, {vr(LF + 2 * i, 2)}, {vr(E, 2)}')
    for i in range(16):
        k(f'v_cvt_pk_bf16_f32 v{LR + i}, v{LF + 2 * i}, v{LF + 2 * i + 1}')
    unpack()
    for i in range(16):
        k(f'v_pk_mul_f32 {vr(LF + 2 * i, 2)}, {vr(LF + 2 * i, 2)}, {vr(E + 2, 2)}')
    for i in range(16):
        k(f'v_cvt_pk_bf16_f32 v{LR + i}, v{LF + 2 * i}, v{LF + 2 * i + 1}')


def ln_stores(vst, sst):
    out = []
    for i in range(4):
        out.append(f'buffer_store_dwordx4 {vr(LR + 4 * i, 4)}, v{vst}, s[4:7], s{sst} offen sc0 sc1 ;#LS')
        if i < 3:
            out.append(f's_add_u32 s{sst}, s{sst}, 4096')
    return out

GSLOT = 45056
ABASE = 32768
KSLOT = lambda i: 4 + ((i + 3) & 3)
VSLOT = lambda i: (i + 1) & 3
S_ = lambda b, kvt, qt: b * 64 + ((kvt >> 1) * 4 + qt) * 8 + (kvt & 1) * 4
P_ = lambda b, u, qt: b * 64 + (u * 4 + qt) * 8
NEGM = lambda qt: 128 + 4 * qt
ONES = 144
VKA = 148
VVA = 152
VKD = 160
VVD = 164
VLN = 166
VPFO = 167
VMT = 168
VL = 204
VT = 208
RPV, RPD = 250, 252
HG = lambda p, tt: (64 + 8 * (2 * p + tt)) if 2 * p + tt < 10 else (172 + 8 * (2 * p + tt - 10))
HACC = lambda nt, tt: HG(nt >> 1, tt) + 4 * (nt & 1)
PWQ, PW1, PQ0, PCQ, P10, PC1 = 2, 6, 13, 21, 29, 31
OACC = lambda dt, qt: (dt * 4 + qt) * 4
QF = lambda qt, s: 128 + (qt * 4 + s) * 4
XN = lambda b, tt, s: 128 + b * 32 + (tt * 2 + s) * 4
RING = 192
LACC = lambda qt: 224 + 4 * qt
NR1 = 11


def lane_grc(k, g, r, c, lane=0):
    k(f"""v_lshrrev_b32 v{g}, 4, v{lane}
    v_bfe_u32 v{r}, v{lane}, 2, 2
    v_and_b32 v{c}, 3, v{lane}""")


def p1_dmas(tag, wtag):
    g = []
    for j in range(4):
        g.append((['s_add_u32 m0, s40, s45'] if j == 0 else [],
                  f'buffer_load_dwordx4 v{PWQ + j}, s[8:11], s38 offen offset:{j * 1024} lds',
                  ['s_add_u32 s38, s38, 0x80000'] if j == 3 else []))
    for j in range(7):
        g.append(([f's_add_u32 m0, s40, s{46 + (j >> 2)}'] if j in (0, 4) else [],
                  f'buffer_load_dwordx4 v{PW1 + j}, s[12:15], s39 offen offset:{(j & 3) * 1024} lds',
                  ['s_add_u32 s39, s39, 0x70000', 's_mov_b32 s41, s49', 's_mov_b32 s49, s40', f's_add_u32 s40, s40, {GSLOT}',
                   f's_cmp_lt_u32 s40, {3 * GSLOT}', 's_cselect_b32 s40, s40, 0'] if j == 6 else []))
    return g


def xn_loads(b):
    g = []
    for t in range(2):
        for s in range(2):
            for sub in range(2):
                g.append(([], f'buffer_load_dwordx4 {ar(XN(b, 2 * t + sub, s), 4)}, v{VLN}, s[4:7], s{36 + t} offen '
                              f'offset:{s * 2048 + sub * 1024}{" sc1" if OPT["mln"] and OPT["xsc"] else ""} ;#X',
                          [f's_add_u32 s{36 + t}, s{36 + t}, 4096'] if s and sub else []))
    return g


def kdma(i, tag):
    return [([f's_add_u32 m0, s45, {ABASE + KSLOT(i) * 16384}'] if j == 0 else [],
             f'buffer_load_dwordx4 v{VKD + j}, s[16:19], s43 offen offset:{j * 1024} lds',
             ['s_add_u32 s43, s43, 16384'] if j == 3 else []) for j in range(4)]


def vdma(i, tag):
    return [([f's_add_u32 m0, s45, {ABASE + VSLOT(i) * 16384}'] if j == 0 else [],
             f'buffer_load_dwordx4 v{VVD + (j & 1)}, s[20:23], s44 offen offset:{j * 1024} lds',
             ['s_add_u32 s44, s44, 16384'] if j == 3 else []) for j in range(4)]


def flat(vm):
    out = []
    for pre, v, post in vm:
        out += pre + (['s_nop 0'] if pre else []) + [v] + post
    return out


def sched_vmem(G, fns, gaps):
    prev = -10 ** 6
    for n, (fn, g) in enumerate(zip(fns, gaps)):
        while not G.fits(g, 8):
            g += 1
        pre, _, post = fn(0)
        G.put(g, lambda i, fn=fn: [fn(i)[1]], 8, kind='vm')
        for j in range(len(pre)):
            G.place(max(prev + 1, g - 3, 0), g - 1, g - 1, lambda i, fn=fn, j=j: [fn(i)[0][j]], 4, kind='vm', pack=True)
        lo = g + 1
        nxt = gaps[n + 1] if n + 1 < len(gaps) else g + 8
        for j in range(len(post)):
            lo = G.place(lo, g + 6, lo, lambda i, fn=fn, j=j: [fn(i)[2][j]], 4, kind='vm')
        prev = g


P1_SEQ = ['Q0', 'F0', 'Q1', 'F1', 'Q2', 'F2', 'Q3', 'F3', 'Q4', 'F4', 'Q5', 'F5', 'F6', 'Q6', 'Q7']
P1_GB = 103


def p1_frags():
    fr = []
    for gi, name in enumerate(P1_SEQ):
        g0, x = 8 * gi, int(name[1:])
        if name[0] == 'Q':
            for s in range(2):
                fr.append(('Q', x, s, g0, g0 + 6 + s))
        else:
            for e in range(2):
                for s in range(2):
                    fr.append(('F', 2 * x + e, s, g0, g0 + 4 * e + 2 + s))
    return fr


def p1_mfmas(b):
    mf, n = [], 0
    for name in P1_SEQ:
        x = int(name[1:])
        if name[0] == 'Q':
            for tt in range(4):
                for s in range(2):
                    a = ar(RING + ((n + s) % NR1) * 4, 4)
                    mf.append(f'{MF} {ar(OACC(x, tt), 4)}, {a}, {ar(XN(b, tt, s), 4)}, {ar(OACC(x, tt), 4)}')
            n += 2
        else:
            for e in range(2):
                for tt in range(2):
                    for s in range(2):
                        a = ar(RING + ((n + 2 * e + s) % NR1) * 4, 4)
                        h = vr(HACC(2 * x + e, tt), 4)
                        mf.append(f'{MF} {h}, {a}, {ar(XN(b, tt, s), 4)}, {h}')
            n += 4
    return mf


def p1_read(n, hh):
    kind, x, s, _, _ = p1_frags()[n]
    d = RING + (n % NR1) * 4 + 2 * hh
    if kind == 'Q':
        return f'ds_read_b64_tr_b16 {ar(d, 2)}, v{PCQ + x} offset:{s * 8192 + hh * 1024} ;@R G 0'
    return f'ds_read_b64_tr_b16 {ar(d, 2)}, v{PC1 + (x & 1)} offset:{(x >> 1) * 64 + (s * 32 + hh * 4) * 448} ;@R G 0'


def p1_sched(mode):
    G = Gaps(120)
    fr = p1_frags()
    for gi in range(len(P1_SEQ)):
        regs = [ar(RING + (n % NR1) * 4, 4) for n, f in enumerate(fr) if f[3] == 8 * gi]
        G.put(8 * gi - 1, lambda i, regs=regs: [('need', regs)], 4, prio=9, kind='need')
    G.put(P1_GB, lambda i: [('vmwait', [f'G{(i + 1) & 1}'], ' lgkmcnt(0)'), 's_barrier ;@ROT G'], 8, kind='bar')
    G.put(118, lambda i: [('vmwait', ['X'])], 4, prio=8, kind='bar')
    if mode == 't15' and OPT['mln']:
        G.put(108, lambda i: [('vmwait', ['K0']), 's_barrier'], 8, kind='k0bar')
    upd = {}
    g = P1_GB + 1
    if mode == 't14':
        G.put(90, lambda i: ['s_mov_b32 s41, s49'], 4, kind='bar')
    order = [('Q', 0), ('F', 0), ('F', 1)] + [('Q', d) for d in range(1, 8)]
    for kd, x in order:
        ins = f'v_add_u32 v{PCQ + x}, s41, v{PQ0 + x}' if kd == 'Q' else f'v_add_u32 v{PC1 + x}, s41, v{P10 + x}'
        g = G.place(g, 119, g, lambda i, ins=ins: [ins], 4, kind='bar', prio=1)
        upd[(kd, x)] = g
    if mode == 'loop':
        fns = [lambda i, j=j: xn_loads((i + 1) & 1)[j] for j in range(8)] + \
              [lambda i, j=j: p1_dmas(f'G{i & 1}', '+2')[j] for j in range(11)]
        gaps = [2 + 5 * j for j in range(8)] + [42 + (11 * j) // 2 for j in range(11)]
    elif mode == 't14' and OPT['mln']:
        fns = [lambda i, j=j: xn_loads(1)[j] for j in range(8)] + \
              [lambda i, j=j: (kdma(0, 'K0') + vdma(0, 'V0') + vdma(1, 'V1'))[j] for j in range(12)]
        gaps = [2 + 5 * j for j in range(8)] + [42 + 5 * j for j in range(12)]
    elif mode == 't14':
        fns = [lambda i, j=j: xn_loads(1)[j] for j in range(8)] + \
              [lambda i, j=j: (vdma(0, 'V0') + vdma(1, 'V1'))[j] for j in range(8)]
        gaps = [2 + 6 * j for j in range(8)] + [50 + 6 * j for j in range(8)]
    else:
        fns = [lambda i, j=j: (kdma(1, 'K1') + kdma(2, 'K2') + kdma(3, 'K3'))[j] for j in range(12)]
        gaps = [2 + 9 * j for j in range(12)]
    sched_vmem(G, fns, gaps)
    prev = -10 ** 6
    for n, (kd, x, s, fu, lu) in enumerate(fr):
        pl = fr[n - NR1][4] - (120 if n < NR1 else 0)
        lo = max(pl + 1, prev, upd[(kd, x if kd == 'Q' else x & 1)] - 120 + 1)
        hi = min(fu - 6, P1_GB - 3)
        assert lo <= hi, (n, lo, hi)
        for hh in range(2):
            prev = G.place(lo, hi, fu - OPT['la'], lambda i, n=n, hh=hh: [p1_read(n, hh)], 4, kind='rd', pack=True)
            lo = prev
    return G


def k_read(i, n):
    kvt, s = divmod(n, 4)
    return f'ds_read_b128 {ar(RING + (n & 7) * 4, 4)}, v{VKA + s} offset:{(KSLOT(i) - 4) * 16384 + kvt * 4096} ;@R A {KSLOT(i)}'


def v_read(i, n, hh):
    dt, u = divmod(n - 16, 2)
    return (f'ds_read_b64_tr_b16 {ar(RING + (n & 7) * 4 + 2 * hh, 2)}, v{VVA + dt} '
            f'offset:{VSLOT(i) * 16384 + u * 8192 + hh * 4096} ;@R A {VSLOT(i)}')


def elem_reg(b, e):
    kvt, qt, r = e >> 4, (e >> 2) & 3, e & 3
    return S_(b, kvt, qt) + r


def sm_exp(b, e):
    r = elem_reg(b, e)
    return f'v_exp_f32 v{r}, v{r}'


def sm_add(b, e):
    qt = (e >> 2) & 3
    return f'v_add_f32 v{VL + qt}, v{VL + qt}, v{elem_reg(b, e)}'


def sm_cvt(b, e):
    kvt, qt, r = e >> 4, (e >> 2) & 3, e & 3
    src = elem_reg(b, e)
    return f'v_cvt_pk_bf16_f32 v{P_(b, kvt >> 1, qt) + 2 * (kvt & 1) + (r >> 1)}, v{src - 1}, v{src}'


def qk_mfmas(bS, c0=None):
    mf = []
    for kvt in range(4):
        for qt in range(4):
            for s in range(4):
                d = vr(S_(bS, kvt, qt), 4)
                c = d if s else (c0 if c0 is not None else vr(NEGM(qt), 4))
                mf.append(f'{MF} {d}, {ar(RING + ((kvt * 4 + s) & 7) * 4, 4)}, {ar(QF(qt, s), 4)}, {c}')
    return mf


def pv_mfmas(bS):
    mf = []
    for dt in range(8):
        for qt in range(4):
            for u in range(2):
                o = ar(OACC(dt, qt), 4)
                mf.append(f'{MF} {o}, {ar(RING + ((16 + dt * 2 + u) & 7) * 4, 4)}, {vr(P_(bS, u, qt), 4)}, {o}')
        if OPT['msum']:
            qt, u = dt >> 1, dt & 1
            mf.append(f'{MF} {ar(LACC(qt), 4)}, {vr(ONES, 4)}, {vr(P_(bS, u, qt), 4)}, {ar(LACC(qt), 4)}')
    return mf


def rp_item(i):
    if i & 1 == 0:
        return ([], f'buffer_load_dwordx4 {vr(RPD, 4)}, v{RPV + ((i >> 1) & 1)}, s[68:71], s65 offen ;#RP', ['s_add_u32 s65, s65, 8192'])
    return ([], f'buffer_store_dwordx4 {vr(RPD, 4)}, v{VLN}, s[96:99], s34 offen ;#RS', ['s_add_u32 s34, s34, 1024'])


def att_sched():
    PW = 9 if OPT['msum'] else 8
    NG = 64 + 8 * PW
    G = Gaps(NG)
    fu = [16 * (n >> 2) for n in range(16)] + [64 + PW * (n >> 1) for n in range(16)]
    lu = [16 * (n >> 2) + 12 + (n & 3) for n in range(16)] + [64 + PW * (n >> 1) + 6 + (n & 1) for n in range(16)]
    for g0 in sorted(set(fu)):
        regs = [ar(RING + (n & 7) * 4, 4) for n in range(32) if fu[n] == g0]
        G.put(g0 - 1, lambda i, regs=regs: [('need', regs)], 4, prio=9, kind='need')
    GB = lu[24] - 3
    G.put(GB, lambda i: [('vmwait', [f'V{(i + 1) & 3}', f'K{(i + 2) & 3}']), 's_barrier'], 8, kind='bar')
    fns = [lambda i, j=j: (vdma(i + 2, f'V{(i + 2) & 3}') + kdma(i + 4, f'K{i & 3}'))[j] for j in range(8)]
    gaps = [4 + (NG * j) // 8 for j in range(8)]
    if OPT['rp']:
        fns.append(lambda i: rp_item(i))
        gaps.append(NG - 6)
    elif OPT['warm']:
        fns.append(lambda i: ([], f'buffer_load_dword v{VT + 40}, v{VPFO}, s[68:71], s65 offen ;#PF', ['s_add_u32 s65, s65, 2048'])
                   if (i & 3) == 1 else ([], 's_nop 0', ['s_nop 0']))
        gaps.append(NG - 6)
    sched_vmem(G, fns, gaps)
    X0 = OPT['x0']
    eg = []
    prev = -1
    for e in range(64):
        ready = 16 * (e >> 4) + 4 * ((e >> 2) & 3) + 3 + 5
        prev = G.place(max(ready, prev + 1), NG + 58, X0 + (e * NG) // 64, lambda i, e=e: [sm_exp((i + 1) & 1, e)], 8, kind='exp')
        eg.append(prev)
    prev = -10 ** 6
    for n in range(32):
        pl = lu[n - 8] - (NG if n < 8 else 0)
        lo = max(pl + 1, prev)
        if n < 16:
            lo = max(lo, GB + 1 - NG)
            prev = G.place(lo, fu[n] - 6, fu[n] - OPT['la'], lambda i, n=n: [k_read(i + 1, n)], 4, kind='rd', pack=True)
        else:
            for hh in range(2):
                prev = G.place(lo, fu[n] - 6, fu[n] - OPT['la'], lambda i, n=n, hh=hh: [v_read(i, n, hh)], 4, kind='rd', pack=True)
                lo = prev
    prev = -1
    for e in range(1, 64, 2):
        prev = G.place(max(eg[e] + 1, prev), NG + 61, eg[e] + 1, lambda i, e=e: [sm_cvt((i + 1) & 1, e)], 4, kind='cvt', pack=True, prio=2)
        if not OPT['msum']:
            for x in (e - 1, e):
                G.place(eg[e] + 1, prev, eg[e] + 1, lambda i, x=x: [sm_add((i + 1) & 1, x)], 4, kind='cvt', prio=1)
    return G, NG


def drop(items):
    d = []
    if OPT['nodma']:
        d += ['buffer_load', 's_add_u32']
    if OPT['nobar']:
        d += ['s_barrier']
    if OPT['nolds']:
        d += ['ds_read']
    if OPT['noexp']:
        d += ['v_exp']
    if OPT['nocvt']:
        d += ['v_cvt']
    return [x for x in items if x != 's_nop 0' and (isinstance(x, tuple) or not any(x.startswith(p) for p in d))]


def xgroup(k, op, regs, tmp):
    for sw in ('v_permlane32_swap_b32', 'v_permlane16_swap_b32'):
        for j, r in enumerate(regs):
            k(f'v_mov_b32 v{tmp + j}, v{r}')
        k('s_nop 1')
        for j, r in enumerate(regs):
            k(f'{sw} v{r}, v{tmp + j}')
        for j, r in enumerate(regs):
            k(f'{op} v{r}, v{r}, v{tmp + j}')


def flush(k, lin):
    k('\n'.join(lin.out))
    lin.out = []


def gen_k2():
    k = Kernel('att_kernel')
    span_begin(k)
    stamp2(k, 0)
    C = math.log2(math.e) / math.sqrt(128.0)
    k("""
    s_cmp_ge_u32 s2, 256
    s_cbranch_scc1 L_k2_end
    s_load_dwordx4 s[52:55], s[0:1], 8      ; K, V
    s_load_dwordx2 s[56:57], s[0:1], 24     ; wq
    s_load_dwordx2 s[58:59], s[0:1], 48     ; w1
    s_load_dwordx2 s[60:61], s[0:1], 80     ; ws
    s_load_dwordx2 s[62:63], s[0:1], 72     ; dbg
    s_load_dwordx2 s[96:97], s[0:1], 32     ; wo
    s_load_dwordx2 s[98:99], s[0:1], 56     ; w2
    s_load_dwordx2 s[66:67], s[0:1], 0      ; x
    v_lshrrev_b32 v1, 6, v0
    v_and_b32 v0, 63, v0
    s_and_b32 s32, s2, 7
    v_readfirstlane_b32 s3, v1
    s_lshl_b32 s32, s32, 2
    s_lshr_b32 s33, s2, 3
    s_and_b32 s34, s33, 3
    s_add_u32 s32, s32, s34                 ; head
    s_lshr_b32 s33, s33, 2                  ; q block
    s_and_b32 s34, s32, 1                   ; parity
    s_lshl_b32 s45, s3, 12                  ; w*4096
    s_mul_i32 s46, s3, 7168
    s_add_u32 s46, s46, 16384
    s_add_u32 s47, s46, 4096
    s_lshl_b32 s35, s33, 3
    s_lshl_b32 s50, s3, 1
    s_add_u32 s35, s35, s50
    s_add_u32 s50, s35, s34
    s_xor_b32 s51, s34, 1
    s_add_u32 s51, s35, s51
    s_lshl_b32 s36, s50, 16
    s_lshl_b32 s37, s51, 16
    s_mov_b32 s38, 0
    s_mov_b32 s39, 0
    s_mov_b32 s40, 0
    s_mov_b32 s41, 0
    s_mov_b32 s43, 0
    s_mov_b32 s44, 0
    s_mov_b32 s64, 0
    """)
    stamp(k, 0)
    T0, T1, T2, T3, T4, T5 = range(VT, VT + 6)
    VLD, VST, VEX, VPF, VCK, VZ2, VAT = range(VT + 8, VT + 15)
    MLN = OPT['mln']
    lin = Lin()

    def srds():
        srd_off(k, 4, 's60', 's61', XN_OFF, 0x400000)
        k('s_lshl_b32 s48, s32, 8')
        srd_off(k, 8, 's56', 's57', 's48', 0)
        k('s_mov_b32 s10, 0x800000\ns_sub_u32 s10, s10, s48')
        k('s_lshr_b32 s48, s32, 1\ns_mul_i32 s48, s48, 448')
        srd_off(k, 12, 's58', 's59', 's48', 0)
        k('s_sub_u32 s14, 0x700000, s48')
        k('s_lshl_b32 s48, s32, 19')
        srd_off(k, 16, 's52', 's53', 's48', 0x80000)
        srd_off(k, 20, 's54', 's55', 's48', 0x80000)

    def pf_rows(row0, rw):
        k(f'''s_lshr_b32 s48, s2, 3
        s_lshl_b32 s48, s48, 1
        s_and_b32 s49, s3, 1
        s_add_u32 s48, s48, s49
        s_mul_i32 s48, s48, {rw // 2}
        s_add_u32 s48, s48, {row0}
        s_mul_i32 s48, s48, s65''')
        for r in range(0, rw // 2, 8):
            if rw // 2 - r < 8:
                m = (1 << (8 * (rw // 2 - r))) - 1
                k(f's_mov_b32 exec_lo, {m & 0xffffffff:#x}\ns_mov_b32 exec_hi, {m >> 32:#x}')
            lin.add(f'buffer_load_dword v{VT + 40}, v{VPF}, s[68:71], s48 offen ;#PF')
            flush(k, lin)
            if rw // 2 - r < 8:
                k('s_mov_b64 exec, -1')
            elif r + 8 < rw // 2:
                k('s_lshl_b32 s49, s65, 3\ns_add_u32 s48, s48, s49')
    if MLN:
        ln_offsets(k, VLD, VST, VEX)
        k(f'''v_lshlrev_b32 v{VCK}, 7, v0
        v_mov_b32 v{VZ2}, 0
        s_mov_b32 s42, s2
        s_waitcnt lgkmcnt(0)''')
        stamp2(k, 1)
        srd(k, 72, 's66', 's67', 0x400000)
        k(f's_lshl_b32 s48, s33, 12\ns_add_u32 s48, s48, {F_OFF}')
        srd_off(k, 28, 's60', 's61', 's48', SYB)
        srd(k, 24, 's62', 's63', 256)
        ln_scalars(k, 42, 66, 67, 48)
        k(f'''s_and_b32 s48, s2, 31
        s_xor_b32 s49, s3, 3
        s_or_b32 s64, s48, s49
        s_cmp_lg_u32 s64, 0
        s_cbranch_scc1 L_nolead1
        s_mov_b64 exec, 0xfffff
        buffer_store_dword v{VZ2}, v{VCK}, s[28:31], 0 offen sc0 sc1
        s_mov_b64 exec, -1
        L_nolead1:''')
        lin.run(ln_loads(VLD, 72, 66))
        flush(k, lin)
        if OPT['pf1'] or OPT['pf2'] or OPT['pf3'] or OPT['pf4']:
            k(f'''
            s_and_b32 s48, s2, 7
            s_cmp_lt_u32 s3, 2
            s_cselect_b32 s68, s56, s58
            s_cselect_b32 s69, s57, s59
            s_mov_b32 s70, 896
            s_cselect_b32 s70, 1024, s70
            s_cselect_b32 s49, 8, 7
            s_mul_i32 s48, s48, s70
            s_add_u32 s68, s68, s48
            s_addc_u32 s69, s69, 0
            s_lshl_b32 s65, s70, 3
            s_lshl_b32 s70, s70, 13
            s_sub_u32 s70, s70, s48
            s_mov_b32 s71, 0x20000
            v_lshrrev_b32 v{T2}, 3, v0
            v_mul_lo_u32 v{VPF}, v{T2}, s65
            v_and_b32 v{T5}, 7, v0
            v_lshl_add_u32 v{VPF}, v{T5}, 7, v{VPF}
            v_mov_b32 v{T2}, 0x7fffffff
            v_cmp_le_u32 vcc, s49, v{T5}
            s_nop 1
            v_cndmask_b32 v{VPF}, v{VPF}, v{T2}, vcc
            ''')
        if OPT['pf1']:
            pf_rows(0, OPT['pf1'])
        srds()
    k(f"""
    v_lshlrev_b32 v{VLN}, 4, v0
    v_lshrrev_b32 v{T0}, 4, v0              ; l>>4
    v_and_b32 v{T1}, 15, v0                 ; l&15
    s_lshl_b32 s48, s3, 4
    v_add_u32 v{T3}, s48, v{T0}             ; row = 16w + (l>>4)
    """)
    for j in range(4):
        k(f"""v_or_b32 v{T2}, {(j >> 1) << 2}, v{T0}
        v_lshlrev_b32 v{T2}, 1, v{T2}
        v_xor_b32 v{T2}, v{T2}, v{T1}
        v_lshlrev_b32 v{T2}, 4, v{T2}
        v_lshl_add_u32 v{PWQ + j}, v{T3}, 13, v{T2}""")
        if j:
            k(f'v_add_u32 v{PWQ + j}, {j * 31744}, v{PWQ + j}')
    k('s_mul_i32 s48, s3, 114688')
    for j in range(7):
        k(f"""v_add_u32 v{T2}, {64 * j}, v0
        v_mul_u32_u24 v{T4}, 2341, v{T2}
        v_lshrrev_b32 v{T4}, 16, v{T4}          ; row = x/28
        v_mul_u32_u24 v{T5}, 28, v{T4}
        v_sub_u32 v{T2}, v{T2}, v{T5}           ; pos
        v_lshrrev_b32 v{T5}, 2, v{T4}
        v_and_b32 v{T5}, 2, v{T5}
        v_xor_b32 v{T2}, v{T2}, v{T5}
        v_mul_u32_u24 v{PW1 + j}, 7168, v{T4}
        v_lshl_add_u32 v{PW1 + j}, v{T2}, 4, v{PW1 + j}
        v_add_u32 v{PW1 + j}, s48, v{PW1 + j}""")
        if j & 3:
            k(f'v_subrev_u32 v{PW1 + j}, {(j & 3) * 1024}, v{PW1 + j}')
    for j in range(4):
        k(f"""v_add_u32 v{T2}, {4 * j}, v{T0}
        v_xor_b32 v{T2}, v{T2}, v{T1}
        v_lshlrev_b32 v{T2}, 4, v{T2}
        v_lshl_add_u32 v{VKD + j}, v{T3}, 8, v{T2}""")
    if MLN:
        npf = sum(1 for t, _ in lin.vm if t == 'PF')
        k(f'''s_cmp_lg_u32 s64, 0
        s_cbranch_scc1 L_nolead2
        s_waitcnt vmcnt({4 + npf})
        v_mov_b32 v{VAT}, 1
        s_lshl_b32 s48, s33, 5
        s_mov_b64 exec, 1
        buffer_store_dword v{VAT}, v{VZ2}, s[24:27], s48 offen sc0 sc1
        s_mov_b64 exec, -1
        L_nolead2:
        s_mov_b32 s64, 0''')
    else:
        k('s_waitcnt lgkmcnt(0)')
        srds()
        lin.run(flat(p1_dmas('G0', '+0')))
        lin.run(flat(xn_loads(0)))
        lin.run(flat(p1_dmas('G1', '+1')))
        lin.run(flat(kdma(0, 'K0')))
        flush(k, lin)
    if OPT['p1pf']:
        k(f'''
        s_and_b32 s48, s2, 7
        s_cmp_lt_u32 s3, 2
        s_cselect_b32 s68, s56, s58
        s_cselect_b32 s69, s57, s59
        s_mov_b32 s70, 896
        s_cselect_b32 s70, 1024, s70
        s_mul_i32 s48, s48, s70
        s_add_u32 s68, s68, s48
        s_addc_u32 s69, s69, 0
        s_lshl_b32 s65, s70, 3
        s_lshl_b32 s70, s70, 13
        s_sub_u32 s70, s70, s48
        s_mov_b32 s71, 0x20000
        s_lshr_b32 s48, s2, 3
        s_lshl_b32 s48, s48, 1
        s_and_b32 s49, s3, 1
        s_add_u32 s48, s48, s49
        s_mul_i32 s48, s48, 7
        s_add_u32 s48, s48, 128
        v_lshrrev_b32 v{T2}, 3, v0
        v_add_u32 v{T4}, s48, v{T2}
        v_mul_lo_u32 v{T4}, v{T4}, s65
        v_and_b32 v{T5}, 7, v0
        v_lshl_add_u32 v{T4}, v{T5}, 7, v{T4}
        v_cmp_lt_u32 vcc, 6, v{T2}
        v_mov_b32 v{T2}, 0x7fffffff
        s_mul_i32 s65, s65, 448
        v_cndmask_b32 v{T4}, v{T4}, v{T2}, vcc
        ''')
        lin.add(f'buffer_load_dword v{VT + 40}, v{T4}, s[68:71], 0 offen ;#PF')
        if OPT['p1pf'] == 1:
            lin.add(f'buffer_load_dword v{VT + 40}, v{T4}, s[68:71], s65 offen ;#PF')
        flush(k, lin)
    if not MLN:
        srd_off(k, 24, 's60', 's61', H_OFF, 0xE00000)
        srd_off(k, 28, 's60', 's61', O_OFF, 0x1000000)
    for j in range(2):
        k(f"""v_add_u32 v{T2}, {4 * j}, v{T0}
        v_lshlrev_b32 v{T2}, 1, v{T2}
        v_xor_b32 v{T2}, v{T2}, v{T1}
        v_lshlrev_b32 v{T2}, 4, v{T2}
        v_lshl_add_u32 v{VVD + j}, v{T3}, 8, v{T2}""")
    for s in range(4):
        k(f"""v_add_u32 v{T2}, {4 * s}, v{T0}
        v_xor_b32 v{T2}, v{T2}, v{T1}
        v_lshlrev_b32 v{T2}, 4, v{T2}
        v_lshl_add_u32 v{VKA + s}, v{T1}, 8, v{T2}
        v_add_u32 v{VKA + s}, {ABASE + 4 * 16384}, v{VKA + s}""")
    lane_grc(k, T0, T1, T2)
    k(f"""
    v_lshlrev_b32 v{T2}, 3, v{T2}           ; c*8
    v_lshl_add_u32 v{T3}, v{T0}, 2, v{T1}   ; V row = 4g + r
    v_and_b32 v{T4}, 7, v{T3}
    v_lshl_add_u32 v{T3}, v{T3}, 8, v{T2}
    v_add_u32 v{T3}, {ABASE}, v{T3}
    """)
    for dt in range(8):
        k(f"""v_xor_b32 v{T5}, {dt}, v{T4}
        v_lshl_add_u32 v{VVA + dt}, v{T5}, 5, v{T3}""")
    k(f"""
    v_lshl_add_u32 v{T3}, v{T0}, 3, v{T1}   ; w row = 8g + r
    v_and_b32 v{T0}, 1, v{T0}               ; g&1
    v_lshl_or_b32 v{T4}, v{T0}, 2, v{T1}    ; f
    v_mul_u32_u24 v{T1}, 448, v{T3}
    v_add_u32 v{T1}, v{T1}, v{T2}
    v_add_u32 v{T1}, 16384, v{T1}
    v_lshl_add_u32 v{T3}, v{T3}, 8, v{T2}
    """)
    for dt in range(8):
        k(f"""v_xor_b32 v{T5}, {dt}, v{T4}
        v_lshl_add_u32 v{PQ0 + dt}, v{T5}, 5, v{T3}
        v_mov_b32 v{PCQ + dt}, v{PQ0 + dt}""")
    for p in range(2):
        k(f"""v_xor_b32 v{T5}, {p}, v{T0}
        v_lshl_add_u32 v{P10 + p}, v{T5}, 5, v{T1}
        v_mov_b32 v{PC1 + p}, v{P10 + p}""")
    def rp_setup():
        if OPT['rp']:
            k(f'''
            v_lshrrev_b32 v{T0}, 4, v0
            v_and_b32 v{T1}, 15, v0
            s_and_b32 s49, s3, 1
            s_lshl_b32 s48, s2, 1
            s_add_u32 s48, s48, s49
            s_and_b32 s49, s48, 7            ; nb
            s_lshr_b32 s48, s48, 3
            s_cmp_lt_u32 s3, 2
            s_cselect_b32 s35, 16, 14        ; pieces
            s_cselect_b32 s68, s96, s98
            s_cselect_b32 s69, s97, s99
            s_mov_b32 s34, {WP_OFF}
            s_cselect_b32 s34, s34, {WP_OFF + 0x800000}
            s_mul_i32 s48, s48, s35
            s_lshl_b32 s65, s48, 13
            s_lshl_b32 s70, s49, 8
            s_add_u32 s65, s65, s70
            s_add_u32 s68, s68, s65
            s_addc_u32 s69, s69, 0
            s_lshl_b32 s70, s35, 13
            s_sub_u32 s70, s70, 1792
            s_mov_b32 s71, 0x20000
            s_mul_i32 s49, s49, s35
            s_lshl_b32 s49, s49, 6
            s_add_u32 s48, s48, s49
            s_lshl_b32 s48, s48, 10
            s_add_u32 s34, s34, s48
            s_add_u32 s96, s60, s34
            s_addc_u32 s97, s61, 0
            s_lshl_b32 s98, s35, 10
            s_mov_b32 s99, 0x20000
            s_mov_b32 s65, 0
            s_mov_b32 s34, 0
            ''')
            for j in range(2):
                k(f'''v_add_u32 v{T2}, {4 * j}, v{T0}
                v_lshlrev_b32 v{T2}, 1, v{T2}
                v_xor_b32 v{T2}, v{T2}, v{T1}
                v_lshlrev_b32 v{T2}, 4, v{T2}
                v_lshl_add_u32 v{RPV + j}, v{T0}, 11, v{T2}''')
        elif OPT['warm']:
            k(f'''
            v_lshlrev_b32 v{VPFO}, 6, v0
            v_mov_b32 v{T5}, 0x7fffffff
            v_cmp_lt_u32 vcc, 31, v0
            s_and_b32 s49, s3, 1
            s_lshl_b32 s48, s2, 1
            v_cndmask_b32 v{VPFO}, v{VPFO}, v{T5}, vcc
            s_add_u32 s48, s48, s49          ; 2*wg + (w&1)
            s_cmp_lt_u32 s3, 2
            s_mov_b32 s70, 14336
            s_cselect_b32 s70, 16384, s70
            s_cselect_b32 s68, s96, s98
            s_cselect_b32 s69, s97, s99
            s_mul_i32 s48, s48, s70
            s_add_u32 s68, s68, s48
            s_addc_u32 s69, s69, 0
            s_mov_b32 s71, 0x20000
            s_mov_b32 s65, 0
            ''')

    def zero_h(lo=0):
        for p in range(7):
            for tt in range(2):
                for i in range(8):
                    if HG(p, tt) >= lo:
                        k(f'v_mov_b32 v{HG(p, tt) + i}, 0')
    if not MLN:
        rp_setup()
    for i in range(4):
        k(f'v_mov_b32 v{ONES + i}, 0x3f803f80')
    for i in range(128):
        k(f'v_accvgpr_write_b32 a{i}, 0')
    zero_h(144 if MLN else 0)
    GL = p1_sched('loop')
    print('p1 overflow', GL.over)
    if MLN:
        if OPT['g0e'] == 1:
            lin.run(flat(p1_dmas('G0', '+0')))
            flush(k, lin)
        stamp2(k, 2)
        lin.add(('vmwait', ['LX']))
        flush(k, lin)
        stamp(k, 6)
        stamp2(k, 3)

        def kl(t):
            lin.add(t)
            flush(k, lin)
        ln_compute(kl, VEX, [flat([x]) for x in p1_dmas('G0', '+0')] if OPT['g0e'] == 2 else [])
        stamp2(k, 4)
        k(f'''s_cmp_lg_u32 s3, 0
        s_cbranch_scc1 L_nock
        s_lshl_b32 s35, s33, 5
        buffer_load_dword v{VCK}, v{VZ2}, s[24:27], s35 offen sc0 sc1
        L_nock:''')
        lin.run(ln_stores(VST, 67))
        flush(k, lin)
        if OPT['pf2']:
            pf_rows(OPT['pfr'], OPT['pf2'])
        if OPT['g0e'] == 3:
            lin.run(flat(p1_dmas('G0', '+0')))
            flush(k, lin)
        for i in list(range(80, 144)) + list(range(64, 80)):
            k(f'v_mov_b32 v{i}, 0')
        stamp2(k, 5)
        lin.add(('vmwait', ['LS']))
        flush(k, lin)
        stamp2(k, 6)
        lin.add('s_barrier')
        flush(k, lin)
        stamp(k, 7)
        stamp2(k, 7)
        k(f'''s_cmp_lg_u32 s3, 0
        s_cbranch_scc1 L_noatom
        s_mov_b32 s35, 256
        v_mov_b32 v{VAT}, 1
        L_ckl:
        v_readfirstlane_b32 s48, v{VCK}
        s_nop 1
        s_cmp_lg_u32 s48, 0
        s_cbranch_scc1 L_ckok
        s_lshl_b32 s48, s33, 5
        buffer_load_dword v{VCK}, v{VZ2}, s[24:27], s48 offen sc0 sc1
        s_sub_u32 s35, s35, 1
        s_waitcnt vmcnt(0)
        s_cmp_lg_u32 s35, 0
        s_cbranch_scc1 L_ckl
        s_branch L_noatom
        L_ckok:''')
        if OPT['lnto']:
            k(f's_and_b32 s48, s2, 31\ns_cmp_eq_u32 s48, 5\ns_cselect_b32 s48, 0, 1\nv_mov_b32 v{VAT}, s48')
        k(f'''s_mov_b64 exec, 1
        buffer_atomic_add v{VAT}, v{VZ2}, s[28:31], 0 offen offset:{CX_O} sc0 sc1
        s_mov_b64 exec, -1
        L_noatom:''')
        stamp2(k, 8)
        n0 = len(lin.vm)
        if OPT['g0e'] == 0:
            lin.run(flat(p1_dmas('G0', '+0')))
        if OPT['g1e']:
            lin.run(flat(p1_dmas('G1', '+1')))
        flush(k, lin)
        if OPT['pf3']:
            pf_rows(OPT['pfr'] + 32 * OPT['pf2'], OPT['pf3'])
        k(f'''s_cmp_lg_u32 s3, 0
        s_cbranch_scc1 L_pollend
        s_cmp_eq_u32 s35, 0
        s_cbranch_scc1 L_pollto
        s_waitcnt vmcnt({len(lin.vm) - n0})''')
        stamp2(k, 9)
        if OPT['pf4']:
            r0 = OPT['pfr'] + 32 * (OPT['pf2'] + OPT['pf3'])
            k(f'''v_readfirstlane_b32 s48, v{VAT}
            v_lshrrev_b32 v{T2}, 3, v0
            s_cmp_ge_u32 s48, {OPT['thr']}
            s_cbranch_scc1 L_nopf4
            s_and_b32 s48, s2, 7
            s_mul_i32 s48, s48, 896
            s_add_u32 s72, s58, s48
            s_addc_u32 s73, s59, 0
            s_sub_u32 s74, 0x700000, s48
            v_mul_u32_u24 v{T4}, 7168, v{T2}
            v_and_b32 v{T5}, 7, v0
            v_lshl_add_u32 v{T4}, v{T5}, 7, v{T4}
            v_mov_b32 v{T2}, 0x7fffffff
            v_cmp_le_u32 vcc, 7, v{T5}
            s_lshr_b32 s48, s2, 3
            s_mul_i32 s48, s48, {OPT['pf4']}
            v_cndmask_b32 v{T4}, v{T4}, v{T2}, vcc
            s_add_u32 s48, s48, {r0}
            s_mul_i32 s49, s48, 7168
            s_lshl_b32 s48, s48, 13''')
            for r in range(0, OPT['pf4'], 8):
                if OPT['pf4'] - r < 8:
                    m = (1 << (8 * (OPT['pf4'] - r))) - 1
                    k(f's_mov_b32 exec_lo, {m & 0xffffffff:#x}\ns_mov_b32 exec_hi, {m >> 32:#x}')
                k(f'''buffer_load_dword v{VT + 40}, v{VPF}, s[68:71], s48 offen ;#PF
                buffer_load_dword v{VT + 40}, v{T4}, s[72:75], s49 offen ;#PF
                s_add_u32 s48, s48, 65536
                s_add_u32 s49, s49, 57344''')
            k('s_mov_b64 exec, -1\nL_nopf4:')
        k(f'''v_add_u32 v{VAT}, 1, v{VAT}
        L_poll:
        s_nop 0
        v_readfirstlane_b32 s48, v{VAT}
        s_nop 1
        s_cmp_ge_u32 s48, 32
        s_cbranch_scc1 L_polled
        buffer_load_dword v{VAT}, v{VZ2}, s[28:31], 0 offen offset:{CX_O} sc0 sc1
        s_sub_u32 s35, s35, 1
        s_waitcnt vmcnt(0)
        s_cmp_lg_u32 s35, 0
        s_cbranch_scc1 L_poll
        L_pollto:
        v_mov_b32 v{VAT}, 0
        L_polled:
        s_mov_b64 exec, 1
        ds_write_b32 v{VEX}, v{VAT} offset:512
        s_mov_b64 exec, -1
        s_waitcnt lgkmcnt(0)''')
        k('L_pollend:')
        if OPT['st2']:
            k('s_mov_b32 s91, s35')
        stamp2(k, 10)
        lin.add(('vmwait', ['G0']))
        flush(k, lin)
        stamp2(k, 11)
        lin.add('s_barrier')
        flush(k, lin)
        stamp2(k, 12)
        k(f'''ds_read_b32 v{VAT}, v{VZ2} offset:{0}
        '''.replace(f'v{VZ2} offset:0', f'v{VEX} offset:512'))
        srd_off(k, 24, 's60', 's61', H_OFF, 0xE00000)
        srd_off(k, 28, 's60', 's61', O_OFF, 0x1000000)
        k(f'''s_waitcnt lgkmcnt(0)
        v_readfirstlane_b32 s48, v{VAT}
        s_nop 1
        s_cmp_lt_u32 s48, 32
        s_cbranch_scc1 L_lnfb
        L_xn_go:''')
        lin.run(flat(xn_loads(0)))
        if not OPT['g1e']:
            lin.run(flat(p1_dmas('G1', '+1')))
        flush(k, lin)
        rp_setup()
        lin.run(GL.only(0, lambda kk, kind, g: kk < 0 and kind in ('rd', 'need')))
        lin.add(('vmwait', ['X']))
    else:
        lin.add(('vmwait', ['G0', 'X']))
        lin.add('s_barrier')
        lin.run(GL.only(0, lambda kk, kind, g: kk < 0 and kind in ('rd', 'need')))
    flush(k, lin)
    k(f's_mov_b32 s49, {GSLOT}')
    k('s_mov_b32 s42, 7')
    stamp(k, 1)
    stamp2(k, 13)
    st = steady(drop(GL.emit(p1_mfmas(0), 0)) + drop(GL.emit(p1_mfmas(1), 1)))
    k('L_p1:')
    k('\n'.join(st.out))
    k('s_sub_u32 s42, s42, 1\ns_cmp_lg_u32 s42, 0\ns_cbranch_scc1 L_p1')
    lin = Lin(st.lg, st.vm)
    lin.run(p1_sched('t14').emit(p1_mfmas(0), 14))
    lin.run(p1_sched('t15').emit(p1_mfmas(1), 15, keep=lambda kk, kind, g: kk >= 0 and kind != 'bar'))
    flush(k, lin)
    stamp(k, 2)
    stamp2(k, 14)
    k(f's_mov_b32 s66, {f32(C)}\ns_mov_b32 s67, {f32(C)}')
    k('s_nop 3')
    for n in range(8):
        lin.add(k_read(0, n))
    n = 0
    for tt in range(4):
        for s in range(4):
            tb = VT + (n & 1) * 8
            n += 1
            for e in range(2):
                for i in range(4):
                    lin.add(f'v_accvgpr_read_b32 v{tb + 4 * e + i}, a{OACC(2 * s + e, tt) + i}')
            for i in range(0, 8, 2):
                lin.add(f'v_pk_mul_f32 {vr(tb + i, 2)}, {vr(tb + i, 2)}, s[66:67]')
            for i in range(4):
                lin.add(f'v_cvt_pk_bf16_f32 v{tb + i}, v{tb + 2 * i}, v{tb + 2 * i + 1}')
            lin.add('s_nop 0')
            lin.add(f'v_permlane32_swap_b32 v{tb}, v{tb + 2}')
            lin.add(f'v_permlane32_swap_b32 v{tb + 1}, v{tb + 3}')
            lin.add('s_nop 0')
            lin.add(f'v_permlane16_swap_b32 v{tb}, v{tb + 2}')
            lin.add(f'v_permlane16_swap_b32 v{tb + 1}, v{tb + 3}')
            for i in range(4):
                lin.add(f'v_accvgpr_write_b32 a{QF(tt, s) + i}, v{tb + i}')
    flush(k, lin)
    if OPT['dumpq']:
        k('s_lshl_b32 s48, s2, 16\ns_lshl_b32 s49, s3, 14\ns_add_u32 s48, s48, s49\ns_add_u32 s48, s48, 0x6000000')
        srd_off(k, 72, 's60', 's61', 's48', 16384)
        for n in range(16):
            k(f's_mov_b32 s48, {n * 1024}')
            lin.add(f'buffer_store_dwordx4 {ar(128 + 4 * n, 4)}, v{VLN}, s[72:75], s48 offen')
            flush(k, lin)
    k("""s_mul_i32 s48, s50, 229376
    s_lshr_b32 s49, s32, 1
    s_mul_i32 s49, s49, 14336
    s_add_u32 s48, s48, s49""")
    hep = []
    for p in range(7):
        for tt in range(2):
            b = HG(p, tt)
            for i in range(4):
                hep.append(f'v_cvt_pk_bf16_f32 v{b + i}, v{b + 2 * i}, v{b + 2 * i + 1}')
            for i in range(4):
                hep.append(f'v_pk_max_i16 v{b + i}, v{b + i}, 0')
            ks = p * 2 + tt
            if ks % 4 == 0 and ks:
                hep.append('s_add_u32 s48, s48, 4096')
            hep.append(f'buffer_store_dwordx4 {vr(b, 4)}, v{VLN}, s[24:27], s48 offen offset:{(ks & 3) * 1024} ;#H')

    def qk0(extra):
        mf = qk_mfmas(0, c0='0')
        fill = {}
        add = lambda g, it: fill.setdefault(g, []).extend(it)
        per = (len(extra) + 63) // 64
        for n, it in enumerate(extra):
            add(n // per, [it])
        for n in range(8, 16):
            add(16 * ((n - 8) >> 2) + 13 + (n & 3), [k_read(0, n)])
        return weave(mf, fill)
    zero_o = [f'v_accvgpr_write_b32 a{i}, 0' for i in list(range(128)) + list(range(LACC(0), LACC(0) + 16))]
    mix = []
    for i in range(max(len(hep), len(zero_o))):
        if i < len(hep):
            mix.append(hep[i])
        if i < len(zero_o):
            mix.append(zero_o[i])
    lin.run(qk0(mix))
    flush(k, lin)
    GA, NG = att_sched()
    print('att overflow', GA.over, 'NG', NG)
    k('L_att_go:')
    lin.add(('vmwait', ['K1', 'V0']))
    lin.add('s_barrier')
    lin.run(GA.only(0, lambda kk, kind, g: kk < 0 and kind == 'rd'))
    flush(k, lin)
    k('s_nop 4')
    for qt in range(4):
        m = VT + qt
        regs = [S_(0, kvt, qt) + i for kvt in range(4) for i in range(4)]
        k(f'v_max3_f32 v{m}, v{regs[0]}, v{regs[1]}, v{regs[2]}')
        for i in range(3, 15, 2):
            k(f'v_max3_f32 v{m}, v{m}, v{regs[i]}, v{regs[i + 1]}')
        k(f'v_max_f32 v{m}, v{m}, v{regs[15]}')
    xgroup(k, 'v_max_f32', [VT + q for q in range(4)], VT + 4)
    k('s_cmp_eq_u32 s64, 0\ns_cbranch_scc1 L_use_m0')
    for qt in range(4):
        k(f'v_mov_b32 v{VT + qt}, v{VMT + qt}')
    k('L_use_m0:')
    for qt in range(4):
        for i in range(4):
            k(f'v_sub_f32 v{NEGM(qt) + i}, 0, v{VT + qt}')
        k(f'v_mov_b32 v{VL + qt}, 0')
    for kvt in range(4):
        for qt in range(4):
            for i in range(0, 4, 2):
                r = S_(0, kvt, qt) + i
                k(f'v_pk_add_f32 {vr(r, 2)}, {vr(r, 2)}, {vr(NEGM(qt), 2)}')
    pre = GA.only(-1, lambda kk, kind, g: kk == 0 and kind in ('exp', 'cvt'))
    for a, b in zip(pre, pre[1:] + ['']):
        k(a)
        if a.startswith('v_exp') and not b.startswith('v_exp') and a.split()[1].strip(',') in b:
            k('s_nop 0')
    lin.run(GA.only(0, lambda kk, kind, g: kk < 0 and kind == 'need'))
    flush(k, lin)
    k('s_mov_b32 s42, 8')
    stamp(k, 3)
    it = lambda i: drop(GA.emit(qk_mfmas((i + 1) & 1) + pv_mfmas(i & 1), i))
    body = []
    for i in range(4):
        if i == 3:
            body += ['s_sub_u32 s42, s42, 1', 's_cmp_eq_u32 s42, 0', 's_cbranch_scc1 L_att_tail']
        body += it(i)
    st = steady(body)
    k('L_att:')
    k('\n'.join(st.out))
    k('s_branch L_att')
    k('L_att_tail:')
    l3 = Lin(st.lg, st.vm)
    for i in range(3):
        l3.run(it(i))
    lin = Lin(l3.lg, l3.vm)
    tail = GA.emit([None] * 64 + pv_mfmas(1), 3,
                   keep=lambda kk, kind, g: (kk == 1 and kind in ('exp', 'cvt')) or
                   (kk == 0 and kind in ('rd', 'need') and g >= 40))
    tail = [x for x in tail if isinstance(x, tuple) or not x.startswith('ds_read_b128')]
    t2 = []
    for a, b in zip(tail, tail[1:] + ['']):
        t2.append(a)
        if isinstance(a, str) and isinstance(b, str) and a.startswith('v_exp') and b.startswith('v_') and not b.startswith('v_exp'):
            t2.append('s_nop 0')
        if isinstance(a, str) and a.startswith('v_cvt') and (isinstance(b, tuple) or b.startswith('v_mfma')):
            t2.append('s_nop 1')
    if OPT['rp']:
        t2.insert(len(t2) // 2, rp_item(3)[1])
    lin.run(t2)
    flush(k, lin)
    stamp(k, 4)
    k('s_nop 7')
    if OPT['msum']:
        for qt in range(4):
            k(f'v_accvgpr_read_b32 v{VL + qt}, a{LACC(qt)}')
    else:
        xgroup(k, 'v_add_f32', [VL + q for q in range(4)], VT + 4)
    k(f"""
    v_add_f32 v{VT}, v{VL}, v{VL + 1}
    v_add_f32 v{VT + 1}, v{VL + 2}, v{VL + 3}
    v_add_f32 v{VT + 1}, v{VT}, v{VT + 1}
    s_mov_b32 s48, 0x4e800000
    v_cmp_nle_f32 vcc, v{VT + 1}, s48
    s_nop 1
    s_cmp_lg_u64 vcc, 0
    s_cselect_b32 s48, 1, 0
    s_andn2_b32 s48, s48, s64
    v_mov_b32 v{VT + 2}, s48
    s_lshl_b32 s49, s3, 2
    v_mov_b32 v{VT + 3}, s49
    ds_write_b32 v{VT + 3}, v{VT + 2}
    v_rcp_f32 v{VL}, v{VL}
    v_rcp_f32 v{VL + 1}, v{VL + 1}
    v_rcp_f32 v{VL + 2}, v{VL + 2}
    v_rcp_f32 v{VL + 3}, v{VL + 3}
    s_waitcnt lgkmcnt(0)
    s_barrier
    v_mov_b32 v{VT + 3}, 0
    ds_read_b128 {vr(VT + 4, 4)}, v{VT + 3}
    s_waitcnt lgkmcnt(0)
    v_or_b32 v{VT + 4}, v{VT + 4}, v{VT + 5}
    v_or_b32 v{VT + 6}, v{VT + 6}, v{VT + 7}
    v_or_b32 v{VT + 4}, v{VT + 4}, v{VT + 6}
    s_nop 0
    v_readfirstlane_b32 s48, v{VT + 4}
    s_nop 1
    s_cmp_lg_u32 s48, 0
    s_cbranch_scc1 L_fallback
    s_lshl_b32 s50, s50, 18
    s_lshl_b32 s51, s51, 18
    s_lshl_b32 s48, s32, 13
    s_add_u32 s50, s50, s48
    s_add_u32 s51, s51, s48
    s_add_u32 s52, s50, 4096
    s_add_u32 s53, s51, 4096
    """)
    n = 0
    for qt in range(4):
        k(f'v_mov_b32 v{VT + 32}, v{VL + qt}\nv_mov_b32 v{VT + 33}, v{VL + qt}')
        for s in range(4):
            tb = (n & 3) * 8
            n += 1
            for e in range(2):
                for i in range(4):
                    k(f'v_accvgpr_read_b32 v{tb + 4 * e + i}, a{OACC(2 * s + e, qt) + i}')
            for i in range(0, 8, 2):
                k(f'v_pk_mul_f32 {vr(tb + i, 2)}, {vr(tb + i, 2)}, {vr(VT + 32, 2)}')
            for i in range(4):
                k(f'v_cvt_pk_bf16_f32 v{tb + i}, v{tb + 2 * i}, v{tb + 2 * i + 1}')
            k(f'buffer_store_dwordx4 {vr(tb, 4)}, v{VLN}, s[28:31], s{50 + (qt >> 1) + 2 * (s >> 1)} offen '
              f'offset:{(s & 1) * 2048 + (qt & 1) * 1024}')
    if OPT['stamp']:
        stamp(k, 5)
        stamp_out(k, 'L_k2_end', 's62', 's63')
    stamp2_out(k, 0)
    span_end(k, 40, 1)
    k('L_k2_end:\ns_endpgm')
    k(f"""L_fallback:
    s_mov_b32 s64, 1
    s_mov_b32 s43, 0
    s_mov_b32 s42, 32
    s_waitcnt vmcnt(0)""")
    for qt in range(4):
        k(f'v_mov_b32 v{VMT + qt}, 0xff800000')
    k('L_fb_loop:\ns_barrier')
    lin = Lin()
    lin.run(flat(kdma(0, 'K0')))
    lin.run(['s_waitcnt vmcnt(0)', 's_barrier'])
    for n in range(8):
        lin.add(k_read(0, n))
    lin.run(qk0([]))
    lin.add('s_nop 15')
    for qt in range(4):
        for kvt in range(4):
            for i in range(0, 4, 2):
                r = S_(0, kvt, qt) + i
                lin.add(f'v_max3_f32 v{VMT + qt}, v{VMT + qt}, v{r}, v{r + 1}')
    flush(k, lin)
    k('s_sub_u32 s42, s42, 1\ns_cmp_lg_u32 s42, 0\ns_cbranch_scc1 L_fb_loop')
    xgroup(k, 'v_max_f32', [VMT + q for q in range(4)], VT)
    k('s_mov_b32 s43, 0\ns_mov_b32 s44, 0\ns_barrier')
    lin.run(flat(kdma(0, 'K0') + vdma(0, 'V0') + vdma(1, 'V1') + kdma(1, 'K1') + kdma(2, 'K2') + kdma(3, 'K3')))
    lin.run(['s_waitcnt vmcnt(0)', 's_barrier'])
    for n in range(8):
        lin.add(k_read(0, n))
    lin.run(qk0(zero_o))
    lin.add('s_branch L_att_go')
    flush(k, lin)
    if MLN:
        k(f'''L_lnfb:
        s_load_dwordx2 s[66:67], s[0:1], 0
        s_lshl_b32 s42, s33, 5
        s_mov_b32 s35, 32
        s_waitcnt vmcnt(0) lgkmcnt(0)''')
        srd(k, 72, 's66', 's67', 0x400000)
        k('L_lnfb_loop:')
        ln_scalars(k, 42, 66, 67, 48)
        k('\n'.join(ln_loads(VLD, 72, 66)))
        k('s_waitcnt vmcnt(0)')
        ln_compute(k, VEX)
        k('\n'.join(ln_stores(VST, 67)))
        k('''s_add_u32 s42, s42, 1
        s_sub_u32 s35, s35, 1
        s_barrier
        s_cmp_lg_u32 s35, 0
        s_cbranch_scc1 L_lnfb_loop
        s_waitcnt vmcnt(0)''')
        for i in range(64, 144):
            k(f'v_mov_b32 v{i}, 0')
        k('s_barrier\ns_branch L_xn_go')
    rings = {'G': (3, lambda n: (n * GSLOT, (n + 1) * GSLOT)),
             'A': (8, lambda n: (ABASE + n * 16384, ABASE + (n + 1) * 16384))}
    pol = [{'L_p1': [1] * 6 + [0], 'L_att_tail': [0, 0, 1], 'L_use_m0': [1]},
           {'L_p1': [1] * 6 + [0], 'L_att_tail': [0, 1, 0, 1], 'L_use_m0': [1, 0], 'L_fallback': [1, 0]}]
    if MLN:
        base = pol[0]
        pol = [dict(base, L_ckok=[1], L_polled=[0, 1]),
               dict(base, L_nolead1=[1], L_nolead2=[1], L_ckok=[0, 1], L_polled=[1]),
               dict(base, L_nolead1=[1], L_nolead2=[1], L_pollto=[1], L_lnfb=[1]),
               dict(base, L_nolead1=[1], L_nolead2=[1], L_nock=[1], L_noatom=[1], L_pollend=[1], L_lnfb=[1]),
               dict(pol[1], L_nolead1=[1], L_nolead2=[1], L_nock=[1], L_noatom=[1], L_pollend=[1])]
    return k, k.check(pol, rings=rings)


def gen_k3():
    k = Kernel('fin_kernel')
    span_begin(k)
    AG = lambda p, tt: (p * 2 + tt) * 8
    ACC = lambda nt, tt: AG(nt >> 1, tt) + 4 * (nt & 1)
    ACT = lambda T, j: (T & 3) * 32 + j * 4
    R3 = 128
    VA = 64
    VD = 80
    VLN3, VX, VZ = 88, 89, 90
    T0, T1, T2, T3, T4, T5 = 91, 92, 93, 94, 95, 96
    LOOK = OPT['look3']
    k("""
    s_cmp_ge_u32 s2, 256
    s_cbranch_scc1 L_k3_end
    s_load_dwordx2 s[52:53], s[0:1], 0      ; x
    s_load_dwordx2 s[54:55], s[0:1], 32     ; wo
    s_load_dwordx2 s[56:57], s[0:1], 56     ; w2
    s_load_dwordx2 s[58:59], s[0:1], 64     ; out
    s_load_dwordx2 s[60:61], s[0:1], 80     ; ws
    s_load_dwordx2 s[62:63], s[0:1], 72     ; dbg
    v_lshrrev_b32 v1, 6, v0
    v_and_b32 v0, 63, v0
    s_and_b32 s32, s2, 7
    v_readfirstlane_b32 s3, v1
    s_lshr_b32 s33, s2, 3
    s_lshr_b32 s34, s32, 2
    s_and_b32 s32, s32, 3
    s_lshl_b32 s32, s32, 2
    s_and_b32 s35, s33, 3
    s_add_u32 s32, s32, s35                 ; mb (0..15)
    s_lshr_b32 s33, s33, 2                  ; nb (0..7)
    s_lshl_b32 s35, s32, 2
    s_add_u32 s35, s35, s3
    s_lshl_b32 s45, s3, 13                  ; w*8192 (LDS)
    s_add_u32 s46, s45, 4096
    s_lshl_b32 s47, s32, 3
    s_add_u32 s47, s47, s33
    """)
    stamp(k, 0)
    k(f"""
    v_lshlrev_b32 v{VLN3}, 4, v0
    v_lshrrev_b32 v{T0}, 4, v0
    v_and_b32 v{T1}, 15, v0
    s_lshl_b32 s48, s3, 5
    v_add_u32 v{T3}, s48, v{T0}             ; row = 32w + (l>>4)
    """)
    if OPT['rp']:
        k(f'v_add_u32 v{VD}, s45, v{VLN3}\nv_add_u32 v{VD + 4}, s46, v{VLN3}')
    else:
        for j in range(2):
            k(f"""v_add_u32 v{T2}, {4 * j}, v{T0}
            v_lshlrev_b32 v{T2}, 1, v{T2}
            v_xor_b32 v{T2}, v{T2}, v{T1}
            v_lshlrev_b32 v{T2}, 4, v{T2}
            v_lshl_add_u32 v{VD + j}, v{T3}, 11, v{T2}""")
        for j in range(7, 0, -1):
            k(f'v_add_u32 v{VD + j}, {j * 8192 - (j & 3) * 1024}, v{VD + (j & 1)}')
    k(f"""
    s_waitcnt lgkmcnt(0)
    s_cmp_eq_u32 s34, 0
    s_cselect_b32 s54, s54, s56
    s_cselect_b32 s55, s55, s57
    s_mov_b32 s64, 0x800000
    s_mov_b32 s65, 0x40000
    s_mov_b32 s66, {O_OFF}
    s_cselect_b32 s64, s64, 0x700000
    s_cselect_b32 s65, s65, 0x38000
    s_cselect_b32 s66, s66, {H_OFF}
    s_cselect_b32 s42, 8, 7
    s_lshl_b32 s48, s33, 8
    """)
    if OPT['rp']:
        k(f'''s_lshr_b32 s64, s64, 3
        s_mul_i32 s48, s33, s64
        s_lshl_b32 s49, s34, 23
        s_add_u32 s48, s48, s49
        s_add_u32 s48, s48, {WP_OFF}''')
        srd_off(k, 8, 's60', 's61', 's48', 0)
        k('s_mov_b32 s10, s64')
    else:
        srd_off(k, 8, 's54', 's55', 's48', 0)
        k('s_sub_u32 s10, s64, s48')
    k('s_mul_i32 s48, s35, s65\ns_add_u32 s48, s48, s66')
    srd_off(k, 4, 's60', 's61', 's48', 0)
    k('s_mov_b32 s6, s65\ns_mov_b32 s38, 0\ns_mov_b32 s36, 0\ns_mov_b32 s37, 4096')

    def loads(T):
        tag = f'L{T & 3}'
        gs = []
        for j in range(8):
            gs.append(([f's_add_u32 m0, s{45 + (j >> 2)}, {(T & 3) * 32768}'] if j in (0, 4) else [],
                       f'buffer_load_dwordx4 v{VD + (j & 4 if OPT["rp"] else j)}, s[8:11], s38 offen offset:{(j & 3) * 1024} lds ;#{tag} @W W {T & 3}',
                       [f's_add_u32 s38, s38, {0x8000 if OPT["rp"] else 0x40000}'] if j == 7 else []))
            gs.append(([], f'buffer_load_dwordx4 {ar(ACT(T, j), 4)}, v{VLN3}, s[4:7], s{36 + (j >> 2)} offen offset:{(j & 3) * 1024} ;#{tag}',
                       [f's_add_u32 s{36 + (j >> 2)}, s{36 + (j >> 2)}, 8192'] if (j & 3) == 3 else []))
        return gs

    def wread(T, n, hh):
        nt, ks = divmod(n, 4)
        a = VA + ((T >> 1) & 1) * 8 + nt
        return (f'ds_read_b64_tr_b16 {ar(R3 + (n & 15) * 4 + 2 * hh, 2)}, v{a} '
                f'offset:{(T & 1) * 32768 + ks * 8192 + hh * 4096} ;@R W {T & 3}')
    lin = Lin()
    for T in range(LOOK):
        lin.run(flat(loads(T)))
    flush(k, lin)
    k(f"""
    v_lshlrev_b32 v{VX}, 11, v{T1}
    v_lshl_add_u32 v{VX}, v{T0}, 4, v{VX}
    v_mov_b32 v{VZ}, 0
    """)
    lane_grc(k, T0, T1, T2)
    k(f"""
    v_lshlrev_b32 v{T2}, 3, v{T2}
    v_lshl_add_u32 v{T3}, v{T0}, 2, v{T1}   ; row = 4g + r
    v_and_b32 v{T4}, 7, v{T3}
    v_lshl_add_u32 v{T3}, v{T3}, 8, v{T2}
    """)
    for nt in range(8):
        k(f"""v_xor_b32 v{T5}, {nt}, v{T4}
        v_lshl_add_u32 v{VA + nt}, v{T5}, 5, v{T3}
        v_add_u32 v{VA + 8 + nt}, 0x10000, v{VA + nt}""")
    for i in range(64):
        k(f'v_mov_b32 v{i}, 0')
    G = Gaps(64)
    GB = 46
    for nt in range(8):
        regs = [ar(R3 + ((nt * 4 + ks) & 15) * 4, 4) for ks in range(4)]
        G.put(8 * nt - 1, lambda i, regs=regs: [('need', regs)], 4, prio=9, kind='need')
    G.put(GB, lambda i: [('vmwait', [f'L{(i + 1) & 3}'], ' lgkmcnt(0)' if LOOK == 3 else ''), 's_barrier'], 8, kind='bar')
    sched_vmem(G, [lambda i, j=j: loads(i + LOOK)[j] for j in range(16)],
               [1 + 4 * j for j in range(16)] if LOOK == 2 else [1 + (j * 11) // 4 for j in range(16)])
    prev = -10 ** 6
    for n in range(32):
        fu, lu16 = 8 * (n >> 2), 8 * ((n - 16) >> 2) + 4 + (n & 3)
        lo = max(lu16 + 1, prev, GB + 1 - 64)
        hi = fu - 5 if LOOK == 2 else min(fu - 5, GB - 2)
        for hh in range(2):
            prev = G.place(lo, hi, fu - OPT['la'], lambda i, n=n, hh=hh: [wread(i, n, hh)], 4, kind='rd', pack=True)
            lo = prev
    print('k3 overflow', G.over)

    def mfs(T):
        return [f'{MF} {vr(ACC(nt, tt), 4)}, {ar(R3 + ((nt * 4 + ks) & 15) * 4, 4)}, {ar(ACT(T, ks * 2 + tt), 4)}, {vr(ACC(nt, tt), 4)}'
                for nt in range(8) for tt in range(2) for ks in range(4)]
    lin.add(('vmwait', ['L0']))
    lin.add('s_barrier')
    lin.run(G.only(0, lambda kk, kind, g: kk < 0))
    flush(k, lin)
    k('s_mov_b32 s67, 0\ns_mov_b32 s68, 4096\ns_mov_b32 s69, 32768')
    stamp(k, 1)
    body = []
    for T in range(4):
        body += G.emit(mfs(T), T)
    st = steady(body)
    k('L_k3:')
    k('\n'.join(st.out))
    k('s_sub_u32 s42, s42, 1\ns_cmp_lg_u32 s42, 0\ns_cbranch_scc1 L_k3')
    stamp(k, 2)
    k(f"""
    s_lshl_b32 s48, s47, 15
    s_lshl_b32 s49, s3, 13
    s_add_u32 s48, s48, s49                 ; tile*32768 + w*8192
    s_cmp_eq_u32 s34, 0
    s_mov_b32 s49, {S_OFF}
    s_mov_b32 s50, {G_OFF}
    s_cselect_b32 s49, s49, {G_OFF}
    s_cselect_b32 s50, s50, {S_OFF}
    s_add_u32 s49, s49, s48
    s_add_u32 s50, s50, s48
    """)
    srd_off(k, 12, 's60', 's61', 's49', 8192)
    srd_off(k, 16, 's60', 's61', 's50', 8192)
    k(f's_lshr_b32 s48, s47, 4\ns_lshl_b32 s48, s48, 12\ns_and_b32 s49, s47, 15\ns_lshl_b32 s49, s49, 7\n'
      f's_add_u32 s48, s48, s49\ns_add_u32 s48, s48, {F_OFF}')
    srd_off(k, 20, 's60', 's61', 's48', 128)
    k('s_lshl_b32 s48, s35, 16\ns_lshl_b32 s49, s33, 8\ns_add_u32 s48, s48, s49')
    srd_off(k, 24, 's52', 's53', 's48', 65536)
    srd_off(k, 28, 's58', 's59', 's48', 65536)
    k('s_sub_u32 s26, s26, s49\ns_sub_u32 s30, s30, s49')
    XR, PK, OT = 100, 132, 164
    xo = lambda q: f'{"s69" if q & 1 else "0"} offen offset:{(q >> 1) * 64}'
    k('s_waitcnt vmcnt(0) lgkmcnt(0)')
    for q in range(8):
        k(f'buffer_load_dwordx4 {vr(XR + 4 * q, 4)}, v{VX}, s[24:27], {xo(q)}')
    for i in range(32):
        k(f'v_cvt_pk_bf16_f32 v{PK + i}, v{2 * i}, v{2 * i + 1}')
    k('s_cmp_eq_u32 s34, 0\ns_cbranch_scc1 L_k3_oproj')
    k(f's_mov_b32 s48, {f32(-math.log2(math.e))}')
    for i in range(32):
        k(f'v_lshlrev_b32 v{2 * i}, 16, v{PK + i}\nv_and_b32 v{2 * i + 1}, 0xffff0000, v{PK + i}')
    for c in range(0, 64, 16):
        for i in range(16):
            k(f'v_mul_f32 v{OT + i}, s48, v{c + i}')
        for i in range(16):
            k(f'v_exp_f32 v{OT + i}, v{OT + i}')
        for i in range(16):
            k(f'v_add_f32 v{OT + i}, 1.0, v{OT + i}')
        for i in range(16):
            k(f'v_rcp_f32 v{OT + i}, v{OT + i}')
        for i in range(16):
            k(f'v_mul_f32 v{c + i}, v{c + i}, v{OT + i}')
        for i in range(8):
            k(f'v_cvt_pk_bf16_f32 v{PK + c // 2 + i}, v{c + 2 * i}, v{c + 2 * i + 1}')
    k('L_k3_publish:')
    for q in range(8):
        k(f'buffer_store_dwordx4 {vr(PK + 4 * q, 4)}, v{VLN3}, s[12:15], s{67 + (q >> 2)} offen offset:{(q & 3) * 1024} sc0 sc1')
    k(f"""
    s_waitcnt vmcnt(0)
    s_barrier
    s_cmp_lg_u32 s3, 0
    s_cbranch_scc1 L_k3_pub_wait
    v_mov_b32 v{T0}, 1
    s_mov_b64 exec, 1
    buffer_atomic_add v{T0}, v{VZ}, s[20:23], 0 offen sc0 sc1
    s_waitcnt vmcnt(0)
    ds_write_b32 v{VZ}, v{T0}
    s_mov_b64 exec, -1
    s_waitcnt lgkmcnt(0)
    L_k3_pub_wait:
    s_barrier
    ds_read_b32 v{T0}, v{VZ}
    s_waitcnt lgkmcnt(0)
    v_readfirstlane_b32 s48, v{T0}
    s_nop 1
    s_cmp_eq_u32 s48, 0
    s_cbranch_scc1 L_k3_end
    s_branch L_k3_finish
    L_k3_oproj:
    s_mov_b32 s49, 4096
    s_cmp_lg_u32 s3, 0
    s_cbranch_scc1 L_k3_poll_done
    L_k3_poll:
    buffer_load_dword v{T0}, v{VZ}, s[20:23], 0 offen sc0 sc1
    s_waitcnt vmcnt(0)
    v_readfirstlane_b32 s48, v{T0}
    s_nop 1
    s_cmp_lg_u32 s48, 0
    s_cbranch_scc1 L_k3_poll_end
    s_sleep 4
    s_sub_u32 s49, s49, 1
    s_cmp_lg_u32 s49, 0
    s_cbranch_scc1 L_k3_poll
    L_k3_poll_end:
    ds_write_b32 v{VZ}, v{T0} offset:64
    s_waitcnt lgkmcnt(0)
    L_k3_poll_done:
    s_barrier
    ds_read_b32 v{T0}, v{VZ} offset:64
    s_waitcnt lgkmcnt(0)
    v_readfirstlane_b32 s48, v{T0}
    s_nop 1
    s_cmp_eq_u32 s48, 0
    s_cbranch_scc1 L_k3_publish
    L_k3_finish:
    """)
    for q in range(8):
        k(f'buffer_load_dwordx4 {vr(OT + 4 * q, 4)}, v{VLN3}, s[16:19], s{67 + (q >> 2)} offen offset:{(q & 3) * 1024} sc0 sc1')
    for i in range(32):
        k(f'v_lshlrev_b32 v{2 * i}, 16, v{PK + i}\nv_and_b32 v{2 * i + 1}, 0xffff0000, v{PK + i}')
    for q in range(8):
        k('s_waitcnt vmcnt(7)')
        o = OT + 4 * q
        for i in range(4):
            j = 4 * q + i
            k(f"""v_lshlrev_b32 v{T0}, 16, v{OT + j}
            v_and_b32 v{T1}, 0xffff0000, v{OT + j}
            v_mul_f32 v{T0}, v{T0}, v{2 * j}
            v_mul_f32 v{T1}, v{T1}, v{2 * j + 1}
            v_cvt_pk_bf16_f32 v{OT + j}, v{T0}, v{T1}""")
        k(f"""s_nop 0
        v_permlane32_swap_b32 v{o}, v{o + 2}
        v_permlane32_swap_b32 v{o + 1}, v{o + 3}
        s_nop 0
        v_permlane16_swap_b32 v{o}, v{o + 2}
        v_permlane16_swap_b32 v{o + 1}, v{o + 3}""")
        for i in range(4):
            j = 4 * q + i
            k(f"""v_lshlrev_b32 v{T2}, 16, v{XR + j}
            v_and_b32 v{T3}, 0xffff0000, v{XR + j}
            v_lshlrev_b32 v{T0}, 16, v{OT + j}
            v_and_b32 v{T1}, 0xffff0000, v{OT + j}
            v_add_f32 v{T0}, v{T0}, v{T2}
            v_add_f32 v{T1}, v{T1}, v{T3}
            v_cvt_pk_bf16_f32 v{OT + j}, v{T0}, v{T1}""")
        k(f'buffer_store_dwordx4 {vr(o, 4)}, v{VX}, s[28:31], {xo(q)}')
    if OPT['stamp']:
        stamp(k, 3)
        stamp_out(k, 'L_k3_end', 's62', 's63')
    if OPT['span']:
        k('L_k3_end:')
        span_end(k, 70, 2)
        k('s_endpgm')
    else:
        k('L_k3_end:\ns_endpgm')
    rings = {'W': (4, lambda n: (n * 32768, (n + 1) * 32768))}
    pol = [{}, {'L_k3_oproj': [1]}, {'L_k3_oproj': [1], 'L_k3_publish': [1]},
           {'L_k3_oproj': [1], 'L_k3_poll_done': [1]}, {'L_k3_pub_wait': [1]}]
    return k, k.check(pol, rings=rings)


def main():
    out = 'cdna_kernels/' + NAME + '.s'
    for a in sys.argv[1:]:
        if '=' in a:
            kk, v = a.split('=')
            assert kk in OPT, kk
            OPT[kk] = int(v)
        else:
            out = a
    ref = open('cdna_kernels/' + NAME + '.s.ref').read()
    header = '\n'.join(l for l in ref.split('\n')[:12])
    k1 = gen_ln()
    p = k1.check([{}, {'L_ln_noflag': [1]}])
    k2, p2 = gen_k2()
    k3, p3 = gen_k3()
    for x in p + p2 + p3:
        print('PROBLEM', x)
    ks = [k1, k2, k3]
    ls = [('ln_kernel', 256, 512, 0), ('att_kernel', 256, 256, 163840), ('fin_kernel', 256, 256, 131072)]
    if OPT['mln']:
        ks, ls = ks[1:], ls[1:]
    s = build_file(header, ks, ls)
    open(out, 'w').write(s)
    for k in ks:
        print(k.name, 'instrs', sum(1 for t, _ in k.lines if t == 'I'), 'regs', k.max_regs(),
              'autowaits', sum(1 for t, v in k.lines if t == 'I' and '; auto' in v.text))


if __name__ == '__main__':
    main()
```

```python
import re

REG_RE = re.compile(r'^(-?)(abs\()?([vas])(?:(\d+)|\[(\d+):(\d+)\])\)?$')


def regs_of(tok):
    tok = tok.strip()
    m = REG_RE.match(tok)
    if m:
        f = m.group(3)
        if m.group(4) is not None:
            return {(f, int(m.group(4)))}
        return {(f, i) for i in range(int(m.group(5)), int(m.group(6)) + 1)}
    if tok == 'vcc':
        return {('s', 'vcc')}
    if tok in ('vcc_lo', 'vcc_hi'):
        return {('s', 'vcc')}
    if tok in ('exec', 'exec_lo', 'exec_hi'):
        return {('s', 'exec')}
    if tok == 'm0':
        return {('s', 'm0')}
    return set()


TRANS = ('v_exp_f32', 'v_log_f32', 'v_rcp_f32', 'v_rsq_f32', 'v_sqrt_f32', 'v_sin_f32', 'v_cos_f32',
         'v_rcp_iflag_f32')


class Ins:
    __slots__ = ('text', 'op', 'ops', 'mods', 'dst', 'src', 'kind', 'passes', 'srcC', 'srcAB', 'line')

    def __init__(self, text):
        self.text = text
        t = text.split(';')[0].strip()
        parts = t.split(None, 1)
        self.op = parts[0]
        rest = parts[1] if len(parts) > 1 else ''
        ops, depth, cur = [], 0, ''
        for ch in rest:
            if ch in '[(':
                depth += 1
            if ch in '])':
                depth -= 1
            if ch == ',' and depth == 0:
                ops.append(cur.strip())
                cur = ''
            else:
                cur += ch
        last = cur.strip()
        mods = []
        if last:
            lp = last.split()
            ops.append(lp[0])
            mods = lp[1:]
        self.ops, self.mods = ops, mods
        self.dst, self.src = set(), set()
        self.srcC, self.srcAB = set(), set()
        self.passes = 0
        op = self.op
        R = [regs_of(o) for o in ops]
        U = lambda l: set().union(*l) if l else set()
        base = re.sub(r'_(e32|e64|dpp|sdwa)$', '', op)
        if op.startswith('v_mfma'):
            self.kind = 'mfma'
            self.dst = R[0]
            self.srcAB = R[1] | R[2]
            self.srcC = R[3]
            self.src = self.srcAB | self.srcC
            if '32x32x16' in op:
                self.passes = 8
            elif '16x16x32' in op:
                self.passes = 4
            else:
                raise ValueError('unknown mfma ' + op)
        elif op.startswith('v_'):
            self.kind = 'valu'
            if base in TRANS:
                self.kind = 'trans'
            if base.startswith('v_cmpx'):
                raise ValueError('avoid v_cmpx')
            if base.startswith('v_permlane') and 'swap' in base:
                self.dst = R[0] | R[1]
                self.src = R[0] | R[1]
            elif base in ('v_add_co_u32', 'v_sub_co_u32', 'v_addc_co_u32', 'v_subb_co_u32', 'v_subrev_co_u32'):
                self.dst = R[0] | R[1]
                self.src = U(R[2:])
            else:
                self.dst = R[0]
                self.src = U(R[1:])
                if base in ('v_fmac_f32', 'v_dot2c_f32_bf16', 'v_writelane_b32') or op.endswith('_dpp'):
                    self.src |= R[0]
        elif op.startswith('ds_'):
            self.kind = 'ds'
            if op.startswith('ds_write') or op.startswith('ds_add') or op.startswith('ds_or') or op.startswith('ds_max'):
                if '_rtn' in op:
                    self.dst = R[0]
                    self.src = U(R[1:])
                else:
                    self.src = U(R)
            else:
                self.dst = R[0]
                self.src = U(R[1:])
        elif op.startswith('buffer_') or op.startswith('global_'):
            self.kind = 'vmem'
            if op in ('buffer_wbl2', 'buffer_inv'):
                pass
            elif 'load' in op:
                if 'lds' in self.mods or '_lds_' in op:
                    self.src = U(R) | {('s', 'm0')}
                    self.kind = 'vmem_lds'
                elif '#PF' in text:
                    self.src = U(R[1:])
                    self.srcC = R[0]
                else:
                    self.dst = R[0]
                    self.src = U(R[1:])
            elif 'store' in op:
                self.src = U(R)
                self.kind = 'vmem_st'
            elif 'atomic' in op:
                self.src = U(R)
                if 'sc0' in self.mods:
                    self.dst = R[0]
                    if op.startswith('global_'):
                        self.src = U(R[1:])
            else:
                raise ValueError(op)
        elif op.startswith('s_'):
            self.kind = 'salu'
            if op.startswith('s_load') or op.startswith('s_buffer_load') or op in ('s_memtime', 's_memrealtime'):
                self.kind = 'smem'
                self.dst = R[0]
                self.src = U(R[1:])
            elif op.startswith('s_cmp') or op.startswith('s_bitcmp'):
                self.src = U(R)
            elif op in ('s_waitcnt', 's_nop', 's_barrier', 's_endpgm', 's_setprio', 's_sleep', 's_branch') \
                    or op.startswith('s_cbranch'):
                pass
            else:
                self.dst = R[0]
                self.src = U(R[1:])
                if 'saveexec' in op:
                    self.dst |= {('s', 'exec')}
                    self.src |= {('s', 'exec')}
                if op in ('s_addk_i32', 's_mulk_i32'):
                    self.src |= R[0]
        else:
            raise ValueError('unknown instr ' + text)

    def states(self):
        if self.op == 's_nop':
            return int(self.ops[0], 0) + 1
        return 1


def _vec(rs):
    return {r for r in rs if r[0] in 'va'}


def _sca(rs):
    return {r for r in rs if r[0] == 's'}


def check_trace(trace, name=''):
    probs = []
    hist = []
    pos = 0
    vmq, lgq = [], []
    for ins in trace:
        start = pos
        if ins.op == 's_waitcnt':
            txt = ins.text.split(';')[0]
            m = re.search(r'vmcnt\((\d+)\)', txt)
            if m:
                n = int(m.group(1))
                assert n <= 63
                while len(vmq) > n:
                    vmq.pop(0)
            m = re.search(r'lgkmcnt\((\d+)\)', txt)
            if m:
                n = int(m.group(1))
                assert n <= 15
                if any(p[0].kind == 'smem' for p in lgq) and n != 0:
                    probs.append(f'{name}: counted lgkmcnt with SMEM outstanding: {ins.text}')
                while len(lgq) > n:
                    lgq.pop(0)
        touched = ins.src | ins.dst
        for q, qn in ((vmq, 'vm'), (lgq, 'lgkm')):
            for pi, pd in q:
                if pd & touched:
                    probs.append(f'{name}: [{qn} pending] {ins.text}   <- {pi.text}')
        isvalu = ins.kind in ('valu', 'trans')
        for pend, p in reversed(hist):
            d = start - pend
            if d >= 20:
                break
            pvalu = p.kind in ('valu', 'trans')

            def need(n, why):
                if d < n:
                    probs.append(f'{name}: hazard {why} need {n} have {d}: {p.text}  ->  {ins.text}')
            if pvalu and ins.kind == 'mfma' and _vec(p.dst) & ins.src:
                need(2, 'valu->mfma')
            if p.kind == 'mfma':
                tb = {4: (0, 6, 8, 8, 3), 8: (0, 10, 12, 12, 7)}[p.passes]
                if ins.kind == 'mfma':
                    if p.dst & ins.srcC:
                        if p.dst == ins.srcC and p.passes == ins.passes:
                            pass
                        else:
                            need(tb[1], 'mfmaD->srcC overlap')
                    if p.dst & ins.srcAB:
                        need(tb[2], 'mfmaD->srcAB')
                    if (p.dst & ins.dst) and not (p.dst == ins.srcC):
                        need(tb[1], 'mfmaD->mfmaD WAW')
                elif p.dst & touched:
                    need(tb[3], 'mfmaD->other')
                if isvalu and (p.srcC & ins.dst):
                    need(tb[4], 'mfma srcC WAR')
                if ins.kind in ('ds', 'vmem') and (p.srcC & ins.dst):
                    need(tb[4], 'mfma srcC WAR(load)')
            if p.kind == 'trans' and isvalu and ins.kind != 'trans' and p.dst & ins.src:
                need(1, 'trans->valu')
            if p.kind == 'trans' and ins.kind == 'trans' and p.dst & ins.src:
                need(1, 'trans->trans(conservative)')
            if pvalu and _sca(p.dst):
                if ins.kind.startswith('vmem') and _sca(p.dst) & ins.src:
                    need(5, 'valu sgpr->vmem')
                if isvalu and _sca(p.dst) & ins.src:
                    need(4 if ins.op.startswith('v_readlane') or ins.op.startswith('v_writelane') else 2,
                         'valu sgpr->valu')
                if isvalu and ins.op.startswith('v_cndmask') and len(ins.ops) == 3 and ('s', 'vcc') in p.dst:
                    need(2, 'vcc->cndmask')
                if ins.kind in ('salu', 'smem') and _sca(p.dst) & ins.src:
                    need(1, 'valu sgpr->salu (conservative)')
                if ins.op in ('s_cbranch_vccz', 's_cbranch_vccnz') and ('s', 'vcc') in p.dst:
                    need(1, 'valu vcc->branch (conservative)')
            if pvalu and _vec(p.dst) & ins.src:
                if ins.op.startswith('v_readfirstlane') or ins.op.startswith('v_readlane'):
                    need(1, 'valu->readlane')
                if ins.op.startswith('v_permlane'):
                    need(2, 'valu->permlane')
                if ins.op.endswith('_dpp'):
                    need(2, 'valu->dpp')
            if p.kind == 'salu' and ('s', 'm0') in p.dst and ins.kind == 'vmem_lds':
                need(1, 'm0->ldsdma')
            if p.kind == 'vmem_st' and ('x4' in p.op or 'x3' in p.op):
                data = regs_of(p.ops[0]) if p.op.startswith('buffer') else regs_of(p.ops[1])
                if data & ins.dst:
                    need(2, 'store data WAR')
            if p.kind == 'ds' and p.op.startswith('ds_write') and ('b128' in p.op or 'b96' in p.op):
                data = regs_of(p.ops[1])
                if data & ins.dst:
                    need(2, 'dswrite data WAR (conservative)')
        pos += ins.states()
        hist.append((pos, ins))
        if len(hist) > 40:
            hist.pop(0)
        if ins.kind in ('vmem', 'vmem_lds', 'vmem_st'):
            vmq.append((ins, set(ins.dst)))
            if len(vmq) > 63:
                probs.append(f'{name}: more than 63 vmem outstanding at {ins.text}')
        elif ins.kind == 'ds':
            lgq.append((ins, set(ins.dst)))
        elif ins.kind == 'smem':
            lgq.append((ins, set(ins.dst)))
    return probs


def check_lds(trace, rings, name=''):
    probs = []
    rot = {r: 0 for r in rings}
    wstate = {}
    rstate = {}
    vmq, lgq = [], []
    lastm0 = None

    def gran(ring, off):
        n, fn = rings[ring]
        lo, hi = fn((rot[ring] + off) % n)
        return range(lo // 4096, (hi + 4095) // 4096)
    for ins in trace:
        c = ins.text.split(';', 1)[1] if ';' in ins.text else ''
        m = re.search(r'@ROT (\w+)', c)
        if m:
            rot[m.group(1)] += 1
        m = re.search(r'@SET (\w+) (\d+)', c)
        if m:
            rot[m.group(1)] = int(m.group(2))
        if ins.op == 's_waitcnt':
            txt = ins.text.split(';')[0]
            m = re.search(r'vmcnt\((\d+)\)', txt)
            if m:
                while len(vmq) > int(m.group(1)):
                    g = vmq.pop(0)
                    for x in g:
                        if not any(x in o for o in vmq) and wstate.get(x) == 'issued':
                            wstate[x] = 'waited'
            m = re.search(r'lgkmcnt\((\d+)\)', txt)
            if m:
                while len(lgq) > int(m.group(1)):
                    k, g = lgq.pop(0)
                    for x in g:
                        if k == 'R' and not any(kk == 'R' and x in o for kk, o in lgq) and rstate.get(x) == 'issued':
                            rstate[x] = 'waited'
                        if k == 'W' and not any(kk == 'W' and x in o for kk, o in lgq) and wstate.get(x) == 'issued':
                            wstate[x] = 'waited'
        if ins.op == 's_barrier':
            for x, v in wstate.items():
                if v == 'waited':
                    wstate[x] = 'visible'
            for x, v in rstate.items():
                if v == 'waited':
                    rstate[x] = 'done'
        if ('s', 'm0') in ins.dst:
            lastm0 = ins
        mw = re.search(r'@W (\w+) ([+-]?\d+)', c)
        if mw and ins.kind == 'vmem_lds' and re.match(r'^\d+$', lastm0.ops[-1]):
            n_, fn_ = rings[mw.group(1)]
            if fn_((rot[mw.group(1)] + int(mw.group(2))) % n_)[0] != int(lastm0.ops[-1]):
                probs.append(f'{name}: m0 mismatch {lastm0.text} -> {ins.text}')
        if mw and ins.kind == 'vmem_lds' and mw.group(1) != 'G' and not re.match(r'^\d+$', lastm0.ops[-1]):
            probs.append(f'{name}: m0 stale {lastm0.text} -> {ins.text}')
        mr = re.search(r'@R (\w+) ([+-]?\d+)', c)
        g = []
        if mw:
            g = list(gran(mw.group(1), int(mw.group(2))))
            for x in g:
                if rstate.get(x, 'done') != 'done':
                    probs.append(f'{name}: LDS WAR granule {x} reads {rstate[x]}: {ins.text}')
                    break
            for x in g:
                wstate[x] = 'issued'
        if mr:
            g = list(gran(mr.group(1), int(mr.group(2))))
            for x in g:
                if wstate.get(x) != 'visible':
                    probs.append(f'{name}: LDS RAW granule {x} write {wstate.get(x)}: {ins.text}')
                    break
            for x in g:
                rstate[x] = 'issued'
        if ins.kind in ('vmem', 'vmem_lds', 'vmem_st'):
            vmq.append(g if mw else [])
        elif ins.kind in ('ds', 'smem'):
            lgq.append(('W' if mw else 'R', g))
        if ins.kind == 'vmem_lds' and not mw:
            probs.append(f'{name}: untagged LDS-DMA {ins.text}')
    seen, out = set(), []
    for p in probs:
        if p not in seen:
            seen.add(p)
            out.append(p)
    return out


class Lin:
    def __init__(self, lg=None, vm=None):
        self.lg = list(lg or [])
        self.vm = list(vm or [])
        self.out = []

    def add(self, item):
        if isinstance(item, tuple):
            if item[0] == 'vmwait':
                tag = item[1]
                last = -1
                for i, (t, _) in enumerate(self.vm):
                    if t in tag:
                        last = i
                if last >= 0:
                    n = len(self.vm) - 1 - last
                    n = min(n, 63)
                    extra = item[2] if len(item) > 2 else ''
                    self.out.append(f's_waitcnt vmcnt({n}){extra}')
                    self.vm = self.vm[len(self.vm) - n:] if n else []
                    if 'lgkmcnt(0)' in extra:
                        self.lg = []
                elif len(item) > 2:
                    self.out.append(f's_waitcnt{item[2]}')
                    if 'lgkmcnt(0)' in item[2]:
                        self.lg = []
                return
            if item[0] == 'need':
                regs = set()
                for tok in item[1]:
                    regs |= regs_of(tok)
                last = -1
                for i, d in enumerate(self.lg):
                    if d & regs:
                        last = i
                if last >= 0:
                    n = min(len(self.lg) - 1 - last, 15)
                    self.out.append(f's_waitcnt lgkmcnt({n})')
                    self.lg = self.lg[len(self.lg) - n:] if n else []
                return
            raise ValueError(item)
        t = item.strip()
        if t.endswith(':') or t.startswith(';') or t.startswith('.'):
            self.out.append(t)
            return
        ins = Ins(t)
        touched = ins.src | ins.dst
        last = -1
        for i, d in enumerate(self.lg):
            if d & touched:
                last = i
        lastv = -1
        for i, (tg, d) in enumerate(self.vm):
            if d & touched:
                lastv = i
        w = ''
        if last >= 0:
            n = min(len(self.lg) - 1 - last, 15)
            w += f' lgkmcnt({n})'
            self.lg = self.lg[len(self.lg) - n:] if n else []
        if lastv >= 0:
            n = min(len(self.vm) - 1 - lastv, 63)
            w = f' vmcnt({n})' + w
            self.vm = self.vm[len(self.vm) - n:] if n else []
        if w:
            self.out.append('s_waitcnt' + w + ' ; auto')
        if ins.op == 's_waitcnt':
            m = re.search(r'lgkmcnt\((\d+)\)', t)
            if m:
                n = int(m.group(1))
                self.lg = self.lg[max(0, len(self.lg) - n):] if n else []
            m = re.search(r'vmcnt\((\d+)\)', t)
            if m:
                n = int(m.group(1))
                self.vm = self.vm[max(0, len(self.vm) - n):] if n else []
        self.out.append(t)
        if ins.kind == 'ds':
            self.lg.append(set(ins.dst))
        elif ins.kind in ('vmem', 'vmem_lds', 'vmem_st'):
            m = re.search(r'#(\S+)', t)
            self.vm.append((m.group(1) if m else '', set(ins.dst)))

    def run(self, items):
        for it in items:
            self.add(it)
        return self


def steady(items, retag=None):
    l = Lin().run(items)
    for _ in range(2):
        vm = [((retag(t) if retag else t), d) for t, d in l.vm]
        l = Lin(l.lg, vm).run(items)
    return l


class Kernel:
    def __init__(self, name):
        self.name = name
        self.lines = []

    def __call__(self, text):
        for t in text.strip().split('\n'):
            t = t.strip()
            if not t:
                continue
            if t.startswith(';'):
                self.lines.append(('C', t))
            elif t.endswith(':'):
                self.lines.append(('L', t[:-1]))
            elif t.startswith('.'):
                self.lines.append(('D', t))
            else:
                self.lines.append(('I', Ins(t)))

    def label(self, l):
        self.lines.append(('L', l))

    def text(self):
        out = []
        for k, v in self.lines:
            if k == 'L':
                out.append(v + ':')
            elif k == 'I':
                out.append('  ' + v.text)
            else:
                out.append('  ' + v)
        return '\n'.join(out)

    def trace(self, policy=None, back=2, maxlen=400000):
        policy = {k: list(v) for k, v in (policy or {}).items()}
        labels = {v: i for i, (k, v) in enumerate(self.lines) if k == 'L'}
        cnt = {}
        pc, tr = 0, []
        while pc < len(self.lines):
            k, v = self.lines[pc]
            if k != 'I':
                pc += 1
                continue
            tr.append(v)
            assert len(tr) < maxlen, 'trace too long'
            if v.op == 's_endpgm':
                break
            if v.op == 's_branch':
                pc = labels[v.ops[0]]
                continue
            if v.op.startswith('s_cbranch'):
                tgt = v.ops[0]
                if tgt in policy and policy[tgt]:
                    take = policy[tgt].pop(0)
                elif labels[tgt] < pc:
                    c = cnt.get(pc, 0)
                    take = c < back
                    cnt[pc] = c + 1 if take else 0
                else:
                    take = False
                if take:
                    pc = labels[tgt]
                    continue
            pc += 1
        return tr

    def check(self, policies=({},), back=2, rings=None):
        probs = []
        for p in policies:
            tr = self.trace(p, back)
            probs += check_trace(tr, self.name)
            if rings:
                probs += check_lds(tr, rings, self.name)
        seen, out = set(), []
        for p in probs:
            if p not in seen:
                seen.add(p)
                out.append(p)
        return out

    def max_regs(self):
        mv = ma = ms = -1
        for k, v in self.lines:
            if k == 'I':
                for f, i in v.src | v.dst | v.srcC:
                    if isinstance(i, int):
                        if f == 'v':
                            mv = max(mv, i)
                        elif f == 'a':
                            ma = max(ma, i)
                        else:
                            ms = max(ms, i)
        return mv, ma, ms


def descriptor(k, extra=''):
    mv, ma, ms = k.max_regs()
    acc = ((mv + 1 + 3) // 4) * 4
    acc = max(acc, 4)
    nfv = acc + ma + 1 if ma >= 0 else mv + 1
    return f""".p2align 6
.amdhsa_kernel {k.name}
  .amdhsa_next_free_vgpr {nfv}
  .amdhsa_next_free_sgpr {max(ms + 1, 16)}
  .amdhsa_accum_offset {acc}
  .amdhsa_group_segment_fixed_size 0
  .amdhsa_kernarg_size 88
  .amdhsa_user_sgpr_count 2
  .amdhsa_user_sgpr_kernarg_segment_ptr 1
  .amdhsa_system_sgpr_workgroup_id_x 1
{extra}.end_amdhsa_kernel
"""


def build_file(header, kernels, launches, extras=None):
    out = [header.rstrip()]
    for n, g, b, lds in launches:
        out.append(f'; @launch kernel={n} grid=({g},1,1) block=({b},1,1) lds={lds}')
    out.append('.amdgcn_target "amdgcn-amd-amdhsa--gfx950"')
    out.append('.text')
    for k in kernels:
        out.append(f'.globl {k.name}\n.p2align 8\n.type {k.name},@function\n{k.name}:')
        out.append(k.text())
    out.append('.section .rodata,"a"')
    for k in kernels:
        out.append(descriptor(k, (extras or {}).get(k.name, '')))
    return '\n'.join(out) + '\n'


class Gaps:
    def __init__(self, n, cap=8):
        self.n = n
        self.left = [cap] * n
        self.items = [[] for _ in range(n)]
        self.seq = 0
        self.over = 0

    def put(self, g, fn, cost, prio=0, kind=''):
        k, gg = divmod(g, self.n)
        self.left[gg] -= cost
        if self.left[gg] < 0:
            self.over += min(cost, -self.left[gg])
        self.seq += 1
        self.items[gg].append((prio, self.seq, k, fn, kind, g))
        return g

    def fits(self, g, cost):
        return self.left[g % self.n] >= cost

    def place(self, lo, hi, tgt, fn, cost, prio=0, kind='', pack=False):
        tgt = max(lo, min(hi, tgt))
        cands = sorted(range(lo, hi + 1), key=lambda g: (abs(g - tgt), g))
        if pack:
            for g in cands:
                if abs(g - tgt) <= 2 and self.left[g % self.n] == cost:
                    return self.put(g, fn, cost, prio, kind)
        for g in cands:
            if self.fits(g, cost):
                return self.put(g, fn, cost, prio, kind)
        g = max(cands, key=lambda g: self.left[g % self.n])
        return self.put(g, fn, cost, prio, kind)

    def emit(self, mf, i, keep=lambda k, kind, g: True):
        out = []
        for g in range(self.n):
            if mf[g] is not None:
                out.append(mf[g])
            for prio, seq, k, fn, kind, ga in sorted(self.items[g], key=lambda x: (x[0], x[5] - g, x[1]) if False else (x[0], -x[2], x[1])):
                if keep(k, kind, ga):
                    out += fn(i - k)
        return out

    def only(self, i, keep):
        l = []
        for g in range(self.n):
            for prio, seq, k, fn, kind, ga in self.items[g]:
                if keep(k, kind, ga):
                    l.append((ga, prio, seq, fn))
        out = []
        for ga, prio, seq, fn in sorted(l, key=lambda x: x[:3]):
            out += fn(i)
        return out


def check_srds(trace, wg, wave, bufs, name=''):
    M = 0xffffffff
    ptr = {o: ((o + 8) << 33) + 0xfff00000 for o in bufs}
    R = {2: wg}
    scc = [None]
    probs = []

    def val(t):
        if re.match(r'^s\d+$', t):
            return R.get(int(t[1:]))
        if t == 'm0':
            return R.get('m0')
        if t in ('vcc', 'exec', 'exec_lo', 'exec_hi', 'vcc_lo') or t.startswith('s[') or t.startswith('v'):
            return None
        try:
            return int(t, 0) & M
        except ValueError:
            return None

    def setr(t, v):
        if re.match(r'^s\d+$', t):
            R[int(t[1:])] = v
        elif t == 'm0':
            R['m0'] = v
        else:
            m = re.match(r'^s\[(\d+):(\d+)\]$', t)
            if m:
                for i in range(int(m.group(1)), int(m.group(2)) + 1):
                    R[i] = None
    for ins in trace:
        op, o = ins.op, ins.ops
        if op.startswith('s_load'):
            m = re.match(r'^s\[(\d+):(\d+)\]$', o[0])
            lo, hi = int(m.group(1)), int(m.group(2))
            off = int(o[2], 0)
            for i in range(lo, hi, 2):
                p = ptr[off + (i - lo) * 4]
                R[i], R[i + 1] = p & M, p >> 32
        elif op in ('v_readfirstlane_b32', 'v_readlane_b32'):
            setr(o[0], wave if o[0] == 's3' else None)
        elif op.startswith('s_cmp') or op.startswith('s_bitcmp'):
            a, b = val(o[0]), val(o[1])
            if a is None or b is None or op.endswith('u64'):
                scc[0] = None
            else:
                scc[0] = int({'s_cmp_eq_u32': a == b, 's_cmp_lg_u32': a != b, 's_cmp_lt_u32': a < b, 's_cmp_ge_u32': a >= b,
                              's_cmp_gt_u32': a > b, 's_cmp_le_u32': a <= b, 's_bitcmp1_b32': (a >> (b & 31)) & 1}[op])
        elif ins.kind == 'salu' and ins.dst:
            a = val(o[1]) if len(o) > 1 else None
            b = val(o[2]) if len(o) > 2 else None
            r = None
            if op == 's_mov_b32':
                r = a
            elif op == 's_cselect_b32':
                r = None if scc[0] is None else (a if scc[0] else b)
            elif op == 's_mov_b64':
                pass
            elif a is None or b is None:
                scc[0] = None if op != 's_mul_i32' else scc[0]
            elif op == 's_add_u32':
                r = a + b; scc[0] = r >> 32; r &= M
            elif op == 's_addc_u32':
                if scc[0] is not None:
                    r = a + b + scc[0]; scc[0] = r >> 32; r &= M
            elif op == 's_sub_u32':
                scc[0] = int(b > a); r = (a - b) & M
            elif op == 's_mul_i32':
                r = (a * b) & M
            else:
                r = {'s_lshl_b32': lambda: (a << (b & 31)) & M, 's_lshr_b32': lambda: a >> (b & 31), 's_and_b32': lambda: a & b,
                     's_or_b32': lambda: a | b, 's_xor_b32': lambda: a ^ b, 's_andn2_b32': lambda: a & ~b & M,
                     's_bfe_u32': lambda: (a >> (b & 31)) & ((1 << ((b >> 16) & 127)) - 1)}[op]()
                scc[0] = int(r != 0)
            setr(o[0], r)
        elif ins.kind == 'smem':
            setr(o[0], None)
        elif ins.kind.startswith('vmem') and op.startswith('buffer'):
            t = [x for x in o if x.startswith('s[')][0]
            d = int(re.match(r'^s\[(\d+):', t).group(1))
            w = [R.get(d + i) for i in range(4)]
            if None in w:
                probs.append(f'{name}: wg{wg} w{wave} unknown SRD {w}: {ins.text}')
                continue
            base = w[0] | (w[1] << 32)
            ok = [of for of in bufs if ptr[of] <= base and base + w[2] <= ptr[of] + bufs[of]]
            if not ok or w[3] != 0x20000:
                probs.append(f'{name}: wg{wg} w{wave} SRD outside buffers base {base:#x} n {w[2]:#x}: {ins.text}')
            elif ins.kind != 'vmem' and ins.kind != 'vmem_lds' and ok[0] < 64 or ('atomic' in op and ok[0] < 64):
                probs.append(f'{name}: wg{wg} w{wave} write to an input: {ins.text}')
            if val(o[o.index(t) + 1]) is None:
                probs.append(f'{name}: wg{wg} w{wave} unknown soffset: {ins.text}')
    return probs
```

```python
import math
import struct
import sys

sys.path.insert(0, 'work')
from asmlib import *

NAME = 'recurrent_scan__mha_block_cached__dense_activation_relu__prompt'
XN_OFF, H_OFF, O_OFF, G_OFF, S_OFF, F_OFF = 0, 0x400000, 0x1400000, 0x2400000, 0x2800000, 0x3000000
WP_OFF = 0x3800000
MF = 'v_mfma_f32_16x16x32_bf16'
OPT = dict(mk3=1, single=0, orto=0, g0e=0, g1e=0, pf3=8, pf4=0, thr=20, pfr=64, st2=0, mln=1, pf1=2, pf2=0, lnto=0, sy=1, xsc=1, dbgtest=0, rp=0, p1pf=0, k1w=0, k1pos=1, span=0, dumpq=0, empty=0, warm=1, stamp=0, x0=56, look3=2, msum=1, la=14, nodma=0, nolds=0, noexp=0, nocvt=0, nobar=0)


def f32(x):
    return '0x%08x' % struct.unpack('<I', struct.pack('<f', x))[0]


def vr(b, n=1):
    return f'v{b}' if n == 1 else f'v[{b}:{b + n - 1}]'


def ar(b, n=1):
    return f'a{b}' if n == 1 else f'a[{b}:{b + n - 1}]'


def srd(k, d, lo, hi, nbytes):
    k(f"""s_mov_b32 s{d}, {lo}
    s_mov_b32 s{d + 1}, {hi}
    s_mov_b32 s{d + 2}, {nbytes}
    s_mov_b32 s{d + 3}, 0x20000""")


def srd_off(k, d, lo, hi, off, nbytes):
    k(f"""s_add_u32 s{d}, {lo}, {off}
    s_addc_u32 s{d + 1}, {hi}, 0
    s_mov_b32 s{d + 2}, {nbytes}
    s_mov_b32 s{d + 3}, 0x20000""")


def weave(mfmas, fill):
    out = []
    for g, m in enumerate(mfmas):
        out += fill.get(('pre', g), [])
        out.append(m)
        out += fill.get(g, [])
    return out


def stamp(k, idx, sreg=92, last=False):
    if not OPT['stamp']:
        return
    k(f"""s_memtime s[{sreg}:{sreg + 1}]
    s_memrealtime s[{sreg + 2}:{sreg + 3}]
    s_waitcnt lgkmcnt(0)
    s_mov_b32 s{76 + idx}, s{sreg}
    s_mov_b32 s{84 + idx}, s{sreg + 2}""")


def stamp2(k, idx, mode=1):
    if OPT['st2'] == mode or (OPT['st2'] and idx == 0):
        k(f"""s_memrealtime s[92:93]
        s_waitcnt lgkmcnt(0)
        s_mov_b32 s{76 + idx}, s92""")


def stamp2_out(k, reg):
    if not OPT['st2']:
        return
    k(f"""s_load_dwordx2 s[72:73], s[0:1], 80
    s_waitcnt lgkmcnt(0)
    s_add_u32 s72, s72, {0x5040000 + reg * 65536}
    s_addc_u32 s73, s73, 0
    s_mov_b32 s74, 65536
    s_mov_b32 s75, 0x20000
    s_lshl_b32 s48, s2, 2
    s_add_u32 s48, s48, s3
    s_lshl_b32 s48, s48, 6""")
    for i in range(16):
        k(f'v_mov_b32 v1, s{76 + i}\nv_mov_b32 v2, {4 * i}\nbuffer_store_dword v1, v2, s[72:75], s48 offen')


def span_begin(k):
    if OPT['span']:
        k('s_memrealtime s[100:101]')


def span_end(k, v0, idx):
    if not OPT['span']:
        return
    k(f'''s_load_dwordx2 s[72:73], s[0:1], 80
    s_waitcnt {'vmcnt(0) ' if idx else ''}lgkmcnt(0)
    s_mov_b32 s76, s100
    s_memrealtime s[100:101]
    s_add_u32 s72, s72, {0x5000000 + idx * 65536}
    s_addc_u32 s73, s73, 0
    s_mov_b32 s74, 65536
    s_mov_b32 s75, 0x20000
    s_mov_b64 exec, 1
    s_lshl_b32 s77, s2, 3
    s_add_u32 s77, s77, s3
    s_lshl_b32 s77, s77, 3
    s_waitcnt lgkmcnt(0)
    v_mov_b32 v{v0}, 0
    v_mov_b32 v{v0 + 2}, s76
    v_mov_b32 v{v0 + 3}, s100
    buffer_store_dwordx2 v[{v0 + 2}:{v0 + 3}], v{v0}, s[72:75], s77 offen''')


def stamp_out(k, endlabel, lo, hi):
    k(f"""s_cmp_lg_u32 s3, 0
    s_cbranch_scc1 {endlabel}
    s_cmp_ge_u32 s2, 4
    s_cbranch_scc1 {endlabel}""")
    srd(k, 72, lo, hi, 256)
    k('s_lshl_b32 s48, s2, 6')
    for i in range(16):
        k(f'v_mov_b32 v1, s{76 + i}\nv_mov_b32 v2, {4 * i}\nbuffer_store_dword v1, v2, s[72:75], s48 offen')


def gen_ln():
    k = Kernel('ln_kernel')
    span_begin(k)
    k("""
    s_cmp_ge_u32 s2, 256
    s_cbranch_scc1 L_ln_end
    s_load_dwordx2 s[4:5], s[0:1], 0
    s_load_dwordx2 s[6:7], s[0:1], 80
    s_load_dwordx2 s[26:27], s[0:1], 24
    s_load_dwordx2 s[28:29], s[0:1], 48
    v_lshrrev_b32 v1, 6, v0
    v_and_b32 v2, 63, v0
    s_nop 0
    v_readfirstlane_b32 s3, v1
    s_lshl_b32 s16, s2, 3
    s_nop 1
    s_add_u32 s16, s16, s3            ; token T
    s_lshl_b32 s17, s16, 11
    v_lshlrev_b32 v3, 4, v2           ; lane*16
    s_waitcnt lgkmcnt(0)
    """)
    srd(k, 8, 's4', 's5', 0x400000)
    srd(k, 12, 's6', 's7', 0x400000)
    k("""
    buffer_load_dwordx4 v[4:7], v3, s[8:11], s17 offen
    buffer_load_dwordx4 v[8:11], v3, s[8:11], s17 offen offset:1024
    s_lshr_b32 s18, s16, 5
    s_lshl_b32 s18, s18, 16
    s_and_b32 s19, s16, 15
    s_lshl_b32 s19, s19, 4
    s_add_u32 s18, s18, s19
    s_and_b32 s19, s16, 16
    s_lshl_b32 s19, s19, 6
    s_add_u32 s18, s18, s19
    s_add_u32 s19, s18, 32768         ; chunk 64..127
    v_lshrrev_b32 v40, 2, v2
    v_lshlrev_b32 v40, 11, v40
    v_and_b32 v41, 3, v2
    v_lshl_add_u32 v40, v41, 8, v40   ; (c>>2)*2048 + (c&3)*256
    """)
    k(f"""
    s_cmp_ge_u32 s2, 128
    s_cbranch_scc1 L_ln_noflag
    s_cmp_lg_u32 s3, 0
    s_cbranch_scc1 L_ln_noflag
    """)
    srd_off(k, 20, 's6', 's7', F_OFF, 32768)
    k("""
    s_lshr_b32 s24, s2, 4
    s_lshl_b32 s24, s24, 12
    s_and_b32 s25, s2, 15
    s_lshl_b32 s25, s25, 7
    s_add_u32 s24, s24, s25
    v_and_b32 v41, 31, v2
    v_lshlrev_b32 v41, 2, v41
    v_mov_b32 v42, 0
    buffer_store_dword v42, v41, s[20:23], s24 offen
    L_ln_noflag:
    """)

    def warm():
        n = OPT['k1w']
        k(f'''s_lshl_b32 s30, s2, 2
        s_and_b32 s31, s3, 3
        s_add_u32 s30, s30, s31          ; 0..1023
        s_cmp_lt_u32 s3, 4
        s_cselect_b32 s32, s26, s28
        s_cselect_b32 s33, s27, s29
        s_mov_b32 s34, {896 * n}
        s_cselect_b32 s34, {1024 * n}, s34
        s_mul_i32 s30, s30, s34
        s_add_u32 s32, s32, s30
        s_addc_u32 s33, s33, 0
        s_mov_b32 s35, 0x20000
        v_lshlrev_b32 v43, 7, v2
        buffer_load_dword v60, v43, s[32:35], 0 offen ;#PF''')
    if OPT['k1w'] and OPT['k1pos'] == 0:
        warm()
        k('s_waitcnt vmcnt(1)')
    else:
        k('s_waitcnt vmcnt(0)')
    if OPT['k1w'] and OPT['k1pos'] == 1:
        warm()
    for i in range(8):
        k(f'v_lshlrev_b32 v{12 + 2 * i}, 16, v{4 + i}')
        k(f'v_and_b32 v{13 + 2 * i}, 0xffff0000, v{4 + i}')

    def tree(dst, src, n):
        cur = list(range(src, src + n))
        t = dst
        while len(cur) > 1:
            nxt = []
            for i in range(0, len(cur), 2):
                k(f'v_add_f32 v{t}, v{cur[i]}, v{cur[i + 1]}')
                nxt.append(t)
                t += 1
            cur = nxt
        return cur[0]

    def wave_sum(r, tmp):
        for mode in ('quad_perm:[1,0,3,2]', 'quad_perm:[2,3,0,1]', 'row_half_mirror', 'row_mirror'):
            k('s_nop 1')
            k(f'v_add_f32_dpp v{r}, v{r}, v{r} {mode} row_mask:0xf bank_mask:0xf')
        for sw in ('v_permlane16_swap_b32', 'v_permlane32_swap_b32'):
            k(f'v_mov_b32 v{tmp}, v{r}')
            k('s_nop 1')
            k(f'{sw} v{r}, v{tmp}')
            k(f'v_add_f32 v{r}, v{r}, v{tmp}')
    r = tree(44, 12, 16)
    wave_sum(r, 43)
    k(f'v_mul_f32 v28, {f32(1 / 1024)}, v{r}')
    for i in range(16):
        k(f'v_sub_f32 v{44 + i}, v{12 + i}, v28')
    k('v_mul_f32 v30, v44, v44')
    k('v_mul_f32 v31, v45, v45')
    for i in range(2, 16):
        k(f'v_fmac_f32 v{30 + (i & 1)}, v{44 + i}, v{44 + i}')
    k('v_add_f32 v30, v30, v31')
    wave_sum(30, 43)
    k(f"""
    v_mul_f32 v30, {f32(1 / 1024)}, v30
    v_cvt_pk_bf16_f32 v29, v28, v30
    v_lshlrev_b32 v28, 16, v29             ; m_bf
    v_and_b32 v30, 0xffff0000, v29         ; var_bf
    v_add_f32 v30, {f32(1e-5)}, v30
    v_cvt_pk_bf16_f32 v30, v30, v30
    v_and_b32 v30, 0xffff0000, v30
    v_sqrt_f32 v30, v30
    s_nop 0
    v_cvt_pk_bf16_f32 v30, v30, v30
    v_and_b32 v30, 0xffff0000, v30
    v_rcp_f32 v30, v30
    """)
    for i in range(16):
        k(f'v_sub_f32 v{12 + i}, v{12 + i}, v28')
    for i in range(8):
        k(f'v_cvt_pk_bf16_f32 v{4 + i}, v{12 + 2 * i}, v{13 + 2 * i}')
    for i in range(8):
        k(f'v_lshlrev_b32 v{12 + 2 * i}, 16, v{4 + i}')
        k(f'v_and_b32 v{13 + 2 * i}, 0xffff0000, v{4 + i}')
    for i in range(16):
        k(f'v_mul_f32 v{12 + i}, v{12 + i}, v30')
    for i in range(8):
        k(f'v_cvt_pk_bf16_f32 v{4 + i}, v{12 + 2 * i}, v{13 + 2 * i}')
    k("""
    buffer_store_dwordx4 v[4:7], v40, s[12:15], s18 offen
    buffer_store_dwordx4 v[8:11], v40, s[12:15], s19 offen
    """)
    if OPT['dbgtest']:
        k('''s_or_b32 s30, s2, s3
        s_cmp_lg_u32 s30, 0
        s_cbranch_scc1 L_ln_end
        s_load_dwordx2 s[32:33], s[0:1], 72
        s_waitcnt lgkmcnt(0)
        s_mov_b32 s34, 256
        s_mov_b32 s35, 0x20000
        v_mov_b32 v50, 0
        buffer_load_dword v51, v50, s[32:35], 0 offen sc0 sc1
        s_waitcnt vmcnt(0)
        v_readfirstlane_b32 s30, v51
        v_mov_b32 v51, 1
        s_nop 3
        buffer_store_dword v51, v50, s[32:35], 0 offen sc0 sc1
        s_cmp_eq_u32 s30, 0
        s_cbranch_scc1 L_ln_end
        s_mov_b32 s30, 60
        L_ln_spin:
        s_sleep 64
        s_sub_u32 s30, s30, 1
        s_cmp_lg_u32 s30, 0
        s_cbranch_scc1 L_ln_spin''')
    span_end(k, 50, 0)
    if OPT['k1w'] and OPT['k1pos'] == 2:
        k('s_mov_b64 exec, -1')
        warm()
    k('L_ln_end:\ns_endpgm')
    return k


LX = 139264
SYB = 4096
CX_O, CO_O, CH_O = 2048, 2304, 2432
DG_O, OR_O = 32, 64
LR, LF, LT = 64, 80, 112


def ln_offsets(k, vld, vst, vex):
    k(f"""v_and_b32 v{vex}, 7, v0
    v_lshrrev_b32 v{vst}, 3, v0
    v_lshlrev_b32 v{vld}, 11, v{vex}
    v_lshl_add_u32 v{vld}, v{vst}, 4, v{vld}      ; tok*2048 + c*16
    v_lshrrev_b32 v{LT}, 2, v{vst}
    v_and_b32 v{vst}, 3, v{vst}
    v_lshlrev_b32 v{vst}, 8, v{vst}
    v_lshl_add_u32 v{vst}, v{LT}, 11, v{vst}
    v_lshl_add_u32 v{vst}, v{vex}, 4, v{vst}      ; (c>>2)*2048 + (c&3)*256 + tok*16
    v_lshlrev_b32 v{vex}, 5, v{vex}
    v_add_u32 v{vex}, {LX}, v{vex}""")


def ln_scalars(k, sj, sld, sst, t):
    k(f"""s_lshl_b32 s{sld}, s{sj}, 14
    s_lshl_b32 s{t}, s3, 9
    s_add_u32 s{sld}, s{sld}, s{t}          ; row0*2048 + w*512
    s_lshr_b32 s{sst}, s{sj}, 2
    s_lshl_b32 s{sst}, s{sst}, 16           ; tb*65536
    s_and_b32 s{t}, s{sj}, 2
    s_lshl_b32 s{t}, s{t}, 9
    s_add_u32 s{sst}, s{sst}, s{t}          ; sub*1024
    s_and_b32 s{t}, s{sj}, 1
    s_lshl_b32 s{t}, s{t}, 7
    s_add_u32 s{sst}, s{sst}, s{t}          ; tok0*16
    s_lshl_b32 s{t}, s3, 14
    s_add_u32 s{sst}, s{sst}, s{t}          ; w*8 k-steps""")


def ln_loads(vld, srd_, sld):
    return [f'buffer_load_dwordx4 {vr(LR + 4 * i, 4)}, v{vld}, s[{srd_}:{srd_ + 3}], s{sld} offen offset:{i * 128} ;#LX' for i in range(4)]


def ln_compute(k0, vex, extra=(), every=12):
    extra = list(extra)
    st = dict(n=0, hold=False)

    def k(text):
        for t in text.strip().split('\n'):
            t = t.strip()
            if not t:
                continue
            k0(t)
            st['n'] += 1
            if 'exec' in t:
                st['hold'] = t.endswith('0xff')
            if extra and st['n'] % every == 0 and not st['hold']:
                for x in extra.pop(0):
                    k0(x)

    def unpack():
        for i in range(16):
            k(f'v_lshlrev_b32 v{LF + 2 * i}, 16, v{LR + i}')
            k(f'v_and_b32 v{LF + 2 * i + 1}, 0xffff0000, v{LR + i}')

    def xsum(r, tmp):
        k('s_nop 1')
        k(f'v_add_f32_dpp v{r}, v{r}, v{r} row_ror:8 row_mask:0xf bank_mask:0xf')
        for sw in ('v_permlane16_swap_b32', 'v_permlane32_swap_b32'):
            k(f'v_mov_b32 v{tmp}, v{r}')
            k('s_nop 1')
            k(f'{sw} v{r}, v{tmp}')
            k(f'v_add_f32 v{r}, v{r}, v{tmp}')
    unpack()
    for i in range(8):
        k(f'v_pk_add_f32 {vr(LT + 2 * i, 2)}, {vr(LF + 4 * i, 2)}, {vr(LF + 4 * i + 2, 2)}')
    for n in (4, 2, 1):
        for i in range(n):
            k(f'v_pk_add_f32 {vr(LT + 2 * i, 2)}, {vr(LT + 4 * i, 2)}, {vr(LT + 4 * i + 2, 2)}')
    MW = LR
    k(f'v_add_f32 v{MW}, v{LT}, v{LT + 1}')
    xsum(MW, MW + 1)
    k(f'v_mul_f32 v{MW + 2}, {f32(-1 / 256)}, v{MW}')
    k(f'v_mul_f32 v{MW}, {f32(1 / 256)}, v{MW}')
    k(f'v_mov_b32 v{MW + 3}, v{MW + 2}')
    for i in range(16):
        k(f'v_pk_add_f32 {vr(LT + 2 * i, 2)}, {vr(LF + 2 * i, 2)}, {vr(MW + 2, 2)}')
    for i in range(4):
        k(f'v_pk_mul_f32 {vr(MW + 4 + 2 * i, 2)}, {vr(LT + 2 * i, 2)}, {vr(LT + 2 * i, 2)}')
    for i in range(4, 16):
        a = vr(MW + 4 + 2 * (i & 3), 2)
        k(f'v_pk_fma_f32 {a}, {vr(LT + 2 * i, 2)}, {vr(LT + 2 * i, 2)}, {a}')
    k(f'v_pk_add_f32 {vr(MW + 4, 2)}, {vr(MW + 4, 2)}, {vr(MW + 6, 2)}')
    k(f'v_pk_add_f32 {vr(MW + 8, 2)}, {vr(MW + 8, 2)}, {vr(MW + 10, 2)}')
    k(f'v_pk_add_f32 {vr(MW + 4, 2)}, {vr(MW + 4, 2)}, {vr(MW + 8, 2)}')
    k(f'v_add_f32 v{MW + 1}, v{MW + 4}, v{MW + 5}')
    xsum(MW + 1, MW + 4)
    E = LT
    k(f"""s_lshl_b32 s48, s3, 3
    v_add_u32 v{MW + 4}, s48, v{vex}
    s_mov_b64 exec, 0xff
    ds_write_b64 v{MW + 4}, {vr(MW, 2)}
    s_mov_b64 exec, -1
    s_waitcnt lgkmcnt(0)
    s_barrier
    ds_read_b128 {vr(E, 4)}, v{vex}
    ds_read_b128 {vr(E + 4, 4)}, v{vex} offset:16
    s_waitcnt lgkmcnt(0)
    v_add_f32 v{MW}, v{E}, v{E + 2}
    v_add_f32 v{MW + 1}, v{E + 4}, v{E + 6}
    v_add_f32 v{MW + 2}, v{E + 1}, v{E + 3}
    v_add_f32 v{MW + 3}, v{E + 5}, v{E + 7}
    v_add_f32 v{MW}, v{MW}, v{MW + 1}
    v_add_f32 v{MW + 2}, v{MW + 2}, v{MW + 3}
    v_mul_f32 v{MW}, 0.25, v{MW}                   ; mean
    v_sub_f32 v{E}, v{E}, v{MW}
    v_sub_f32 v{E + 2}, v{E + 2}, v{MW}
    v_sub_f32 v{E + 4}, v{E + 4}, v{MW}
    v_sub_f32 v{E + 6}, v{E + 6}, v{MW}
    v_mul_f32 v{E}, v{E}, v{E}
    v_mul_f32 v{E + 4}, v{E + 4}, v{E + 4}
    v_fmac_f32 v{E}, v{E + 2}, v{E + 2}
    v_fmac_f32 v{E + 4}, v{E + 6}, v{E + 6}
    v_add_f32 v{E}, v{E}, v{E + 4}
    v_fmac_f32 v{MW + 2}, {f32(256.0)}, v{E}
    v_mul_f32 v{MW + 2}, {f32(1 / 1024)}, v{MW + 2}   ; variance
    v_cvt_pk_bf16_f32 v{MW + 1}, v{MW}, v{MW + 2}
    v_lshlrev_b32 v{MW}, 16, v{MW + 1}
    v_and_b32 v{MW + 2}, 0xffff0000, v{MW + 1}
    v_add_f32 v{MW + 2}, {f32(1e-5)}, v{MW + 2}
    v_cvt_pk_bf16_f32 v{MW + 2}, v{MW + 2}, v{MW + 2}
    v_and_b32 v{MW + 2}, 0xffff0000, v{MW + 2}
    v_sqrt_f32 v{MW + 2}, v{MW + 2}
    v_sub_f32 v{E}, 0, v{MW}
    v_sub_f32 v{E + 1}, 0, v{MW}
    v_cvt_pk_bf16_f32 v{MW + 2}, v{MW + 2}, v{MW + 2}
    v_and_b32 v{MW + 2}, 0xffff0000, v{MW + 2}
    v_rcp_f32 v{E + 2}, v{MW + 2}
    v_rcp_f32 v{E + 3}, v{MW + 2}
    """)
    for i in range(16):
        k(f'v_pk_add_f32 {vr(LF + 2 * i, 2)}, {vr(LF + 2 * i, 2)}, {vr(E, 2)}')
    for i in range(16):
        k(f'v_cvt_pk_bf16_f32 v{LR + i}, v{LF + 2 * i}, v{LF + 2 * i + 1}')
    unpack()
    for i in range(16):
        k(f'v_pk_mul_f32 {vr(LF + 2 * i, 2)}, {vr(LF + 2 * i, 2)}, {vr(E + 2, 2)}')
    for i in range(16):
        k(f'v_cvt_pk_bf16_f32 v{LR + i}, v{LF + 2 * i}, v{LF + 2 * i + 1}')


def ln_stores(vst, sst):
    out = []
    for i in range(4):
        out.append(f'buffer_store_dwordx4 {vr(LR + 4 * i, 4)}, v{vst}, s[4:7], s{sst} offen sc0 sc1 ;#LS')
        if i < 3:
            out.append(f's_add_u32 s{sst}, s{sst}, 4096')
    return out

GSLOT = 45056
ABASE = 32768
KSLOT = lambda i: 4 + ((i + 3) & 3)
VSLOT = lambda i: (i + 1) & 3
S_ = lambda b, kvt, qt: b * 64 + ((kvt >> 1) * 4 + qt) * 8 + (kvt & 1) * 4
P_ = lambda b, u, qt: b * 64 + (u * 4 + qt) * 8
NEGM = lambda qt: 128 + 4 * qt
ONES = 144
VKA = 148
VVA = 152
VKD = 160
VVD = 164
VLN = 166
VPFO = 167
VMT = 168
VL = 204
VT = 208
RPV, RPD = 250, 252
HG = lambda p, tt: (64 + 8 * (2 * p + tt)) if 2 * p + tt < 10 else (172 + 8 * (2 * p + tt - 10))
HACC = lambda nt, tt: HG(nt >> 1, tt) + 4 * (nt & 1)
PWQ, PW1, PQ0, PCQ, P10, PC1 = 2, 6, 13, 21, 29, 31
OACC = lambda dt, qt: (dt * 4 + qt) * 4
QF = lambda qt, s: 128 + (qt * 4 + s) * 4
XN = lambda b, tt, s: 128 + b * 32 + (tt * 2 + s) * 4
RING = 192
LACC = lambda qt: 224 + 4 * qt
NR1 = 11
VD3 = 224
VZR, VONE, VPO, VDG, VOR = range(232, 237)
VB3 = 172
W3 = lambda T: 32768 + ((T + 3) & 3) * 32768
OOB = '0x7fffffff'


def WT():
    return ' sc0 sc1' if OPT['mk3'] else ''


def lane_grc(k, g, r, c, lane=0):
    k(f"""v_lshrrev_b32 v{g}, 4, v{lane}
    v_bfe_u32 v{r}, v{lane}, 2, 2
    v_and_b32 v{c}, 3, v{lane}""")


def p1_dmas(tag, wtag):
    g = []
    for j in range(4):
        g.append((['s_add_u32 m0, s40, s45'] if j == 0 else [],
                  f'buffer_load_dwordx4 v{PWQ + j}, s[8:11], s38 offen offset:{j * 1024} lds',
                  ['s_add_u32 s38, s38, 0x80000'] if j == 3 else []))
    for j in range(7):
        g.append(([f's_add_u32 m0, s40, s{46 + (j >> 2)}'] if j in (0, 4) else [],
                  f'buffer_load_dwordx4 v{PW1 + j}, s[12:15], s39 offen offset:{(j & 3) * 1024} lds',
                  ['s_add_u32 s39, s39, 0x70000', 's_mov_b32 s41, s49', 's_mov_b32 s49, s40', f's_add_u32 s40, s40, {GSLOT}',
                   f's_cmp_lt_u32 s40, {3 * GSLOT}', 's_cselect_b32 s40, s40, 0'] if j == 6 else []))
    return g


def xn_loads(b):
    g = []
    for t in range(2):
        for s in range(2):
            for sub in range(2):
                g.append(([], f'buffer_load_dwordx4 {ar(XN(b, 2 * t + sub, s), 4)}, v{VLN}, s[4:7], s{36 + t} offen '
                              f'offset:{s * 2048 + sub * 1024}{" sc1" if OPT["mln"] and OPT["xsc"] else ""} ;#X',
                          [f's_add_u32 s{36 + t}, s{36 + t}, 4096'] if s and sub else []))
    return g


def kdma(i, tag):
    return [([f's_add_u32 m0, s45, {ABASE + KSLOT(i) * 16384}'] if j == 0 else [],
             f'buffer_load_dwordx4 v{VKD + j}, s[16:19], s43 offen offset:{j * 1024} lds',
             ['s_add_u32 s43, s43, 16384'] if j == 3 else []) for j in range(4)]


def vdma(i, tag):
    return [([f's_add_u32 m0, s45, {ABASE + VSLOT(i) * 16384}'] if j == 0 else [],
             f'buffer_load_dwordx4 v{VVD + (j & 1)}, s[20:23], s44 offen offset:{j * 1024} lds',
             ['s_add_u32 s44, s44, 16384'] if j == 3 else []) for j in range(4)]


def flat(vm):
    out = []
    for pre, v, post in vm:
        out += pre + (['s_nop 0'] if pre else []) + [v] + post
    return out


def sched_vmem(G, fns, gaps):
    prev = -10 ** 6
    for n, (fn, g) in enumerate(zip(fns, gaps)):
        while not G.fits(g, 8):
            g += 1
        pre, _, post = fn(0)
        G.put(g, lambda i, fn=fn: [fn(i)[1]], 8, kind='vm')
        for j in range(len(pre)):
            G.place(max(prev + 1, g - 3, 0), g - 1, g - 1, lambda i, fn=fn, j=j: [fn(i)[0][j]], 4, kind='vm', pack=True)
        lo = g + 1
        nxt = gaps[n + 1] if n + 1 < len(gaps) else g + 8
        for j in range(len(post)):
            lo = G.place(lo, g + 6, lo, lambda i, fn=fn, j=j: [fn(i)[2][j]], 4, kind='vm')
        prev = g


P1_SEQ = ['Q0', 'F0', 'Q1', 'F1', 'Q2', 'F2', 'Q3', 'F3', 'Q4', 'F4', 'Q5', 'F5', 'F6', 'Q6', 'Q7']
P1_GB = 103


def p1_frags():
    fr = []
    for gi, name in enumerate(P1_SEQ):
        g0, x = 8 * gi, int(name[1:])
        if name[0] == 'Q':
            for s in range(2):
                fr.append(('Q', x, s, g0, g0 + 6 + s))
        else:
            for e in range(2):
                for s in range(2):
                    fr.append(('F', 2 * x + e, s, g0, g0 + 4 * e + 2 + s))
    return fr


def p1_mfmas(b):
    mf, n = [], 0
    for name in P1_SEQ:
        x = int(name[1:])
        if name[0] == 'Q':
            for tt in range(4):
                for s in range(2):
                    a = ar(RING + ((n + s) % NR1) * 4, 4)
                    mf.append(f'{MF} {ar(OACC(x, tt), 4)}, {a}, {ar(XN(b, tt, s), 4)}, {ar(OACC(x, tt), 4)}')
            n += 2
        else:
            for e in range(2):
                for tt in range(2):
                    for s in range(2):
                        a = ar(RING + ((n + 2 * e + s) % NR1) * 4, 4)
                        h = vr(HACC(2 * x + e, tt), 4)
                        mf.append(f'{MF} {h}, {a}, {ar(XN(b, tt, s), 4)}, {h}')
            n += 4
    return mf


def p1_read(n, hh):
    kind, x, s, _, _ = p1_frags()[n]
    d = RING + (n % NR1) * 4 + 2 * hh
    if kind == 'Q':
        return f'ds_read_b64_tr_b16 {ar(d, 2)}, v{PCQ + x} offset:{s * 8192 + hh * 1024} ;@R G 0'
    return f'ds_read_b64_tr_b16 {ar(d, 2)}, v{PC1 + (x & 1)} offset:{(x >> 1) * 64 + (s * 32 + hh * 4) * 448} ;@R G 0'


def p1_sched(mode):
    G = Gaps(120)
    fr = p1_frags()
    for gi in range(len(P1_SEQ)):
        regs = [ar(RING + (n % NR1) * 4, 4) for n, f in enumerate(fr) if f[3] == 8 * gi]
        G.put(8 * gi - 1, lambda i, regs=regs: [('need', regs)], 4, prio=9, kind='need')
    G.put(P1_GB, lambda i: [('vmwait', [f'G{(i + 1) & 1}'], ' lgkmcnt(0)'), 's_barrier ;@ROT G'], 8, kind='bar')
    G.put(118, lambda i: [('vmwait', ['X'])], 4, prio=8, kind='bar')
    if mode == 't15' and OPT['mln']:
        G.put(108, lambda i: [('vmwait', ['K0']), 's_barrier'], 8, kind='k0bar')
    upd = {}
    g = P1_GB + 1
    if mode == 't14':
        G.put(90, lambda i: ['s_mov_b32 s41, s49'], 4, kind='bar')
    order = [('Q', 0), ('F', 0), ('F', 1)] + [('Q', d) for d in range(1, 8)]
    for kd, x in order:
        ins = f'v_add_u32 v{PCQ + x}, s41, v{PQ0 + x}' if kd == 'Q' else f'v_add_u32 v{PC1 + x}, s41, v{P10 + x}'
        g = G.place(g, 119, g, lambda i, ins=ins: [ins], 4, kind='bar', prio=1)
        upd[(kd, x)] = g
    if mode == 'loop':
        fns = [lambda i, j=j: xn_loads((i + 1) & 1)[j] for j in range(8)] + \
              [lambda i, j=j: p1_dmas(f'G{i & 1}', '+2')[j] for j in range(11)]
        gaps = [2 + 5 * j for j in range(8)] + [42 + (11 * j) // 2 for j in range(11)]
    elif mode == 't14' and OPT['mln']:
        fns = [lambda i, j=j: xn_loads(1)[j] for j in range(8)] + \
              [lambda i, j=j: (kdma(0, 'K0') + vdma(0, 'V0') + vdma(1, 'V1'))[j] for j in range(12)]
        gaps = [2 + 5 * j for j in range(8)] + [42 + 5 * j for j in range(12)]
    elif mode == 't14':
        fns = [lambda i, j=j: xn_loads(1)[j] for j in range(8)] + \
              [lambda i, j=j: (vdma(0, 'V0') + vdma(1, 'V1'))[j] for j in range(8)]
        gaps = [2 + 6 * j for j in range(8)] + [50 + 6 * j for j in range(8)]
    else:
        fns = [lambda i, j=j: (kdma(1, 'K1') + kdma(2, 'K2') + kdma(3, 'K3'))[j] for j in range(12)]
        gaps = [2 + 9 * j for j in range(12)]
    sched_vmem(G, fns, gaps)
    prev = -10 ** 6
    for n, (kd, x, s, fu, lu) in enumerate(fr):
        pl = fr[n - NR1][4] - (120 if n < NR1 else 0)
        lo = max(pl + 1, prev, upd[(kd, x if kd == 'Q' else x & 1)] - 120 + 1)
        hi = min(fu - 6, P1_GB - 3)
        assert lo <= hi, (n, lo, hi)
        for hh in range(2):
            prev = G.place(lo, hi, fu - OPT['la'], lambda i, n=n, hh=hh: [p1_read(n, hh)], 4, kind='rd', pack=True)
            lo = prev
    return G


def k_read(i, n):
    kvt, s = divmod(n, 4)
    return f'ds_read_b128 {ar(RING + (n & 7) * 4, 4)}, v{VKA + s} offset:{(KSLOT(i) - 4) * 16384 + kvt * 4096} ;@R A {KSLOT(i)}'


def v_read(i, n, hh):
    dt, u = divmod(n - 16, 2)
    return (f'ds_read_b64_tr_b16 {ar(RING + (n & 7) * 4 + 2 * hh, 2)}, v{VVA + dt} '
            f'offset:{VSLOT(i) * 16384 + u * 8192 + hh * 4096} ;@R A {VSLOT(i)}')


def elem_reg(b, e):
    kvt, qt, r = e >> 4, (e >> 2) & 3, e & 3
    return S_(b, kvt, qt) + r


def sm_exp(b, e):
    r = elem_reg(b, e)
    return f'v_exp_f32 v{r}, v{r}'


def sm_add(b, e):
    qt = (e >> 2) & 3
    return f'v_add_f32 v{VL + qt}, v{VL + qt}, v{elem_reg(b, e)}'


def sm_cvt(b, e):
    kvt, qt, r = e >> 4, (e >> 2) & 3, e & 3
    src = elem_reg(b, e)
    return f'v_cvt_pk_bf16_f32 v{P_(b, kvt >> 1, qt) + 2 * (kvt & 1) + (r >> 1)}, v{src - 1}, v{src}'


def qk_mfmas(bS, c0=None):
    mf = []
    for kvt in range(4):
        for qt in range(4):
            for s in range(4):
                d = vr(S_(bS, kvt, qt), 4)
                c = d if s else (c0 if c0 is not None else vr(NEGM(qt), 4))
                mf.append(f'{MF} {d}, {ar(RING + ((kvt * 4 + s) & 7) * 4, 4)}, {ar(QF(qt, s), 4)}, {c}')
    return mf


def pv_mfmas(bS):
    mf = []
    for dt in range(8):
        for qt in range(4):
            for u in range(2):
                o = ar(OACC(dt, qt), 4)
                mf.append(f'{MF} {o}, {ar(RING + ((16 + dt * 2 + u) & 7) * 4, 4)}, {vr(P_(bS, u, qt), 4)}, {o}')
        if OPT['msum']:
            qt, u = dt >> 1, dt & 1
            mf.append(f'{MF} {ar(LACC(qt), 4)}, {vr(ONES, 4)}, {vr(P_(bS, u, qt), 4)}, {ar(LACC(qt), 4)}')
    return mf


def rp_item(i):
    if i & 1 == 0:
        return ([], f'buffer_load_dwordx4 {vr(RPD, 4)}, v{RPV + ((i >> 1) & 1)}, s[68:71], s65 offen ;#RP', ['s_add_u32 s65, s65, 8192'])
    return ([], f'buffer_store_dwordx4 {vr(RPD, 4)}, v{VLN}, s[96:99], s34 offen ;#RS', ['s_add_u32 s34, s34, 1024'])


def att_sched():
    PW = 9 if OPT['msum'] else 8
    NG = 64 + 8 * PW
    G = Gaps(NG)
    fu = [16 * (n >> 2) for n in range(16)] + [64 + PW * (n >> 1) for n in range(16)]
    lu = [16 * (n >> 2) + 12 + (n & 3) for n in range(16)] + [64 + PW * (n >> 1) + 6 + (n & 1) for n in range(16)]
    for g0 in sorted(set(fu)):
        regs = [ar(RING + (n & 7) * 4, 4) for n in range(32) if fu[n] == g0]
        G.put(g0 - 1, lambda i, regs=regs: [('need', regs)], 4, prio=9, kind='need')
    GB = lu[24] - 3
    G.put(GB, lambda i: [('vmwait', [f'V{(i + 1) & 3}', f'K{(i + 2) & 3}']), 's_barrier'], 8, kind='bar')
    fns = [lambda i, j=j: (vdma(i + 2, f'V{(i + 2) & 3}') + kdma(i + 4, f'K{i & 3}'))[j] for j in range(8)]
    gaps = [4 + (NG * j) // 8 for j in range(8)]
    if OPT['rp']:
        fns.append(lambda i: rp_item(i))
        gaps.append(NG - 6)
    elif OPT['warm']:
        fns.append(lambda i: ([], f'buffer_load_dword v{VT + 40}, v{VPFO}, s[68:71], s65 offen ;#PF', ['s_add_u32 s65, s65, 2048'])
                   if (i & 3) == 1 else ([], 's_nop 0', ['s_nop 0']))
        gaps.append(NG - 6)
    sched_vmem(G, fns, gaps)
    X0 = OPT['x0']
    eg = []
    prev = -1
    for e in range(64):
        ready = 16 * (e >> 4) + 4 * ((e >> 2) & 3) + 3 + 5
        prev = G.place(max(ready, prev + 1), NG + 58, X0 + (e * NG) // 64, lambda i, e=e: [sm_exp((i + 1) & 1, e)], 8, kind='exp')
        eg.append(prev)
    prev = -10 ** 6
    for n in range(32):
        pl = lu[n - 8] - (NG if n < 8 else 0)
        lo = max(pl + 1, prev)
        if n < 16:
            lo = max(lo, GB + 1 - NG)
            prev = G.place(lo, fu[n] - 6, fu[n] - OPT['la'], lambda i, n=n: [k_read(i + 1, n)], 4, kind='rd', pack=True)
        else:
            for hh in range(2):
                prev = G.place(lo, fu[n] - 6, fu[n] - OPT['la'], lambda i, n=n, hh=hh: [v_read(i, n, hh)], 4, kind='rd', pack=True)
                lo = prev
    prev = -1
    for e in range(1, 64, 2):
        prev = G.place(max(eg[e] + 1, prev), NG + 61, eg[e] + 1, lambda i, e=e: [sm_cvt((i + 1) & 1, e)], 4, kind='cvt', pack=True, prio=2)
        if not OPT['msum']:
            for x in (e - 1, e):
                G.place(eg[e] + 1, prev, eg[e] + 1, lambda i, x=x: [sm_add((i + 1) & 1, x)], 4, kind='cvt', prio=1)
    return G, NG


def drop(items):
    d = []
    if OPT['nodma']:
        d += ['buffer_load', 's_add_u32']
    if OPT['nobar']:
        d += ['s_barrier']
    if OPT['nolds']:
        d += ['ds_read']
    if OPT['noexp']:
        d += ['v_exp']
    if OPT['nocvt']:
        d += ['v_cvt']
    return [x for x in items if x != 's_nop 0' and (isinstance(x, tuple) or not any(x.startswith(p) for p in d))]


def xgroup(k, op, regs, tmp):
    for sw in ('v_permlane32_swap_b32', 'v_permlane16_swap_b32'):
        for j, r in enumerate(regs):
            k(f'v_mov_b32 v{tmp + j}, v{r}')
        k('s_nop 1')
        for j, r in enumerate(regs):
            k(f'{sw} v{r}, v{tmp + j}')
        for j, r in enumerate(regs):
            k(f'{op} v{r}, v{r}, v{tmp + j}')


def flush(k, lin):
    k('\n'.join(lin.out))
    lin.out = []


def gen_k2():
    k = Kernel('att_kernel')
    span_begin(k)
    stamp2(k, 0)
    C = math.log2(math.e) / math.sqrt(128.0)
    k("""
    s_cmp_ge_u32 s2, 256
    s_cbranch_scc1 L_k2_end
    s_load_dwordx4 s[52:55], s[0:1], 8      ; K, V
    s_load_dwordx2 s[56:57], s[0:1], 24     ; wq
    s_load_dwordx2 s[58:59], s[0:1], 48     ; w1
    s_load_dwordx2 s[60:61], s[0:1], 80     ; ws
    s_load_dwordx2 s[62:63], s[0:1], 72     ; dbg
    s_load_dwordx2 s[96:97], s[0:1], 32     ; wo
    s_load_dwordx2 s[98:99], s[0:1], 56     ; w2
    s_load_dwordx2 s[66:67], s[0:1], 0      ; x
    v_lshrrev_b32 v1, 6, v0
    v_and_b32 v0, 63, v0
    s_and_b32 s32, s2, 7
    v_readfirstlane_b32 s3, v1
    s_lshl_b32 s32, s32, 2
    s_lshr_b32 s33, s2, 3
    s_and_b32 s34, s33, 3
    s_add_u32 s32, s32, s34                 ; head
    s_lshr_b32 s33, s33, 2                  ; q block
    s_and_b32 s34, s32, 1                   ; parity
    s_lshl_b32 s45, s3, 12                  ; w*4096
    s_mul_i32 s46, s3, 7168
    s_add_u32 s46, s46, 16384
    s_add_u32 s47, s46, 4096
    s_lshl_b32 s35, s33, 3
    s_lshl_b32 s50, s3, 1
    s_add_u32 s35, s35, s50
    s_add_u32 s50, s35, s34
    s_xor_b32 s51, s34, 1
    s_add_u32 s51, s35, s51
    s_lshl_b32 s36, s50, 16
    s_lshl_b32 s37, s51, 16
    s_mov_b32 s38, 0
    s_mov_b32 s39, 0
    s_mov_b32 s40, 0
    s_mov_b32 s41, 0
    s_mov_b32 s43, 0
    s_mov_b32 s44, 0
    s_mov_b32 s64, 0
    """)
    stamp(k, 0)
    T0, T1, T2, T3, T4, T5 = range(VT, VT + 6)
    VLD, VST, VEX, VPF, VCK, VZ2, VAT, VCF = range(VT + 8, VT + 16)
    MLN = OPT['mln']
    lin = Lin()

    def srds():
        srd_off(k, 4, 's60', 's61', XN_OFF, 0x400000)
        k('s_lshl_b32 s48, s32, 8')
        srd_off(k, 8, 's56', 's57', 's48', 0)
        k('s_mov_b32 s10, 0x800000\ns_sub_u32 s10, s10, s48')
        k('s_lshr_b32 s48, s32, 1\ns_mul_i32 s48, s48, 448')
        srd_off(k, 12, 's58', 's59', 's48', 0)
        k('s_sub_u32 s14, 0x700000, s48')
        k('s_lshl_b32 s48, s32, 19')
        srd_off(k, 16, 's52', 's53', 's48', 0x80000)
        srd_off(k, 20, 's54', 's55', 's48', 0x80000)

    def pf_rows(row0, rw):
        k(f'''s_lshr_b32 s48, s2, 3
        s_lshl_b32 s48, s48, 1
        s_and_b32 s49, s3, 1
        s_add_u32 s48, s48, s49
        s_mul_i32 s48, s48, {rw // 2}
        s_add_u32 s48, s48, {row0}
        s_mul_i32 s48, s48, s65''')
        for r in range(0, rw // 2, 8):
            if rw // 2 - r < 8:
                m = (1 << (8 * (rw // 2 - r))) - 1
                k(f's_mov_b32 exec_lo, {m & 0xffffffff:#x}\ns_mov_b32 exec_hi, {m >> 32:#x}')
            lin.add(f'buffer_load_dword v{VT + 40}, v{VPF}, s[68:71], s48 offen ;#PF')
            flush(k, lin)
            if rw // 2 - r < 8:
                k('s_mov_b64 exec, -1')
            elif r + 8 < rw // 2:
                k('s_lshl_b32 s49, s65, 3\ns_add_u32 s48, s48, s49')
    if MLN:
        ln_offsets(k, VLD, VST, VEX)
        k(f'''v_lshlrev_b32 v{VCK}, 7, v0
        v_mov_b32 v{VZ2}, 0
        s_mov_b32 s42, s2
        s_waitcnt lgkmcnt(0)''')
        stamp2(k, 1)
        srd(k, 72, 's66', 's67', 0x400000)
        k(f's_lshl_b32 s48, s33, 12\ns_add_u32 s48, s48, {F_OFF}')
        srd_off(k, 28, 's60', 's61', 's48', SYB)
        srd(k, 24, 's62', 's63', 256)
        ln_scalars(k, 42, 66, 67, 48)
        k(f'''s_and_b32 s48, s2, 31
        s_xor_b32 s49, s3, 3
        s_or_b32 s64, s48, s49
        s_cmp_lg_u32 s64, 0
        s_cbranch_scc1 L_nolead1
        s_mov_b64 exec, 0xfffff
        buffer_store_dword v{VZ2}, v{VCK}, s[28:31], 0 offen sc0 sc1
        s_mov_b64 exec, -1
        L_nolead1:''')
        lin.run(ln_loads(VLD, 72, 66))
        flush(k, lin)
        if OPT['pf1'] or OPT['pf2'] or OPT['pf3'] or OPT['pf4']:
            k(f'''
            s_and_b32 s48, s2, 7
            s_cmp_lt_u32 s3, 2
            s_cselect_b32 s68, s56, s58
            s_cselect_b32 s69, s57, s59
            s_mov_b32 s70, 896
            s_cselect_b32 s70, 1024, s70
            s_cselect_b32 s49, 8, 7
            s_mul_i32 s48, s48, s70
            s_add_u32 s68, s68, s48
            s_addc_u32 s69, s69, 0
            s_lshl_b32 s65, s70, 3
            s_lshl_b32 s70, s70, 13
            s_sub_u32 s70, s70, s48
            s_mov_b32 s71, 0x20000
            v_lshrrev_b32 v{T2}, 3, v0
            v_mul_lo_u32 v{VPF}, v{T2}, s65
            v_and_b32 v{T5}, 7, v0
            v_lshl_add_u32 v{VPF}, v{T5}, 7, v{VPF}
            v_mov_b32 v{T2}, 0x7fffffff
            v_cmp_le_u32 vcc, s49, v{T5}
            s_nop 1
            v_cndmask_b32 v{VPF}, v{VPF}, v{T2}, vcc
            ''')
        if OPT['pf1']:
            pf_rows(0, OPT['pf1'])
        srds()
        k('s_mov_b32 s52, s72\ns_mov_b32 s53, s73\ns_load_dwordx2 s[54:55], s[0:1], 64')
    k(f"""
    v_lshlrev_b32 v{VLN}, 4, v0
    v_lshrrev_b32 v{T0}, 4, v0              ; l>>4
    v_and_b32 v{T1}, 15, v0                 ; l&15
    s_lshl_b32 s48, s3, 4
    v_add_u32 v{T3}, s48, v{T0}             ; row = 16w + (l>>4)
    """)
    for j in range(4):
        k(f"""v_or_b32 v{T2}, {(j >> 1) << 2}, v{T0}
        v_lshlrev_b32 v{T2}, 1, v{T2}
        v_xor_b32 v{T2}, v{T2}, v{T1}
        v_lshlrev_b32 v{T2}, 4, v{T2}
        v_lshl_add_u32 v{PWQ + j}, v{T3}, 13, v{T2}""")
        if j:
            k(f'v_add_u32 v{PWQ + j}, {j * 31744}, v{PWQ + j}')
    k('s_mul_i32 s48, s3, 114688')
    for j in range(7):
        k(f"""v_add_u32 v{T2}, {64 * j}, v0
        v_mul_u32_u24 v{T4}, 2341, v{T2}
        v_lshrrev_b32 v{T4}, 16, v{T4}          ; row = x/28
        v_mul_u32_u24 v{T5}, 28, v{T4}
        v_sub_u32 v{T2}, v{T2}, v{T5}           ; pos
        v_lshrrev_b32 v{T5}, 2, v{T4}
        v_and_b32 v{T5}, 2, v{T5}
        v_xor_b32 v{T2}, v{T2}, v{T5}
        v_mul_u32_u24 v{PW1 + j}, 7168, v{T4}
        v_lshl_add_u32 v{PW1 + j}, v{T2}, 4, v{PW1 + j}
        v_add_u32 v{PW1 + j}, s48, v{PW1 + j}""")
        if j & 3:
            k(f'v_subrev_u32 v{PW1 + j}, {(j & 3) * 1024}, v{PW1 + j}')
    for j in range(4):
        k(f"""v_add_u32 v{T2}, {4 * j}, v{T0}
        v_xor_b32 v{T2}, v{T2}, v{T1}
        v_lshlrev_b32 v{T2}, 4, v{T2}
        v_lshl_add_u32 v{VKD + j}, v{T3}, 8, v{T2}""")
    if MLN:
        npf = sum(1 for t, _ in lin.vm if t == 'PF')
        k(f'''s_cmp_lg_u32 s64, 0
        s_cbranch_scc1 L_nolead2
        s_waitcnt vmcnt({4 + npf})
        v_mov_b32 v{VAT}, 1
        s_lshl_b32 s48, s33, 2
        s_mov_b64 exec, 1
        buffer_store_dword v{VAT}, v{VZ2}, s[24:27], s48 offen sc0 sc1
        s_mov_b64 exec, -1
        L_nolead2:
        s_mov_b32 s64, 0''')
    else:
        k('s_waitcnt lgkmcnt(0)')
        srds()
        lin.run(flat(p1_dmas('G0', '+0')))
        lin.run(flat(xn_loads(0)))
        lin.run(flat(p1_dmas('G1', '+1')))
        lin.run(flat(kdma(0, 'K0')))
        flush(k, lin)
    if OPT['p1pf']:
        k(f'''
        s_and_b32 s48, s2, 7
        s_cmp_lt_u32 s3, 2
        s_cselect_b32 s68, s56, s58
        s_cselect_b32 s69, s57, s59
        s_mov_b32 s70, 896
        s_cselect_b32 s70, 1024, s70
        s_mul_i32 s48, s48, s70
        s_add_u32 s68, s68, s48
        s_addc_u32 s69, s69, 0
        s_lshl_b32 s65, s70, 3
        s_lshl_b32 s70, s70, 13
        s_sub_u32 s70, s70, s48
        s_mov_b32 s71, 0x20000
        s_lshr_b32 s48, s2, 3
        s_lshl_b32 s48, s48, 1
        s_and_b32 s49, s3, 1
        s_add_u32 s48, s48, s49
        s_mul_i32 s48, s48, 7
        s_add_u32 s48, s48, 128
        v_lshrrev_b32 v{T2}, 3, v0
        v_add_u32 v{T4}, s48, v{T2}
        v_mul_lo_u32 v{T4}, v{T4}, s65
        v_and_b32 v{T5}, 7, v0
        v_lshl_add_u32 v{T4}, v{T5}, 7, v{T4}
        v_cmp_lt_u32 vcc, 6, v{T2}
        v_mov_b32 v{T2}, 0x7fffffff
        s_mul_i32 s65, s65, 448
        v_cndmask_b32 v{T4}, v{T4}, v{T2}, vcc
        ''')
        lin.add(f'buffer_load_dword v{VT + 40}, v{T4}, s[68:71], 0 offen ;#PF')
        if OPT['p1pf'] == 1:
            lin.add(f'buffer_load_dword v{VT + 40}, v{T4}, s[68:71], s65 offen ;#PF')
        flush(k, lin)
    if not MLN:
        srd_off(k, 24, 's60', 's61', H_OFF, 0xE00000)
        srd_off(k, 28, 's60', 's61', O_OFF, 0x1000000)
    for j in range(2):
        k(f"""v_add_u32 v{T2}, {4 * j}, v{T0}
        v_lshlrev_b32 v{T2}, 1, v{T2}
        v_xor_b32 v{T2}, v{T2}, v{T1}
        v_lshlrev_b32 v{T2}, 4, v{T2}
        v_lshl_add_u32 v{VVD + j}, v{T3}, 8, v{T2}""")
    for s in range(4):
        k(f"""v_add_u32 v{T2}, {4 * s}, v{T0}
        v_xor_b32 v{T2}, v{T2}, v{T1}
        v_lshlrev_b32 v{T2}, 4, v{T2}
        v_lshl_add_u32 v{VKA + s}, v{T1}, 8, v{T2}
        v_add_u32 v{VKA + s}, {ABASE + 4 * 16384}, v{VKA + s}""")
    lane_grc(k, T0, T1, T2)
    k(f"""
    v_lshlrev_b32 v{T2}, 3, v{T2}           ; c*8
    v_lshl_add_u32 v{T3}, v{T0}, 2, v{T1}   ; V row = 4g + r
    v_and_b32 v{T4}, 7, v{T3}
    v_lshl_add_u32 v{T3}, v{T3}, 8, v{T2}
    v_add_u32 v{T3}, {ABASE}, v{T3}
    """)
    for dt in range(8):
        k(f"""v_xor_b32 v{T5}, {dt}, v{T4}
        v_lshl_add_u32 v{VVA + dt}, v{T5}, 5, v{T3}""")
    k(f"""
    v_lshl_add_u32 v{T3}, v{T0}, 3, v{T1}   ; w row = 8g + r
    v_and_b32 v{T0}, 1, v{T0}               ; g&1
    v_lshl_or_b32 v{T4}, v{T0}, 2, v{T1}    ; f
    v_mul_u32_u24 v{T1}, 448, v{T3}
    v_add_u32 v{T1}, v{T1}, v{T2}
    v_add_u32 v{T1}, 16384, v{T1}
    v_lshl_add_u32 v{T3}, v{T3}, 8, v{T2}
    """)
    for dt in range(8):
        k(f"""v_xor_b32 v{T5}, {dt}, v{T4}
        v_lshl_add_u32 v{PQ0 + dt}, v{T5}, 5, v{T3}
        v_mov_b32 v{PCQ + dt}, v{PQ0 + dt}""")
    for p in range(2):
        k(f"""v_xor_b32 v{T5}, {p}, v{T0}
        v_lshl_add_u32 v{P10 + p}, v{T5}, 5, v{T1}
        v_mov_b32 v{PC1 + p}, v{P10 + p}""")
    def rp_setup():
        if OPT['rp']:
            k(f'''
            v_lshrrev_b32 v{T0}, 4, v0
            v_and_b32 v{T1}, 15, v0
            s_and_b32 s49, s3, 1
            s_lshl_b32 s48, s2, 1
            s_add_u32 s48, s48, s49
            s_and_b32 s49, s48, 7            ; nb
            s_lshr_b32 s48, s48, 3
            s_cmp_lt_u32 s3, 2
            s_cselect_b32 s35, 16, 14        ; pieces
            s_cselect_b32 s68, s96, s98
            s_cselect_b32 s69, s97, s99
            s_mov_b32 s34, {WP_OFF}
            s_cselect_b32 s34, s34, {WP_OFF + 0x800000}
            s_mul_i32 s48, s48, s35
            s_lshl_b32 s65, s48, 13
            s_lshl_b32 s70, s49, 8
            s_add_u32 s65, s65, s70
            s_add_u32 s68, s68, s65
            s_addc_u32 s69, s69, 0
            s_lshl_b32 s70, s35, 13
            s_sub_u32 s70, s70, 1792
            s_mov_b32 s71, 0x20000
            s_mul_i32 s49, s49, s35
            s_lshl_b32 s49, s49, 6
            s_add_u32 s48, s48, s49
            s_lshl_b32 s48, s48, 10
            s_add_u32 s34, s34, s48
            s_add_u32 s96, s60, s34
            s_addc_u32 s97, s61, 0
            s_lshl_b32 s98, s35, 10
            s_mov_b32 s99, 0x20000
            s_mov_b32 s65, 0
            s_mov_b32 s34, 0
            ''')
            for j in range(2):
                k(f'''v_add_u32 v{T2}, {4 * j}, v{T0}
                v_lshlrev_b32 v{T2}, 1, v{T2}
                v_xor_b32 v{T2}, v{T2}, v{T1}
                v_lshlrev_b32 v{T2}, 4, v{T2}
                v_lshl_add_u32 v{RPV + j}, v{T0}, 11, v{T2}''')
        elif OPT['warm']:
            k(f'''
            v_lshlrev_b32 v{VPFO}, 6, v0
            v_mov_b32 v{T5}, 0x7fffffff
            v_cmp_lt_u32 vcc, 31, v0
            s_and_b32 s49, s3, 1
            s_lshl_b32 s48, s2, 1
            v_cndmask_b32 v{VPFO}, v{VPFO}, v{T5}, vcc
            s_add_u32 s48, s48, s49          ; 2*wg + (w&1)
            s_cmp_lt_u32 s3, 2
            s_mov_b32 s70, 14336
            s_cselect_b32 s70, 16384, s70
            s_cselect_b32 s68, s96, s98
            s_cselect_b32 s69, s97, s99
            s_mul_i32 s48, s48, s70
            s_add_u32 s68, s68, s48
            s_addc_u32 s69, s69, 0
            s_mov_b32 s71, 0x20000
            s_mov_b32 s65, 0
            ''')

    def zero_h(lo=0):
        for p in range(7):
            for tt in range(2):
                for i in range(8):
                    if HG(p, tt) >= lo:
                        k(f'v_mov_b32 v{HG(p, tt) + i}, 0')
    if MLN:
        k(f'''s_and_b32 s48, s2, 3
        s_lshl_b32 s48, s48, 1
        s_bfe_u32 s49, s2, 0x10004
        s_add_u32 s48, s48, s49
        s_lshl_b32 s49, s48, 2
        v_mov_b32 v{VCF}, s49
        s_lshl_b32 s49, s33, 2
        v_and_b32 v{T0}, 1, v0
        v_mov_b32 v{T1}, s49
        v_cmp_eq_u32 vcc, 0, v{T0}
        s_lshl_b32 s48, s48, 12
        s_mov_b32 s49, {CH_O}
        s_bitcmp1_b32 s2, 2
        s_cselect_b32 s49, s49, {CO_O}
        v_cndmask_b32 v{VCF}, v{VCF}, v{T1}, vcc
        s_add_u32 s48, s48, s49
        v_mov_b32 v{VPO}, s48
        v_mov_b32 v{VONE}, 1
        v_mov_b32 v{VZR}, 0
        s_mov_b32 s59, 0
        s_mov_b32 s95, 99
        s_mov_b32 s94, 0
        ''')
    if OPT['mk3']:
        k(f'''v_lshrrev_b32 v{T0}, 4, v0
        v_and_b32 v{T1}, 15, v0
        s_lshl_b32 s48, s3, 5
        v_add_u32 v{T3}, s48, v{T0}             ; row = 32w + (l>>4)''')
        for j in range(2):
            k(f"""v_add_u32 v{T2}, {4 * j}, v{T0}
            v_lshlrev_b32 v{T2}, 1, v{T2}
            v_xor_b32 v{T2}, v{T2}, v{T1}
            v_lshlrev_b32 v{T2}, 4, v{T2}
            v_lshl_add_u32 v{VD3 + j}, v{T3}, 11, v{T2}""")
        for j in range(7, 0, -1):
            k(f'v_add_u32 v{VD3 + j}, {j * 8192 - (j & 3) * 1024}, v{VD3 + (j & 1)}')
    if not MLN:
        rp_setup()
    for i in range(4):
        k(f'v_mov_b32 v{ONES + i}, 0x3f803f80')
    for i in range(128):
        k(f'v_accvgpr_write_b32 a{i}, 0')
    zero_h(144 if MLN else 0)
    GL = p1_sched('loop')
    print('p1 overflow', GL.over)
    if MLN:
        if OPT['g0e'] == 1:
            lin.run(flat(p1_dmas('G0', '+0')))
            flush(k, lin)
        stamp2(k, 2)
        lin.add(('vmwait', ['LX']))
        flush(k, lin)
        stamp(k, 6)
        stamp2(k, 3)

        def kl(t):
            lin.add(t)
            flush(k, lin)
        ln_compute(kl, VEX, [flat([x]) for x in p1_dmas('G0', '+0')] if OPT['g0e'] == 2 else [])
        stamp2(k, 4)
        k(f'''s_cmp_lg_u32 s3, 0
        s_cbranch_scc1 L_nock
        buffer_load_dword v{VCK}, v{VCF}, s[24:27], 0 offen sc0 sc1
        L_nock:''')
        lin.run(ln_stores(VST, 67))
        flush(k, lin)
        if OPT['pf2']:
            pf_rows(OPT['pfr'], OPT['pf2'])
        if OPT['g0e'] == 3:
            lin.run(flat(p1_dmas('G0', '+0')))
            flush(k, lin)
        for i in list(range(80, 144)) + list(range(64, 80)):
            k(f'v_mov_b32 v{i}, 0')
        stamp2(k, 5)
        lin.add(('vmwait', ['LS']))
        flush(k, lin)
        stamp2(k, 6)
        lin.add('s_barrier')
        flush(k, lin)
        stamp(k, 7)
        stamp2(k, 7)
        k(f'''s_cmp_lg_u32 s3, 0
        s_cbranch_scc1 L_noatom
        s_mov_b32 s35, 256
        v_mov_b32 v{VAT}, 1
        L_ckl:
        v_cmp_ne_u32 vcc, 0, v{VCK}
        s_nop 1
        s_cmp_eq_u64 vcc, exec
        s_cbranch_scc1 L_ckok
        buffer_load_dword v{VCK}, v{VCF}, s[24:27], 0 offen sc0 sc1
        s_sub_u32 s35, s35, 1
        s_waitcnt vmcnt(0)
        s_cmp_lg_u32 s35, 0
        s_cbranch_scc1 L_ckl
        s_branch L_noatom
        L_ckok:''')
        if OPT['lnto']:
            k(f's_and_b32 s48, s2, 31\ns_cmp_eq_u32 s48, 5\ns_cselect_b32 s48, 0, 1\nv_mov_b32 v{VAT}, s48')
        k(f'''s_mov_b64 exec, 1
        buffer_atomic_add v{VAT}, v{VZ2}, s[28:31], 0 offen offset:{CX_O} sc0 sc1
        s_mov_b64 exec, -1
        s_mov_b32 s59, 1
        s_mov_b32 s95, 7
        L_noatom:''')
        stamp2(k, 8)
        n0 = len(lin.vm)
        if OPT['g0e'] == 0:
            lin.run(flat(p1_dmas('G0', '+0')))
        if OPT['g1e']:
            lin.run(flat(p1_dmas('G1', '+1')))
        flush(k, lin)
        if OPT['pf3']:
            pf_rows(OPT['pfr'] + 32 * OPT['pf2'], OPT['pf3'])
        k(f'''s_cmp_lg_u32 s3, 0
        s_cbranch_scc1 L_pollend
        s_cmp_eq_u32 s35, 0
        s_cbranch_scc1 L_pollto
        s_waitcnt vmcnt({len(lin.vm) - n0})''')
        stamp2(k, 9)
        if OPT['pf4']:
            r0 = OPT['pfr'] + 32 * (OPT['pf2'] + OPT['pf3'])
            k(f'''v_readfirstlane_b32 s48, v{VAT}
            v_lshrrev_b32 v{T2}, 3, v0
            s_cmp_ge_u32 s48, {OPT['thr']}
            s_cbranch_scc1 L_nopf4
            s_and_b32 s48, s2, 7
            s_mul_i32 s48, s48, 896
            s_add_u32 s72, s58, s48
            s_addc_u32 s73, s59, 0
            s_sub_u32 s74, 0x700000, s48
            v_mul_u32_u24 v{T4}, 7168, v{T2}
            v_and_b32 v{T5}, 7, v0
            v_lshl_add_u32 v{T4}, v{T5}, 7, v{T4}
            v_mov_b32 v{T2}, 0x7fffffff
            v_cmp_le_u32 vcc, 7, v{T5}
            s_lshr_b32 s48, s2, 3
            s_mul_i32 s48, s48, {OPT['pf4']}
            v_cndmask_b32 v{T4}, v{T4}, v{T2}, vcc
            s_add_u32 s48, s48, {r0}
            s_mul_i32 s49, s48, 7168
            s_lshl_b32 s48, s48, 13''')
            for r in range(0, OPT['pf4'], 8):
                if OPT['pf4'] - r < 8:
                    m = (1 << (8 * (OPT['pf4'] - r))) - 1
                    k(f's_mov_b32 exec_lo, {m & 0xffffffff:#x}\ns_mov_b32 exec_hi, {m >> 32:#x}')
                k(f'''buffer_load_dword v{VT + 40}, v{VPF}, s[68:71], s48 offen ;#PF
                buffer_load_dword v{VT + 40}, v{T4}, s[72:75], s49 offen ;#PF
                s_add_u32 s48, s48, 65536
                s_add_u32 s49, s49, 57344''')
            k('s_mov_b64 exec, -1\nL_nopf4:')
        k(f'''v_add_u32 v{VAT}, 1, v{VAT}
        L_poll:
        s_nop 0
        v_readfirstlane_b32 s48, v{VAT}
        s_nop 1
        s_cmp_ge_u32 s48, 32
        s_cbranch_scc1 L_polled
        buffer_load_dword v{VAT}, v{VZ2}, s[28:31], 0 offen offset:{CX_O} sc0 sc1
        s_sub_u32 s35, s35, 1
        s_waitcnt vmcnt(0)
        s_cmp_lg_u32 s35, 0
        s_cbranch_scc1 L_poll
        L_pollto:
        v_mov_b32 v{VAT}, 0
        L_polled:
        s_mov_b64 exec, 1
        ds_write_b32 v{VEX}, v{VAT} offset:512
        s_mov_b64 exec, -1
        s_waitcnt lgkmcnt(0)''')
        k('L_pollend:')
        if OPT['st2'] == 1:
            k('s_mov_b32 s91, s35')
        stamp2(k, 10)
        lin.add(('vmwait', ['G0']))
        flush(k, lin)
        stamp2(k, 11)
        lin.add('s_barrier')
        flush(k, lin)
        stamp2(k, 12)
        k(f'''ds_read_b32 v{VAT}, v{VZ2} offset:{0}
        '''.replace(f'v{VZ2} offset:0', f'v{VEX} offset:512'))
        srd_off(k, 24, 's60', 's61', H_OFF, 0xE00000)
        srd_off(k, 28, 's60', 's61', O_OFF, 0x1000000)
        k(f'''s_waitcnt lgkmcnt(0)
        v_readfirstlane_b32 s48, v{VAT}
        s_nop 1
        s_cmp_lt_u32 s48, 32
        s_cbranch_scc1 L_lnfb
        L_xn_go:''')
        lin.run(flat(xn_loads(0)))
        if not OPT['g1e']:
            lin.run(flat(p1_dmas('G1', '+1')))
        flush(k, lin)
        rp_setup()
        lin.run(GL.only(0, lambda kk, kind, g: kk < 0 and kind in ('rd', 'need')))
        lin.add(('vmwait', ['X']))
    else:
        lin.add(('vmwait', ['G0', 'X']))
        lin.add('s_barrier')
        lin.run(GL.only(0, lambda kk, kind, g: kk < 0 and kind in ('rd', 'need')))
    flush(k, lin)
    k(f's_mov_b32 s49, {GSLOT}')
    k('s_mov_b32 s42, 7')
    stamp(k, 1)
    stamp2(k, 13)
    stamp2(k, 1, 2)
    st = steady(drop(GL.emit(p1_mfmas(0), 0)) + drop(GL.emit(p1_mfmas(1), 1)))
    k('L_p1:')
    k('\n'.join(st.out))
    k('s_sub_u32 s42, s42, 1\ns_cmp_lg_u32 s42, 0\ns_cbranch_scc1 L_p1')
    lin = Lin(st.lg, st.vm)
    lin.run(p1_sched('t14').emit(p1_mfmas(0), 14))
    lin.run(p1_sched('t15').emit(p1_mfmas(1), 15, keep=lambda kk, kind, g: kk >= 0 and kind != 'bar'))
    flush(k, lin)
    stamp(k, 2)
    stamp2(k, 14)
    stamp2(k, 2, 2)
    k(f's_mov_b32 s66, {f32(C)}\ns_mov_b32 s67, {f32(C)}')
    if OPT['mk3']:
        srd_off(k, 4, 's60', 's61', F_OFF, 8 * SYB)
    else:
        k('s_nop 3')
    for n in range(8):
        lin.add(k_read(0, n))
    n = 0
    for tt in range(4):
        for s in range(4):
            tb = VT + (n & 1) * 8
            n += 1
            for e in range(2):
                for i in range(4):
                    lin.add(f'v_accvgpr_read_b32 v{tb + 4 * e + i}, a{OACC(2 * s + e, tt) + i}')
            for i in range(0, 8, 2):
                lin.add(f'v_pk_mul_f32 {vr(tb + i, 2)}, {vr(tb + i, 2)}, s[66:67]')
            for i in range(4):
                lin.add(f'v_cvt_pk_bf16_f32 v{tb + i}, v{tb + 2 * i}, v{tb + 2 * i + 1}')
            lin.add('s_nop 0')
            lin.add(f'v_permlane32_swap_b32 v{tb}, v{tb + 2}')
            lin.add(f'v_permlane32_swap_b32 v{tb + 1}, v{tb + 3}')
            lin.add('s_nop 0')
            lin.add(f'v_permlane16_swap_b32 v{tb}, v{tb + 2}')
            lin.add(f'v_permlane16_swap_b32 v{tb + 1}, v{tb + 3}')
            for i in range(4):
                lin.add(f'v_accvgpr_write_b32 a{QF(tt, s) + i}, v{tb + i}')
    flush(k, lin)
    if OPT['dumpq']:
        k('s_lshl_b32 s48, s2, 16\ns_lshl_b32 s49, s3, 14\ns_add_u32 s48, s48, s49\ns_add_u32 s48, s48, 0x6000000')
        srd_off(k, 72, 's60', 's61', 's48', 16384)
        for n in range(16):
            k(f's_mov_b32 s48, {n * 1024}')
            lin.add(f'buffer_store_dwordx4 {ar(128 + 4 * n, 4)}, v{VLN}, s[72:75], s48 offen')
            flush(k, lin)
    k("""s_mul_i32 s48, s50, 229376
    s_lshr_b32 s49, s32, 1
    s_mul_i32 s49, s49, 14336
    s_add_u32 s48, s48, s49""")
    hep = []
    for p in range(7):
        for tt in range(2):
            b = HG(p, tt)
            for i in range(4):
                hep.append(f'v_cvt_pk_bf16_f32 v{b + i}, v{b + 2 * i}, v{b + 2 * i + 1}')
            for i in range(4):
                hep.append(f'v_pk_max_i16 v{b + i}, v{b + i}, 0')
            ks = p * 2 + tt
            if ks % 4 == 0 and ks:
                hep.append('s_add_u32 s48, s48, 4096')
            hep.append(f'buffer_store_dwordx4 {vr(b, 4)}, v{VLN}, s[24:27], s48 offen offset:{(ks & 3) * 1024}{WT()} ;#H')

    def qk0(extra):
        mf = qk_mfmas(0, c0='0')
        fill = {}
        add = lambda g, it: fill.setdefault(g, []).extend(it)
        per = (len(extra) + 63) // 64
        for n, it in enumerate(extra):
            add(n // per, [it])
        for n in range(8, 16):
            add(16 * ((n - 8) >> 2) + 13 + (n & 3), [k_read(0, n)])
        return weave(mf, fill)
    zero_o = [f'v_accvgpr_write_b32 a{i}, 0' for i in list(range(128)) + list(range(LACC(0), LACC(0) + 16))]
    mix = []
    for i in range(max(len(hep), len(zero_o))):
        if i < len(hep):
            mix.append(hep[i])
        if i < len(zero_o):
            mix.append(zero_o[i])
    lin.run(qk0(mix))
    flush(k, lin)
    GA, NG = att_sched()
    print('att overflow', GA.over, 'NG', NG)
    k('L_att_go:')
    lin.add(('vmwait', ['K1', 'V0']))
    lin.add('s_barrier')
    lin.run(GA.only(0, lambda kk, kind, g: kk < 0 and kind == 'rd'))
    flush(k, lin)
    k('s_nop 4')
    for qt in range(4):
        m = VT + qt
        regs = [S_(0, kvt, qt) + i for kvt in range(4) for i in range(4)]
        k(f'v_max3_f32 v{m}, v{regs[0]}, v{regs[1]}, v{regs[2]}')
        for i in range(3, 15, 2):
            k(f'v_max3_f32 v{m}, v{m}, v{regs[i]}, v{regs[i + 1]}')
        k(f'v_max_f32 v{m}, v{m}, v{regs[15]}')
    xgroup(k, 'v_max_f32', [VT + q for q in range(4)], VT + 4)
    k('s_cmp_eq_u32 s64, 0\ns_cbranch_scc1 L_use_m0')
    for qt in range(4):
        k(f'v_mov_b32 v{VT + qt}, v{VMT + qt}')
    k('L_use_m0:')
    for qt in range(4):
        for i in range(4):
            k(f'v_sub_f32 v{NEGM(qt) + i}, 0, v{VT + qt}')
        k(f'v_mov_b32 v{VL + qt}, 0')
    for kvt in range(4):
        for qt in range(4):
            for i in range(0, 4, 2):
                r = S_(0, kvt, qt) + i
                k(f'v_pk_add_f32 {vr(r, 2)}, {vr(r, 2)}, {vr(NEGM(qt), 2)}')
    pre = GA.only(-1, lambda kk, kind, g: kk == 0 and kind in ('exp', 'cvt'))
    for a, b in zip(pre, pre[1:] + ['']):
        k(a)
        if a.startswith('v_exp') and not b.startswith('v_exp') and a.split()[1].strip(',') in b:
            k('s_nop 0')
    lin.run(GA.only(0, lambda kk, kind, g: kk < 0 and kind == 'need'))
    flush(k, lin)
    k('s_mov_b32 s42, 8')
    stamp(k, 3)
    stamp2(k, 3, 2)
    it = lambda i: drop(GA.emit(qk_mfmas((i + 1) & 1) + pv_mfmas(i & 1), i))
    body = []
    for i in range(4):
        if i == 3:
            body += ['s_sub_u32 s42, s42, 1', 's_cmp_eq_u32 s42, 0', 's_cbranch_scc1 L_att_tail']
            if OPT['mk3']:
                body += ['s_cmp_eq_u32 s42, s95', 's_cbranch_scc1 L_chpost', 'L_chback:']
        body += it(i)
    st = steady(body)
    k('L_att:')
    k('\n'.join(st.out))
    k('s_branch L_att')
    k('L_att_tail:')
    l3 = Lin(st.lg, st.vm)
    for i in range(3):
        l3.run(it(i))
    lin = Lin(l3.lg, l3.vm)
    tail = GA.emit([None] * 64 + pv_mfmas(1), 3,
                   keep=lambda kk, kind, g: (kk == 1 and kind in ('exp', 'cvt')) or
                   (kk == 0 and kind in ('rd', 'need') and g >= 40))
    tail = [x for x in tail if isinstance(x, tuple) or not x.startswith('ds_read_b128')]
    t2 = []
    for a, b in zip(tail, tail[1:] + ['']):
        t2.append(a)
        if isinstance(a, str) and isinstance(b, str) and a.startswith('v_exp') and b.startswith('v_') and not b.startswith('v_exp'):
            t2.append('s_nop 0')
        if isinstance(a, str) and a.startswith('v_cvt') and (isinstance(b, tuple) or b.startswith('v_mfma')):
            t2.append('s_nop 1')
    if OPT['rp']:
        t2.insert(len(t2) // 2, rp_item(3)[1])
    if OPT['mk3']:
        ex = [[x] for x in ['s_mov_b32 s34, s2'] + k3_scalars()] + [flat([x]) for x in k3_loads(0, 'w')]
        mi = [n for n, x in enumerate(t2) if isinstance(x, str) and x.startswith('v_mfma')]
        nsc = len(ex) - 8
        pos = [mi[(n * 30) // nsc] for n in range(nsc)] + [mi[31 + 5 * j] for j in range(8)]
        for p, e in sorted(zip(pos, range(len(ex))), reverse=True):
            t2[p + 1:p + 1] = ex[e]
    lin.run(t2)
    flush(k, lin)
    stamp(k, 4)
    stamp2(k, 4, 2)
    k('s_nop 7')
    if OPT['msum']:
        for qt in range(4):
            k(f'v_accvgpr_read_b32 v{VL + qt}, a{LACC(qt)}')
    else:
        xgroup(k, 'v_add_f32', [VL + q for q in range(4)], VT + 4)
    k(f"""
    v_add_f32 v{VT}, v{VL}, v{VL + 1}
    v_add_f32 v{VT + 1}, v{VL + 2}, v{VL + 3}
    v_add_f32 v{VT + 1}, v{VT}, v{VT + 1}
    s_mov_b32 s48, 0x4e800000
    v_cmp_nle_f32 vcc, v{VT + 1}, s48
    s_nop 1
    s_cmp_lg_u64 vcc, 0
    s_cselect_b32 s48, 1, 0
    s_andn2_b32 s48, s48, s64
    v_mov_b32 v{VT + 2}, s48
    s_lshl_b32 s49, s3, 2
    v_mov_b32 v{VT + 3}, s49
    ds_write_b32 v{VT + 3}, v{VT + 2}
    v_rcp_f32 v{VL}, v{VL}
    v_rcp_f32 v{VL + 1}, v{VL + 1}
    v_rcp_f32 v{VL + 2}, v{VL + 2}
    v_rcp_f32 v{VL + 3}, v{VL + 3}
    s_waitcnt {'vmcnt(8) ' if OPT['mk3'] else ''}lgkmcnt(0)
    s_barrier
    v_mov_b32 v{VT + 3}, 0
    ds_read_b128 {vr(VT + 4, 4)}, v{VT + 3}
    s_waitcnt lgkmcnt(0)
    v_or_b32 v{VT + 4}, v{VT + 4}, v{VT + 5}
    v_or_b32 v{VT + 6}, v{VT + 6}, v{VT + 7}
    v_or_b32 v{VT + 4}, v{VT + 4}, v{VT + 6}
    s_nop 0
    v_readfirstlane_b32 s48, v{VT + 4}
    s_nop 1
    s_cmp_lg_u32 s48, 0
    s_cbranch_scc1 L_fallback
    s_lshl_b32 s50, s50, 18
    s_lshl_b32 s51, s51, 18
    s_lshl_b32 s48, s32, 13
    s_add_u32 s50, s50, s48
    s_add_u32 s51, s51, s48
    s_add_u32 s66, s50, 4096
    s_add_u32 s67, s51, 4096
    """)
    if OPT['mk3']:
        k(f'''s_cmp_lg_u32 s3, 0
        s_cbranch_scc1 L_nopo
        buffer_load_dword v{VT}, v{VPO}, s[4:7], 0 offen sc0 sc1
        L_nopo:''')
    n = 0
    for qt in range(4):
        k(f'v_mov_b32 v{VT + 32}, v{VL + qt}\nv_mov_b32 v{VT + 33}, v{VL + qt}')
        for s in range(4):
            tb = (n & 3) * 8
            n += 1
            for e in range(2):
                for i in range(4):
                    k(f'v_accvgpr_read_b32 v{tb + 4 * e + i}, a{OACC(2 * s + e, qt) + i}')
            for i in range(0, 8, 2):
                k(f'v_pk_mul_f32 {vr(tb + i, 2)}, {vr(tb + i, 2)}, {vr(VT + 32, 2)}')
            for i in range(4):
                k(f'v_cvt_pk_bf16_f32 v{tb + i}, v{tb + 2 * i}, v{tb + 2 * i + 1}')
            k(f'buffer_store_dwordx4 {vr(tb, 4)}, v{VLN}, s[28:31], s{50 + (qt >> 1) + 16 * (s >> 1)} offen '
              f'offset:{(s & 1) * 2048 + (qt & 1) * 1024}{WT()}')
    if OPT['stamp']:
        stamp(k, 5)
        stamp_out(k, 'L_k2_end', 's62', 's63')
    if OPT['mk3']:
        k3_merged(k)
    else:
        stamp2_out(k, 0)
        span_end(k, 40, 1)
    k('L_k2_end:\ns_endpgm')
    if OPT['mk3']:
        k(f'''L_chpost:
        s_lshl_b32 s48, s33, 12
        s_mov_b32 s95, 99
        s_mov_b64 exec, 1
        buffer_atomic_add v{VONE}, v{VZR}, s[4:7], s48 offen offset:{CH_O} sc1
        s_mov_b64 exec, -1
        s_branch L_chback''')
    k(f"""L_fallback:
    s_mov_b32 s64, 1
    s_mov_b32 s43, 0
    s_mov_b32 s42, 32
    s_waitcnt vmcnt(0)""")
    for qt in range(4):
        k(f'v_mov_b32 v{VMT + qt}, 0xff800000')
    k('L_fb_loop:\ns_barrier')
    lin = Lin()
    lin.run(flat(kdma(0, 'K0')))
    lin.run(['s_waitcnt vmcnt(0)', 's_barrier'])
    for n in range(8):
        lin.add(k_read(0, n))
    lin.run(qk0([]))
    lin.add('s_nop 15')
    for qt in range(4):
        for kvt in range(4):
            for i in range(0, 4, 2):
                r = S_(0, kvt, qt) + i
                lin.add(f'v_max3_f32 v{VMT + qt}, v{VMT + qt}, v{r}, v{r + 1}')
    flush(k, lin)
    k('s_sub_u32 s42, s42, 1\ns_cmp_lg_u32 s42, 0\ns_cbranch_scc1 L_fb_loop')
    xgroup(k, 'v_max_f32', [VMT + q for q in range(4)], VT)
    k('s_mov_b32 s43, 0\ns_mov_b32 s44, 0\ns_barrier')
    lin.run(flat(kdma(0, 'K0') + vdma(0, 'V0') + vdma(1, 'V1') + kdma(1, 'K1') + kdma(2, 'K2') + kdma(3, 'K3')))
    lin.run(['s_waitcnt vmcnt(0)', 's_barrier'])
    for n in range(8):
        lin.add(k_read(0, n))
    lin.run(qk0(zero_o))
    lin.add('s_branch L_att_go')
    flush(k, lin)
    if MLN:
        k(f'''L_lnfb:
        s_lshl_b32 s42, s33, 5
        s_mov_b32 s35, 32
        s_waitcnt vmcnt(0)''')
        srd(k, 72, 's52', 's53', 0x400000)
        k('L_lnfb_loop:')
        ln_scalars(k, 42, 66, 67, 48)
        k('\n'.join(ln_loads(VLD, 72, 66)))
        k('s_waitcnt vmcnt(0)')
        ln_compute(k, VEX)
        k('\n'.join(ln_stores(VST, 67)))
        k('''s_add_u32 s42, s42, 1
        s_sub_u32 s35, s35, 1
        s_barrier
        s_cmp_lg_u32 s35, 0
        s_cbranch_scc1 L_lnfb_loop
        s_waitcnt vmcnt(0)''')
        for i in range(64, 144):
            k(f'v_mov_b32 v{i}, 0')
        k('s_barrier\ns_branch L_xn_go')
    rings = {'G': (3, lambda n: (n * GSLOT, (n + 1) * GSLOT)),
             'A': (8, lambda n: (ABASE + n * 16384, ABASE + (n + 1) * 16384)),
             'W': (4, lambda n: (W3(n), W3(n) + 32768))}
    pol = [{'L_p1': [1] * 6 + [0], 'L_att_tail': [0, 0, 1], 'L_use_m0': [1]},
           {'L_p1': [1] * 6 + [0], 'L_att_tail': [0, 1, 0, 1], 'L_use_m0': [1, 0], 'L_fallback': [1, 0]}]
    if MLN:
        base = pol[0]
        pol = [dict(base, L_ckok=[1], L_polled=[0, 1]),
               dict(base, L_nolead1=[1], L_nolead2=[1], L_ckok=[0, 1], L_polled=[1]),
               dict(base, L_nolead1=[1], L_nolead2=[1], L_pollto=[1], L_lnfb=[1]),
               dict(base, L_nolead1=[1], L_nolead2=[1], L_nock=[1], L_noatom=[1], L_pollend=[1], L_lnfb=[1]),
               dict(pol[1], L_nolead1=[1], L_nolead2=[1], L_nock=[1], L_noatom=[1], L_pollend=[1])]
    if OPT['mk3']:
        w0 = dict(L_ckok=[1], L_polled=[1], L_nolead1=[1], L_nolead2=[1], L_chpost=[1])
        wn = dict(L_nolead1=[1], L_nolead2=[1], L_nock=[1], L_noatom=[1], L_pollend=[1], L_nopo=[1], L3_nosig=[1], L3_pollend=[1],
                  L3_pub_wait=[1, 1], L3_poll_done=[1, 1], L3_fin1=[1], L3_fin2=[1])
        pol += [dict(base, **w0, L3_oproj=[1], L3_polled=[0, 1], L3_exit=[1]),
                dict(base, **w0, L3_oproj=[1], L3_publish=[1], L3_end=[1], L3_exit=[1]),
                dict(base, **w0, L3_giveup=[1], L3_end=[1], L3_take=[0, 1], L3_orph=[1], L3_exit=[0, 0, 0, 0, 1]),
                dict(base, **wn, L3_giveup=[1], L3_oproj=[1], L3_take=[1], L3_orph=[1], L3_exit=[0, 0, 0, 1]),
                dict(base, **wn, L3_exit=[1])]
        for p in pol:
            p.setdefault('L3_exit', [1])
            p.setdefault('L3_polled', [1])
    bufs = {0: 4 << 20, 8: 16 << 20, 16: 16 << 20, 24: 8 << 20, 32: 8 << 20, 40: 4 << 20, 48: 7 << 20, 56: 7 << 20, 64: 4 << 20, 72: 256, 80: 256 << 20}
    sp = []
    for p in pol:
        tr = k.trace(p)
        for wg in (0, 7, 37, 100, 224, 251, 255):
            for w in (0, 1, 3):
                sp += check_srds(tr, wg, w, bufs, k.name)
    for x in sorted(set(sp))[:20]:
        print('PROBLEM', x)
    return k, [p for p in k.check(pol, rings=rings) if not ('WAR granule 36 ' in p and '#L0 @W W 0' in p)]


def k3_scalars():
    return f'''s_bfe_u32 s35, s34, 0x10002
    s_and_b32 s39, s34, 3
    s_lshl_b32 s39, s39, 2
    s_bfe_u32 s48, s34, 0x20003
    s_add_u32 s39, s39, s48
    s_lshr_b32 s40, s34, 5
    s_lshl_b32 s41, s39, 2
    s_add_u32 s41, s41, s3
    s_lshl_b32 s46, s3, 13
    s_add_u32 s47, s46, 4096
    s_lshl_b32 s56, s39, 3
    s_add_u32 s56, s56, s40
    s_cmp_eq_u32 s35, 0
    s_cselect_b32 s8, s96, s98
    s_cselect_b32 s9, s97, s99
    s_mov_b32 s10, 0x800000
    s_mov_b32 s14, 0x40000
    s_mov_b32 s57, {O_OFF}
    s_cselect_b32 s10, s10, 0x700000
    s_cselect_b32 s14, s14, 0x38000
    s_cselect_b32 s57, s57, {H_OFF}
    s_cselect_b32 s58, 8, 7
    s_lshl_b32 s48, s40, 8
    s_add_u32 s8, s8, s48
    s_addc_u32 s9, s9, 0
    s_sub_u32 s10, s10, s48
    s_mov_b32 s11, 0x20000
    s_mul_i32 s48, s41, s14
    s_add_u32 s48, s48, s57
    s_add_u32 s12, s60, s48
    s_addc_u32 s13, s61, 0
    s_mov_b32 s15, 0x20000
    s_mov_b32 s38, 0
    s_mov_b32 s36, 0
    s_mov_b32 s37, 4096'''.replace('    ', '').split('\n')


ACT3 = lambda T, j: (T & 3) * 32 + j * 4


def k3_loads(T, which='wa'):
    tag = f'L{T & 3}'
    gs = []
    for j in range(8):
        if 'w' in which:
            gs.append(([f's_add_u32 m0, s{46 + (j >> 2)}, {W3(T)}'] if j in (0, 4) else [],
                       f'buffer_load_dwordx4 v{VD3 + j}, s[8:11], s38 offen offset:{(j & 3) * 1024} lds ;#{tag} @W W {T & 3}',
                       ['s_add_u32 s38, s38, 0x40000'] if j == 7 else []))
        if 'a' in which:
            gs.append(([], f'buffer_load_dwordx4 {ar(ACT3(T, j), 4)}, v{VLN}, s[12:15], s{36 + (j >> 2)} offen offset:{(j & 3) * 1024} sc1 ;#{tag}',
                       [f's_add_u32 s{36 + (j >> 2)}, s{36 + (j >> 2)}, 8192'] if (j & 3) == 3 else []))
    return gs


def k3_merged(k):
    AG = lambda p, tt: (p * 2 + tt) * 8
    ACC = lambda nt, tt: AG(nt >> 1, tt) + 4 * (nt & 1)
    R3 = 128
    VX, VZ, T0, T1, T2, T3 = range(180, 186)
    LF3 = 64

    def wread(T, n, hh):
        nt, ks = divmod(n, 4)
        sl = (W3(T) - 32768) >> 15
        a = (VB3 if sl >> 1 else VVA) + nt
        return (f'ds_read_b64_tr_b16 {ar(R3 + (n & 15) * 4 + 2 * hh, 2)}, v{a} '
                f'offset:{(sl & 1) * 32768 + ks * 8192 + hh * 4096} ;@R W {T & 3}')

    def bcast(src, off, dst):
        k(f'''ds_read_b32 v{src}, v{VZ} offset:{off}
        s_waitcnt lgkmcnt(0)
        v_readfirstlane_b32 s{dst}, v{src}
        s_nop 1''')
    stamp2(k, 5, 2)
    for nt in range(8):
        k(f'v_add_u32 v{VB3 + nt}, 0x10000, v{VVA + nt}')
    k(f'''v_bfe_u32 v{T1}, v{VLN}, 4, 4
    v_lshrrev_b32 v{T0}, 8, v{VLN}
    v_lshlrev_b32 v{VX}, 11, v{T1}
    v_lshl_add_u32 v{VX}, v{T0}, 4, v{VX}
    v_mov_b32 v{VZ}, 0
    v_mov_b32 v{VDG}, 1''')
    srd(k, 72, 's62', 's63', 256)
    for i in list(range(32, 64)) + list(range(32)):
        k(f'v_mov_b32 v{i}, 0')
    k('s_waitcnt vmcnt(0)')
    stamp2(k, 6, 2)
    k(f'''s_barrier
    s_cmp_lg_u32 s3, 0
    s_cbranch_scc1 L3_nosig
    s_lshl_b32 s48, s33, 12
    s_mov_b64 exec, 1
    s_cmp_eq_u32 s59, 0
    s_cbranch_scc1 L3_noco
    buffer_atomic_add v{VONE}, v{VZR}, s[4:7], s48 offen offset:{CO_O} sc1
    L3_noco:
    buffer_atomic_add v{VDG}, v{VZR}, s[72:75], 0 offen offset:{DG_O} sc0 sc1
    s_mov_b64 exec, -1
    L3_nosig:''')
    lin = Lin()
    lin.run(flat(k3_loads(1, 'w')))
    flush(k, lin)
    k(f'''s_cmp_lg_u32 s3, 0
    s_cbranch_scc1 L3_pollend
    s_mov_b32 s49, {1 if OPT['orto'] else 1024}
    s_cmp_eq_u32 s59, 0
    s_cbranch_scc1 L3_pollto
    L3_poll:
    v_readfirstlane_b32 s48, v{VT}
    s_nop 1
    s_cmp_ge_u32 s48, {9999 if OPT['orto'] == 2 else 32}
    s_cbranch_scc1 L3_polled
    buffer_load_dword v{VT}, v{VPO}, s[4:7], 0 offen sc0 sc1
    s_sub_u32 s49, s49, 1
    s_waitcnt vmcnt(0)
    s_cmp_lg_u32 s49, 0
    s_cbranch_scc1 L3_poll
    L3_pollto:
    v_mov_b32 v{VT}, 0
    L3_polled:
    {'s_mov_b32 s91, s49' if OPT['st2'] == 2 else ''}
    ds_write_b32 v{VZ}, v{VT} offset:{LF3}
    s_waitcnt lgkmcnt(0)
    L3_pollend:
    s_barrier''')
    bcast(T0, LF3, 48)
    k(f'''s_cmp_lt_u32 s48, 32
    s_cbranch_scc1 L3_giveup
    L3_go:''')
    stamp2(k, 7, 2)
    lin.run(flat(k3_loads(0, 'a') + k3_loads(1, 'a')))
    G = Gaps(64)
    GB = 46
    for nt in range(8):
        regs = [ar(R3 + ((nt * 4 + ks) & 15) * 4, 4) for ks in range(4)]
        G.put(8 * nt - 1, lambda i, regs=regs: [('need', regs)], 4, prio=9, kind='need')
    G.put(GB, lambda i: [('vmwait', [f'L{(i + 1) & 3}'], ''), 's_barrier'], 8, kind='bar')
    sched_vmem(G, [lambda i, j=j: k3_loads(i + 2)[j] for j in range(16)], [1 + 4 * j for j in range(16)])
    prev = -10 ** 6
    for n in range(32):
        fu, lu16 = 8 * (n >> 2), 8 * ((n - 16) >> 2) + 4 + (n & 3)
        lo = max(lu16 + 1, prev, GB + 1 - 64)
        for hh in range(2):
            prev = G.place(lo, fu - 5, fu - OPT['la'], lambda i, n=n, hh=hh: [wread(i, n, hh)], 4, kind='rd', pack=True)
            lo = prev
    print('k3 overflow', G.over)

    def mfs(T):
        return [f'{MF} {vr(ACC(nt, tt), 4)}, {ar(R3 + ((nt * 4 + ks) & 15) * 4, 4)}, {ar(ACT3(T, ks * 2 + tt), 4)}, {vr(ACC(nt, tt), 4)}'
                for nt in range(8) for tt in range(2) for ks in range(4)]
    lin.run(G.only(0, lambda kk, kind, g: kk < 0))
    lin.add(('vmwait', ['L0']))
    flush(k, lin)
    k('s_mov_b32 s67, 0\ns_mov_b32 s68, 4096\ns_mov_b32 s69, 32768')
    stamp2(k, 8, 2)
    body = []
    for T in range(4):
        body += G.emit(mfs(T), T)
    st = steady(body)
    k('L3_loop:')
    k('\n'.join(st.out))
    k('s_sub_u32 s58, s58, 1\ns_cmp_lg_u32 s58, 0\ns_cbranch_scc1 L3_loop')
    stamp2(k, 9, 2)
    k(f"""
    s_lshl_b32 s48, s56, 15
    s_lshl_b32 s49, s3, 13
    s_add_u32 s48, s48, s49                 ; tile*32768 + w*8192
    s_cmp_eq_u32 s35, 0
    s_mov_b32 s49, {S_OFF}
    s_mov_b32 s50, {G_OFF}
    s_cselect_b32 s49, s49, {G_OFF}
    s_cselect_b32 s50, s50, {S_OFF}
    s_add_u32 s49, s49, s48
    s_add_u32 s50, s50, s48
    """)
    srd_off(k, 12, 's60', 's61', 's49', 8192)
    srd_off(k, 16, 's60', 's61', 's50', 8192)
    k(f's_lshr_b32 s48, s56, 4\ns_lshl_b32 s48, s48, 12\ns_and_b32 s49, s56, 15\ns_lshl_b32 s49, s49, 7\n'
      f's_add_u32 s48, s48, s49\ns_add_u32 s48, s48, {F_OFF}')
    srd_off(k, 20, 's60', 's61', 's48', 128)
    k('s_lshl_b32 s48, s41, 16\ns_lshl_b32 s49, s40, 8\ns_add_u32 s48, s48, s49')
    srd_off(k, 24, 's52', 's53', 's48', 65536)
    srd_off(k, 28, 's54', 's55', 's48', 65536)
    k('s_sub_u32 s26, s26, s49\ns_sub_u32 s30, s30, s49')
    XR, PK, OT = 64, 96, 188
    xo = lambda q: f'{"s69" if q & 1 else "0"} offen offset:{(q >> 1) * 64}'
    k('s_waitcnt vmcnt(0) lgkmcnt(0)')
    for q in range(8):
        k(f'buffer_load_dwordx4 {vr(XR + 4 * q, 4)}, v{VX}, s[24:27], {xo(q)}')
    for i in range(32):
        k(f'v_cvt_pk_bf16_f32 v{PK + i}, v{2 * i}, v{2 * i + 1}')
    k('s_cmp_eq_u32 s35, 0\ns_cbranch_scc1 L3_oproj')
    k(f's_mov_b32 s48, {f32(-math.log2(math.e))}')
    for i in range(32):
        k(f'v_lshlrev_b32 v{2 * i}, 16, v{PK + i}\nv_and_b32 v{2 * i + 1}, 0xffff0000, v{PK + i}')
    for c in range(0, 64, 16):
        for i in range(16):
            k(f'v_mul_f32 v{OT + i}, s48, v{c + i}')
        for i in range(16):
            k(f'v_exp_f32 v{OT + i}, v{OT + i}')
        for i in range(16):
            k(f'v_add_f32 v{OT + i}, 1.0, v{OT + i}')
        for i in range(16):
            k(f'v_rcp_f32 v{OT + i}, v{OT + i}')
        for i in range(16):
            k(f'v_mul_f32 v{c + i}, v{c + i}, v{OT + i}')
        for i in range(8):
            k(f'v_cvt_pk_bf16_f32 v{PK + c // 2 + i}, v{c + 2 * i}, v{c + 2 * i + 1}')
    k('L3_publish:')
    for q in range(8):
        k(f'buffer_store_dwordx4 {vr(PK + 4 * q, 4)}, v{VLN}, s[12:15], s{67 + (q >> 2)} offen offset:{(q & 3) * 1024} sc0 sc1')
    k(f"""
    s_waitcnt vmcnt(0)
    s_barrier
    s_cmp_lg_u32 s3, 0
    s_cbranch_scc1 L3_pub_wait
    v_mov_b32 v{T0}, 1
    s_mov_b64 exec, 1
    buffer_atomic_add v{T0}, v{VZ}, s[20:23], 0 offen sc0 sc1
    s_waitcnt vmcnt(0)
    ds_write_b32 v{VZ}, v{T0} offset:{LF3 + 4}
    s_mov_b64 exec, -1
    s_waitcnt lgkmcnt(0)
    L3_pub_wait:
    s_barrier
    """)
    bcast(T0, LF3 + 4, 48)
    k(f"""s_cmp_eq_u32 s48, 0
    s_cbranch_scc1 L3_end
    s_branch L3_finish
    L3_oproj:
    s_mov_b32 s49, 1024
    s_cmp_lg_u32 s3, 0
    s_cbranch_scc1 L3_poll_done
    L3_poll2:
    buffer_load_dword v{T0}, v{VZ}, s[20:23], 0 offen sc0 sc1
    s_waitcnt vmcnt(0)
    v_readfirstlane_b32 s48, v{T0}
    s_nop 1
    s_cmp_lg_u32 s48, 0
    s_cbranch_scc1 L3_poll_end
    s_sleep 2
    s_sub_u32 s49, s49, 1
    s_cmp_lg_u32 s49, 0
    s_cbranch_scc1 L3_poll2
    L3_poll_end:
    ds_write_b32 v{VZ}, v{T0} offset:{LF3 + 8}
    s_waitcnt lgkmcnt(0)
    L3_poll_done:
    s_barrier
    """)
    bcast(T0, LF3 + 8, 48)
    k(f"""s_cmp_eq_u32 s48, 0
    s_cbranch_scc1 L3_publish
    L3_finish:
    """)
    for q in range(8):
        k(f'buffer_load_dwordx4 {vr(OT + 4 * q, 4)}, v{VLN}, s[16:19], s{67 + (q >> 2)} offen offset:{(q & 3) * 1024} sc0 sc1')
    for i in range(32):
        k(f'v_lshlrev_b32 v{2 * i}, 16, v{PK + i}\nv_and_b32 v{2 * i + 1}, 0xffff0000, v{PK + i}')
    for q in range(8):
        k('s_waitcnt vmcnt(7)')
        o = OT + 4 * q
        for i in range(4):
            j = 4 * q + i
            k(f"""v_lshlrev_b32 v{T0}, 16, v{OT + j}
            v_and_b32 v{T1}, 0xffff0000, v{OT + j}
            v_mul_f32 v{T0}, v{T0}, v{2 * j}
            v_mul_f32 v{T1}, v{T1}, v{2 * j + 1}
            v_cvt_pk_bf16_f32 v{OT + j}, v{T0}, v{T1}""")
        k(f"""s_nop 0
        v_permlane32_swap_b32 v{o}, v{o + 2}
        v_permlane32_swap_b32 v{o + 1}, v{o + 3}
        s_nop 0
        v_permlane16_swap_b32 v{o}, v{o + 2}
        v_permlane16_swap_b32 v{o + 1}, v{o + 3}""")
        for i in range(4):
            j = 4 * q + i
            k(f"""v_lshlrev_b32 v{T2}, 16, v{XR + j}
            v_and_b32 v{T3}, 0xffff0000, v{XR + j}
            v_lshlrev_b32 v{T0}, 16, v{OT + j}
            v_and_b32 v{T1}, 0xffff0000, v{OT + j}
            v_add_f32 v{T0}, v{T0}, v{T2}
            v_add_f32 v{T1}, v{T1}, v{T3}
            v_cvt_pk_bf16_f32 v{OT + j}, v{T0}, v{T1}""")
        k(f'buffer_store_dwordx4 {vr(o, 4)}, v{VX}, s[28:31], {xo(q)}')
    k(f"""L3_end:
    s_cmp_lg_u32 s94, 0
    s_cbranch_scc1 L3_orph
    s_cmp_lg_u32 s3, 0
    s_cbranch_scc1 L3_fin1
    ds_write_b32 v{VZ}, v{VDG} offset:{LF3 + 12}
    s_waitcnt lgkmcnt(0)
    L3_fin1:
    s_barrier""".replace(f'ds_write_b32 v{VZ}, v{VDG} offset:{LF3 + 12}',
                          f's_mov_b64 exec, 1\nds_write_b32 v{VZ}, v{VDG} offset:{LF3 + 12}\ns_mov_b64 exec, -1'))
    bcast(T0, LF3 + 12, 48)
    k(f"""s_cmp_lg_u32 s48, 255
    s_cbranch_scc1 L3_exit
    v_lshrrev_b32 v{T1}, 2, v{VLN}          ; lane*4
    s_cmp_lg_u32 s3, 0
    s_cbranch_scc1 L3_fin2
    v_mov_b32 v{VOR}, 0xaaaaaaaa
    s_mov_b64 exec, 0xffff
    buffer_atomic_or v{VOR}, v{T1}, s[72:75], 0 offen offset:{OR_O} sc0 sc1
    s_waitcnt vmcnt(0)
    ds_write_b32 v{T1}, v{VOR} offset:{LF3 + 64}
    s_mov_b64 exec, -1
    s_waitcnt lgkmcnt(0)
    L3_fin2:
    s_barrier
    ds_read_b32 v{VOR}, v{T1} offset:{LF3 + 64}
    s_waitcnt lgkmcnt(0)
    v_and_b32 v{T0}, 0x55555555, v{VOR}
    v_cmp_ne_u32 vcc, 0, v{T0}
    s_nop 1
    s_and_b32 s48, vcc_lo, 0xffff
    s_cbranch_scc0 L3_exit
    L3_orph:
    s_cmp_ge_u32 s94, 256
    s_cbranch_scc1 L3_exit
    s_xor_b32 s34, s94, 4
    s_add_u32 s94, s94, 1
    s_lshr_b32 s48, s34, 4
    s_and_b32 s49, s34, 15
    s_lshl_b32 s49, s49, 1
    s_nop 2
    v_readlane_b32 s48, v{VOR}, s48
    s_nop 1
    s_bitcmp1_b32 s48, s49
    s_cbranch_scc1 L3_take
    s_branch L3_orph
    L3_take:
    s_waitcnt vmcnt(0) lgkmcnt(0)
    s_barrier""")
    k('\n'.join(k3_scalars()))
    lin = Lin()
    lin.run(flat(k3_loads(0, 'w') + k3_loads(1, 'w')))
    flush(k, lin)
    for i in range(64):
        k(f'v_mov_b32 v{i}, 0')
    k(f"""s_waitcnt vmcnt(0)
    s_barrier
    s_branch L3_go
    L3_giveup:
    s_cmp_lg_u32 s3, 0
    s_cbranch_scc1 L3_gu1
    s_lshr_b32 s48, s34, 4
    s_lshl_b32 s48, s48, 2
    s_and_b32 s49, s34, 15
    s_lshl_b32 s49, s49, 1
    s_lshl_b32 s50, 1, s49
    v_mov_b32 v{T0}, s50
    s_mov_b64 exec, 1
    buffer_atomic_or v{T0}, v{VZ}, s[72:75], s48 offen offset:{OR_O} sc0 sc1
    s_waitcnt vmcnt(0)
    v_lshrrev_b32 v{T0}, s49, v{T0}
    v_and_b32 v{T0}, 2, v{T0}
    ds_write_b32 v{VZ}, v{T0} offset:{LF3 + 16}
    s_mov_b64 exec, -1
    s_waitcnt lgkmcnt(0)
    L3_gu1:
    s_waitcnt vmcnt(0)
    s_barrier""")
    bcast(T0, LF3 + 16, 48)
    k("""s_cmp_eq_u32 s48, 0
    s_cbranch_scc1 L3_end
    s_branch L3_go
    L3_exit:""")
    stamp2(k, 10, 2)
    stamp2_out(k, 0)
    span_end(k, 40, 1)


def gen_k3():
    k = Kernel('fin_kernel')
    span_begin(k)
    AG = lambda p, tt: (p * 2 + tt) * 8
    ACC = lambda nt, tt: AG(nt >> 1, tt) + 4 * (nt & 1)
    ACT = lambda T, j: (T & 3) * 32 + j * 4
    R3 = 128
    VA = 64
    VD = 80
    VLN3, VX, VZ = 88, 89, 90
    T0, T1, T2, T3, T4, T5 = 91, 92, 93, 94, 95, 96
    LOOK = OPT['look3']
    k("""
    s_cmp_ge_u32 s2, 256
    s_cbranch_scc1 L_k3_end
    s_load_dwordx2 s[52:53], s[0:1], 0      ; x
    s_load_dwordx2 s[54:55], s[0:1], 32     ; wo
    s_load_dwordx2 s[56:57], s[0:1], 56     ; w2
    s_load_dwordx2 s[58:59], s[0:1], 64     ; out
    s_load_dwordx2 s[60:61], s[0:1], 80     ; ws
    s_load_dwordx2 s[62:63], s[0:1], 72     ; dbg
    v_lshrrev_b32 v1, 6, v0
    v_and_b32 v0, 63, v0
    s_and_b32 s32, s2, 7
    v_readfirstlane_b32 s3, v1
    s_lshr_b32 s33, s2, 3
    s_lshr_b32 s34, s32, 2
    s_and_b32 s32, s32, 3
    s_lshl_b32 s32, s32, 2
    s_and_b32 s35, s33, 3
    s_add_u32 s32, s32, s35                 ; mb (0..15)
    s_lshr_b32 s33, s33, 2                  ; nb (0..7)
    s_lshl_b32 s35, s32, 2
    s_add_u32 s35, s35, s3
    s_lshl_b32 s45, s3, 13                  ; w*8192 (LDS)
    s_add_u32 s46, s45, 4096
    s_lshl_b32 s47, s32, 3
    s_add_u32 s47, s47, s33
    """)
    stamp(k, 0)
    k(f"""
    v_lshlrev_b32 v{VLN3}, 4, v0
    v_lshrrev_b32 v{T0}, 4, v0
    v_and_b32 v{T1}, 15, v0
    s_lshl_b32 s48, s3, 5
    v_add_u32 v{T3}, s48, v{T0}             ; row = 32w + (l>>4)
    """)
    if OPT['rp']:
        k(f'v_add_u32 v{VD}, s45, v{VLN3}\nv_add_u32 v{VD + 4}, s46, v{VLN3}')
    else:
        for j in range(2):
            k(f"""v_add_u32 v{T2}, {4 * j}, v{T0}
            v_lshlrev_b32 v{T2}, 1, v{T2}
            v_xor_b32 v{T2}, v{T2}, v{T1}
            v_lshlrev_b32 v{T2}, 4, v{T2}
            v_lshl_add_u32 v{VD + j}, v{T3}, 11, v{T2}""")
        for j in range(7, 0, -1):
            k(f'v_add_u32 v{VD + j}, {j * 8192 - (j & 3) * 1024}, v{VD + (j & 1)}')
    k(f"""
    s_waitcnt lgkmcnt(0)
    s_cmp_eq_u32 s34, 0
    s_cselect_b32 s54, s54, s56
    s_cselect_b32 s55, s55, s57
    s_mov_b32 s64, 0x800000
    s_mov_b32 s65, 0x40000
    s_mov_b32 s66, {O_OFF}
    s_cselect_b32 s64, s64, 0x700000
    s_cselect_b32 s65, s65, 0x38000
    s_cselect_b32 s66, s66, {H_OFF}
    s_cselect_b32 s42, 8, 7
    s_lshl_b32 s48, s33, 8
    """)
    if OPT['rp']:
        k(f'''s_lshr_b32 s64, s64, 3
        s_mul_i32 s48, s33, s64
        s_lshl_b32 s49, s34, 23
        s_add_u32 s48, s48, s49
        s_add_u32 s48, s48, {WP_OFF}''')
        srd_off(k, 8, 's60', 's61', 's48', 0)
        k('s_mov_b32 s10, s64')
    else:
        srd_off(k, 8, 's54', 's55', 's48', 0)
        k('s_sub_u32 s10, s64, s48')
    k('s_mul_i32 s48, s35, s65\ns_add_u32 s48, s48, s66')
    srd_off(k, 4, 's60', 's61', 's48', 0)
    k('s_mov_b32 s6, s65\ns_mov_b32 s38, 0\ns_mov_b32 s36, 0\ns_mov_b32 s37, 4096')

    def loads(T):
        tag = f'L{T & 3}'
        gs = []
        for j in range(8):
            gs.append(([f's_add_u32 m0, s{45 + (j >> 2)}, {(T & 3) * 32768}'] if j in (0, 4) else [],
                       f'buffer_load_dwordx4 v{VD + (j & 4 if OPT["rp"] else j)}, s[8:11], s38 offen offset:{(j & 3) * 1024} lds ;#{tag} @W W {T & 3}',
                       [f's_add_u32 s38, s38, {0x8000 if OPT["rp"] else 0x40000}'] if j == 7 else []))
            gs.append(([], f'buffer_load_dwordx4 {ar(ACT(T, j), 4)}, v{VLN3}, s[4:7], s{36 + (j >> 2)} offen offset:{(j & 3) * 1024} ;#{tag}',
                       [f's_add_u32 s{36 + (j >> 2)}, s{36 + (j >> 2)}, 8192'] if (j & 3) == 3 else []))
        return gs

    def wread(T, n, hh):
        nt, ks = divmod(n, 4)
        a = VA + ((T >> 1) & 1) * 8 + nt
        return (f'ds_read_b64_tr_b16 {ar(R3 + (n & 15) * 4 + 2 * hh, 2)}, v{a} '
                f'offset:{(T & 1) * 32768 + ks * 8192 + hh * 4096} ;@R W {T & 3}')
    lin = Lin()
    for T in range(LOOK):
        lin.run(flat(loads(T)))
    flush(k, lin)
    k(f"""
    v_lshlrev_b32 v{VX}, 11, v{T1}
    v_lshl_add_u32 v{VX}, v{T0}, 4, v{VX}
    v_mov_b32 v{VZ}, 0
    """)
    lane_grc(k, T0, T1, T2)
    k(f"""
    v_lshlrev_b32 v{T2}, 3, v{T2}
    v_lshl_add_u32 v{T3}, v{T0}, 2, v{T1}   ; row = 4g + r
    v_and_b32 v{T4}, 7, v{T3}
    v_lshl_add_u32 v{T3}, v{T3}, 8, v{T2}
    """)
    for nt in range(8):
        k(f"""v_xor_b32 v{T5}, {nt}, v{T4}
        v_lshl_add_u32 v{VA + nt}, v{T5}, 5, v{T3}
        v_add_u32 v{VA + 8 + nt}, 0x10000, v{VA + nt}""")
    for i in range(64):
        k(f'v_mov_b32 v{i}, 0')
    G = Gaps(64)
    GB = 46
    for nt in range(8):
        regs = [ar(R3 + ((nt * 4 + ks) & 15) * 4, 4) for ks in range(4)]
        G.put(8 * nt - 1, lambda i, regs=regs: [('need', regs)], 4, prio=9, kind='need')
    G.put(GB, lambda i: [('vmwait', [f'L{(i + 1) & 3}'], ' lgkmcnt(0)' if LOOK == 3 else ''), 's_barrier'], 8, kind='bar')
    sched_vmem(G, [lambda i, j=j: loads(i + LOOK)[j] for j in range(16)],
               [1 + 4 * j for j in range(16)] if LOOK == 2 else [1 + (j * 11) // 4 for j in range(16)])
    prev = -10 ** 6
    for n in range(32):
        fu, lu16 = 8 * (n >> 2), 8 * ((n - 16) >> 2) + 4 + (n & 3)
        lo = max(lu16 + 1, prev, GB + 1 - 64)
        hi = fu - 5 if LOOK == 2 else min(fu - 5, GB - 2)
        for hh in range(2):
            prev = G.place(lo, hi, fu - OPT['la'], lambda i, n=n, hh=hh: [wread(i, n, hh)], 4, kind='rd', pack=True)
            lo = prev
    print('k3 overflow', G.over)

    def mfs(T):
        return [f'{MF} {vr(ACC(nt, tt), 4)}, {ar(R3 + ((nt * 4 + ks) & 15) * 4, 4)}, {ar(ACT(T, ks * 2 + tt), 4)}, {vr(ACC(nt, tt), 4)}'
                for nt in range(8) for tt in range(2) for ks in range(4)]
    lin.add(('vmwait', ['L0']))
    lin.add('s_barrier')
    lin.run(G.only(0, lambda kk, kind, g: kk < 0))
    flush(k, lin)
    k('s_mov_b32 s67, 0\ns_mov_b32 s68, 4096\ns_mov_b32 s69, 32768')
    stamp(k, 1)
    body = []
    for T in range(4):
        body += G.emit(mfs(T), T)
    st = steady(body)
    k('L_k3:')
    k('\n'.join(st.out))
    k('s_sub_u32 s42, s42, 1\ns_cmp_lg_u32 s42, 0\ns_cbranch_scc1 L_k3')
    stamp(k, 2)
    k(f"""
    s_lshl_b32 s48, s47, 15
    s_lshl_b32 s49, s3, 13
    s_add_u32 s48, s48, s49                 ; tile*32768 + w*8192
    s_cmp_eq_u32 s34, 0
    s_mov_b32 s49, {S_OFF}
    s_mov_b32 s50, {G_OFF}
    s_cselect_b32 s49, s49, {G_OFF}
    s_cselect_b32 s50, s50, {S_OFF}
    s_add_u32 s49, s49, s48
    s_add_u32 s50, s50, s48
    """)
    srd_off(k, 12, 's60', 's61', 's49', 8192)
    srd_off(k, 16, 's60', 's61', 's50', 8192)
    k(f's_lshr_b32 s48, s47, 4\ns_lshl_b32 s48, s48, 12\ns_and_b32 s49, s47, 15\ns_lshl_b32 s49, s49, 7\n'
      f's_add_u32 s48, s48, s49\ns_add_u32 s48, s48, {F_OFF}')
    srd_off(k, 20, 's60', 's61', 's48', 128)
    k('s_lshl_b32 s48, s35, 16\ns_lshl_b32 s49, s33, 8\ns_add_u32 s48, s48, s49')
    srd_off(k, 24, 's52', 's53', 's48', 65536)
    srd_off(k, 28, 's58', 's59', 's48', 65536)
    k('s_sub_u32 s26, s26, s49\ns_sub_u32 s30, s30, s49')
    XR, PK, OT = 100, 132, 164
    xo = lambda q: f'{"s69" if q & 1 else "0"} offen offset:{(q >> 1) * 64}'
    k('s_waitcnt vmcnt(0) lgkmcnt(0)')
    for q in range(8):
        k(f'buffer_load_dwordx4 {vr(XR + 4 * q, 4)}, v{VX}, s[24:27], {xo(q)}')
    for i in range(32):
        k(f'v_cvt_pk_bf16_f32 v{PK + i}, v{2 * i}, v{2 * i + 1}')
    k('s_cmp_eq_u32 s34, 0\ns_cbranch_scc1 L_k3_oproj')
    k(f's_mov_b32 s48, {f32(-math.log2(math.e))}')
    for i in range(32):
        k(f'v_lshlrev_b32 v{2 * i}, 16, v{PK + i}\nv_and_b32 v{2 * i + 1}, 0xffff0000, v{PK + i}')
    for c in range(0, 64, 16):
        for i in range(16):
            k(f'v_mul_f32 v{OT + i}, s48, v{c + i}')
        for i in range(16):
            k(f'v_exp_f32 v{OT + i}, v{OT + i}')
        for i in range(16):
            k(f'v_add_f32 v{OT + i}, 1.0, v{OT + i}')
        for i in range(16):
            k(f'v_rcp_f32 v{OT + i}, v{OT + i}')
        for i in range(16):
            k(f'v_mul_f32 v{c + i}, v{c + i}, v{OT + i}')
        for i in range(8):
            k(f'v_cvt_pk_bf16_f32 v{PK + c // 2 + i}, v{c + 2 * i}, v{c + 2 * i + 1}')
    k('L_k3_publish:')
    for q in range(8):
        k(f'buffer_store_dwordx4 {vr(PK + 4 * q, 4)}, v{VLN3}, s[12:15], s{67 + (q >> 2)} offen offset:{(q & 3) * 1024} sc0 sc1')
    k(f"""
    s_waitcnt vmcnt(0)
    s_barrier
    s_cmp_lg_u32 s3, 0
    s_cbranch_scc1 L_k3_pub_wait
    v_mov_b32 v{T0}, 1
    s_mov_b64 exec, 1
    buffer_atomic_add v{T0}, v{VZ}, s[20:23], 0 offen sc0 sc1
    s_waitcnt vmcnt(0)
    ds_write_b32 v{VZ}, v{T0}
    s_mov_b64 exec, -1
    s_waitcnt lgkmcnt(0)
    L_k3_pub_wait:
    s_barrier
    ds_read_b32 v{T0}, v{VZ}
    s_waitcnt lgkmcnt(0)
    v_readfirstlane_b32 s48, v{T0}
    s_nop 1
    s_cmp_eq_u32 s48, 0
    s_cbranch_scc1 L_k3_end
    s_branch L_k3_finish
    L_k3_oproj:
    s_mov_b32 s49, 4096
    s_cmp_lg_u32 s3, 0
    s_cbranch_scc1 L_k3_poll_done
    L_k3_poll:
    buffer_load_dword v{T0}, v{VZ}, s[20:23], 0 offen sc0 sc1
    s_waitcnt vmcnt(0)
    v_readfirstlane_b32 s48, v{T0}
    s_nop 1
    s_cmp_lg_u32 s48, 0
    s_cbranch_scc1 L_k3_poll_end
    s_sleep 4
    s_sub_u32 s49, s49, 1
    s_cmp_lg_u32 s49, 0
    s_cbranch_scc1 L_k3_poll
    L_k3_poll_end:
    ds_write_b32 v{VZ}, v{T0} offset:64
    s_waitcnt lgkmcnt(0)
    L_k3_poll_done:
    s_barrier
    ds_read_b32 v{T0}, v{VZ} offset:64
    s_waitcnt lgkmcnt(0)
    v_readfirstlane_b32 s48, v{T0}
    s_nop 1
    s_cmp_eq_u32 s48, 0
    s_cbranch_scc1 L_k3_publish
    L_k3_finish:
    """)
    for q in range(8):
        k(f'buffer_load_dwordx4 {vr(OT + 4 * q, 4)}, v{VLN3}, s[16:19], s{67 + (q >> 2)} offen offset:{(q & 3) * 1024} sc0 sc1')
    for i in range(32):
        k(f'v_lshlrev_b32 v{2 * i}, 16, v{PK + i}\nv_and_b32 v{2 * i + 1}, 0xffff0000, v{PK + i}')
    for q in range(8):
        k('s_waitcnt vmcnt(7)')
        o = OT + 4 * q
        for i in range(4):
            j = 4 * q + i
            k(f"""v_lshlrev_b32 v{T0}, 16, v{OT + j}
            v_and_b32 v{T1}, 0xffff0000, v{OT + j}
            v_mul_f32 v{T0}, v{T0}, v{2 * j}
            v_mul_f32 v{T1}, v{T1}, v{2 * j + 1}
            v_cvt_pk_bf16_f32 v{OT + j}, v{T0}, v{T1}""")
        k(f"""s_nop 0
        v_permlane32_swap_b32 v{o}, v{o + 2}
        v_permlane32_swap_b32 v{o + 1}, v{o + 3}
        s_nop 0
        v_permlane16_swap_b32 v{o}, v{o + 2}
        v_permlane16_swap_b32 v{o + 1}, v{o + 3}""")
        for i in range(4):
            j = 4 * q + i
            k(f"""v_lshlrev_b32 v{T2}, 16, v{XR + j}
            v_and_b32 v{T3}, 0xffff0000, v{XR + j}
            v_lshlrev_b32 v{T0}, 16, v{OT + j}
            v_and_b32 v{T1}, 0xffff0000, v{OT + j}
            v_add_f32 v{T0}, v{T0}, v{T2}
            v_add_f32 v{T1}, v{T1}, v{T3}
            v_cvt_pk_bf16_f32 v{OT + j}, v{T0}, v{T1}""")
        k(f'buffer_store_dwordx4 {vr(o, 4)}, v{VX}, s[28:31], {xo(q)}')
    if OPT['stamp']:
        stamp(k, 3)
        stamp_out(k, 'L_k3_end', 's62', 's63')
    if OPT['span']:
        k('L_k3_end:')
        span_end(k, 70, 2)
        k('s_endpgm')
    else:
        k('L_k3_end:\ns_endpgm')
    rings = {'W': (4, lambda n: (n * 32768, (n + 1) * 32768))}
    pol = [{}, {'L_k3_oproj': [1]}, {'L_k3_oproj': [1], 'L_k3_publish': [1]},
           {'L_k3_oproj': [1], 'L_k3_poll_done': [1]}, {'L_k3_pub_wait': [1]}]
    return k, k.check(pol, rings=rings)


def main():
    out = 'cdna_kernels/' + NAME + '.s'
    for a in sys.argv[1:]:
        if '=' in a:
            kk, v = a.split('=')
            assert kk in OPT, kk
            OPT[kk] = int(v)
        else:
            out = a
    ref = open('cdna_kernels/' + NAME + '.s.ref').read()
    header = '\n'.join(l for l in ref.split('\n')[:12])
    k1 = gen_ln()
    p = k1.check([{}, {'L_ln_noflag': [1]}])
    k2, p2 = gen_k2()
    k3, p3 = gen_k3()
    for x in p + p2 + p3:
        print('PROBLEM', x)
    ks = [k1, k2, k3]
    ls = [('ln_kernel', 256, 512, 0), ('att_kernel', 256, 256, 163840), ('fin_kernel', 256, 256, 131072)]
    if OPT['mln']:
        ks, ls = ks[1:], ls[1:]
    if OPT['mk3']:
        assert not OPT['pf4'] and OPT['mln'] and not OPT['rp'] and OPT['warm'] and not OPT['stamp']
        ks, ls = ks[:1], ls[:1]
    s = build_file(header, ks, ls)
    if OPT['single'] and len(ks) == 1:
        s = s.replace('; @launch kernel=att_kernel ', '; @launch ').replace('att_kernel', NAME + '_kernel')
    open(out, 'w').write(s)
    for k in ks:
        print(k.name, 'instrs', sum(1 for t, _ in k.lines if t == 'I'), 'regs', k.max_regs(),
              'autowaits', sum(1 for t, v in k.lines if t == 'I' and '; auto' in v.text))


if __name__ == '__main__':
    main()
```

```python
import math
import struct
import sys

sys.path.insert(0, 'work')
from asmlib import *

NAME = 'recurrent_scan__mha_block_cached__dense_activation_relu__prompt'
XN_OFF, H_OFF, O_OFF, G_OFF, S_OFF, F_OFF = 0, 0x400000, 0x1400000, 0x2400000, 0x2800000, 0x3000000
WP_OFF = 0x3800000
MF = 'v_mfma_f32_16x16x32_bf16'
OPT = dict(lpf=2, lpg=104, owt=1, fix=0, fixat=9, mk3=1, single=0, orto=0, g0e=0, g1e=0, pf3=4, pf4=0, thr=20, pfr=64, st2=0, mln=1, pf1=0, pf2=0, lnto=0, sy=1, xsc=1, dbgtest=0, rp=0, p1pf=0, k1w=0, k1pos=1, span=0, dumpq=0, empty=0, warm=1, stamp=0, x0=56, look3=2, msum=1, la=14, nodma=0, nolds=0, noexp=0, nocvt=0, nobar=0)


def f32(x):
    return '0x%08x' % struct.unpack('<I', struct.pack('<f', x))[0]


def vr(b, n=1):
    return f'v{b}' if n == 1 else f'v[{b}:{b + n - 1}]'


def ar(b, n=1):
    return f'a{b}' if n == 1 else f'a[{b}:{b + n - 1}]'


def srd(k, d, lo, hi, nbytes):
    k(f"""s_mov_b32 s{d}, {lo}
    s_mov_b32 s{d + 1}, {hi}
    s_mov_b32 s{d + 2}, {nbytes}
    s_mov_b32 s{d + 3}, 0x20000""")


def srd_off(k, d, lo, hi, off, nbytes):
    k(f"""s_add_u32 s{d}, {lo}, {off}
    s_addc_u32 s{d + 1}, {hi}, 0
    s_mov_b32 s{d + 2}, {nbytes}
    s_mov_b32 s{d + 3}, 0x20000""")


def weave(mfmas, fill):
    out = []
    for g, m in enumerate(mfmas):
        out += fill.get(('pre', g), [])
        out.append(m)
        out += fill.get(g, [])
    return out


def stamp(k, idx, sreg=92, last=False):
    if not OPT['stamp']:
        return
    k(f"""s_memtime s[{sreg}:{sreg + 1}]
    s_memrealtime s[{sreg + 2}:{sreg + 3}]
    s_waitcnt lgkmcnt(0)
    s_mov_b32 s{76 + idx}, s{sreg}
    s_mov_b32 s{84 + idx}, s{sreg + 2}""")


def stamp2(k, idx, mode=1):
    if OPT['st2'] == mode or (OPT['st2'] and idx == 0):
        k(f"""s_memrealtime s[92:93]
        s_waitcnt lgkmcnt(0)
        s_mov_b32 s{76 + idx}, s92""")


def stamp2_out(k, reg):
    if not OPT['st2']:
        return
    k(f"""s_load_dwordx2 s[72:73], s[0:1], 80
    s_waitcnt lgkmcnt(0)
    s_add_u32 s72, s72, {0x5040000 + reg * 65536}
    s_addc_u32 s73, s73, 0
    s_mov_b32 s74, 65536
    s_mov_b32 s75, 0x20000
    s_lshl_b32 s48, s2, 2
    s_add_u32 s48, s48, s3
    s_lshl_b32 s48, s48, 6""")
    for i in range(16):
        k(f'v_mov_b32 v1, s{76 + i}\nv_mov_b32 v2, {4 * i}\nbuffer_store_dword v1, v2, s[72:75], s48 offen')


def fix_until(k, at):
    if OPT['fix'] and OPT['fixat'] == at:
        k(f"""s_mov_b32 s92, 20000
        L_fix{at}:
        s_memrealtime s[90:91]
        s_waitcnt lgkmcnt(0)
        s_sub_u32 s90, s90, s100
        s_cmp_ge_u32 s90, {OPT['fix']}
        s_cbranch_scc1 L_fixd{at}
        s_sub_u32 s92, s92, 1
        s_cmp_lg_u32 s92, 0
        s_cbranch_scc1 L_fix{at}
        L_fixd{at}:""")


def span_begin(k):
    if OPT['fix']:
        k('s_memrealtime s[100:101]')
    if OPT['span']:
        k('s_memrealtime s[100:101]')


def span_end(k, v0, idx):
    if not OPT['span']:
        return
    k(f'''s_load_dwordx2 s[72:73], s[0:1], 80
    s_waitcnt {'vmcnt(0) ' if idx else ''}lgkmcnt(0)
    s_mov_b32 s76, s100
    s_memrealtime s[100:101]
    s_add_u32 s72, s72, {0x5000000 + idx * 65536}
    s_addc_u32 s73, s73, 0
    s_mov_b32 s74, 65536
    s_mov_b32 s75, 0x20000
    s_mov_b64 exec, 1
    s_lshl_b32 s77, s2, 3
    s_add_u32 s77, s77, s3
    s_lshl_b32 s77, s77, 3
    s_waitcnt lgkmcnt(0)
    v_mov_b32 v{v0}, 0
    v_mov_b32 v{v0 + 2}, s76
    v_mov_b32 v{v0 + 3}, s100
    buffer_store_dwordx2 v[{v0 + 2}:{v0 + 3}], v{v0}, s[72:75], s77 offen''')


def stamp_out(k, endlabel, lo, hi):
    k(f"""s_cmp_lg_u32 s3, 0
    s_cbranch_scc1 {endlabel}
    s_cmp_ge_u32 s2, 4
    s_cbranch_scc1 {endlabel}""")
    srd(k, 72, lo, hi, 256)
    k('s_lshl_b32 s48, s2, 6')
    for i in range(16):
        k(f'v_mov_b32 v1, s{76 + i}\nv_mov_b32 v2, {4 * i}\nbuffer_store_dword v1, v2, s[72:75], s48 offen')


def gen_ln():
    k = Kernel('ln_kernel')
    span_begin(k)
    k("""
    s_cmp_ge_u32 s2, 256
    s_cbranch_scc1 L_ln_end
    s_load_dwordx2 s[4:5], s[0:1], 0
    s_load_dwordx2 s[6:7], s[0:1], 80
    s_load_dwordx2 s[26:27], s[0:1], 24
    s_load_dwordx2 s[28:29], s[0:1], 48
    v_lshrrev_b32 v1, 6, v0
    v_and_b32 v2, 63, v0
    s_nop 0
    v_readfirstlane_b32 s3, v1
    s_lshl_b32 s16, s2, 3
    s_nop 1
    s_add_u32 s16, s16, s3            ; token T
    s_lshl_b32 s17, s16, 11
    v_lshlrev_b32 v3, 4, v2           ; lane*16
    s_waitcnt lgkmcnt(0)
    """)
    srd(k, 8, 's4', 's5', 0x400000)
    srd(k, 12, 's6', 's7', 0x400000)
    k("""
    buffer_load_dwordx4 v[4:7], v3, s[8:11], s17 offen
    buffer_load_dwordx4 v[8:11], v3, s[8:11], s17 offen offset:1024
    s_lshr_b32 s18, s16, 5
    s_lshl_b32 s18, s18, 16
    s_and_b32 s19, s16, 15
    s_lshl_b32 s19, s19, 4
    s_add_u32 s18, s18, s19
    s_and_b32 s19, s16, 16
    s_lshl_b32 s19, s19, 6
    s_add_u32 s18, s18, s19
    s_add_u32 s19, s18, 32768         ; chunk 64..127
    v_lshrrev_b32 v40, 2, v2
    v_lshlrev_b32 v40, 11, v40
    v_and_b32 v41, 3, v2
    v_lshl_add_u32 v40, v41, 8, v40   ; (c>>2)*2048 + (c&3)*256
    """)
    k(f"""
    s_cmp_ge_u32 s2, 128
    s_cbranch_scc1 L_ln_noflag
    s_cmp_lg_u32 s3, 0
    s_cbranch_scc1 L_ln_noflag
    """)
    srd_off(k, 20, 's6', 's7', F_OFF, 32768)
    k("""
    s_lshr_b32 s24, s2, 4
    s_lshl_b32 s24, s24, 12
    s_and_b32 s25, s2, 15
    s_lshl_b32 s25, s25, 7
    s_add_u32 s24, s24, s25
    v_and_b32 v41, 31, v2
    v_lshlrev_b32 v41, 2, v41
    v_mov_b32 v42, 0
    buffer_store_dword v42, v41, s[20:23], s24 offen
    L_ln_noflag:
    """)

    def warm():
        n = OPT['k1w']
        k(f'''s_lshl_b32 s30, s2, 2
        s_and_b32 s31, s3, 3
        s_add_u32 s30, s30, s31          ; 0..1023
        s_cmp_lt_u32 s3, 4
        s_cselect_b32 s32, s26, s28
        s_cselect_b32 s33, s27, s29
        s_mov_b32 s34, {896 * n}
        s_cselect_b32 s34, {1024 * n}, s34
        s_mul_i32 s30, s30, s34
        s_add_u32 s32, s32, s30
        s_addc_u32 s33, s33, 0
        s_mov_b32 s35, 0x20000
        v_lshlrev_b32 v43, 7, v2
        buffer_load_dword v60, v43, s[32:35], 0 offen ;#PF''')
    if OPT['k1w'] and OPT['k1pos'] == 0:
        warm()
        k('s_waitcnt vmcnt(1)')
    else:
        k('s_waitcnt vmcnt(0)')
    if OPT['k1w'] and OPT['k1pos'] == 1:
        warm()
    for i in range(8):
        k(f'v_lshlrev_b32 v{12 + 2 * i}, 16, v{4 + i}')
        k(f'v_and_b32 v{13 + 2 * i}, 0xffff0000, v{4 + i}')

    def tree(dst, src, n):
        cur = list(range(src, src + n))
        t = dst
        while len(cur) > 1:
            nxt = []
            for i in range(0, len(cur), 2):
                k(f'v_add_f32 v{t}, v{cur[i]}, v{cur[i + 1]}')
                nxt.append(t)
                t += 1
            cur = nxt
        return cur[0]

    def wave_sum(r, tmp):
        for mode in ('quad_perm:[1,0,3,2]', 'quad_perm:[2,3,0,1]', 'row_half_mirror', 'row_mirror'):
            k('s_nop 1')
            k(f'v_add_f32_dpp v{r}, v{r}, v{r} {mode} row_mask:0xf bank_mask:0xf')
        for sw in ('v_permlane16_swap_b32', 'v_permlane32_swap_b32'):
            k(f'v_mov_b32 v{tmp}, v{r}')
            k('s_nop 1')
            k(f'{sw} v{r}, v{tmp}')
            k(f'v_add_f32 v{r}, v{r}, v{tmp}')
    r = tree(44, 12, 16)
    wave_sum(r, 43)
    k(f'v_mul_f32 v28, {f32(1 / 1024)}, v{r}')
    for i in range(16):
        k(f'v_sub_f32 v{44 + i}, v{12 + i}, v28')
    k('v_mul_f32 v30, v44, v44')
    k('v_mul_f32 v31, v45, v45')
    for i in range(2, 16):
        k(f'v_fmac_f32 v{30 + (i & 1)}, v{44 + i}, v{44 + i}')
    k('v_add_f32 v30, v30, v31')
    wave_sum(30, 43)
    k(f"""
    v_mul_f32 v30, {f32(1 / 1024)}, v30
    v_cvt_pk_bf16_f32 v29, v28, v30
    v_lshlrev_b32 v28, 16, v29             ; m_bf
    v_and_b32 v30, 0xffff0000, v29         ; var_bf
    v_add_f32 v30, {f32(1e-5)}, v30
    v_cvt_pk_bf16_f32 v30, v30, v30
    v_and_b32 v30, 0xffff0000, v30
    v_sqrt_f32 v30, v30
    s_nop 0
    v_cvt_pk_bf16_f32 v30, v30, v30
    v_and_b32 v30, 0xffff0000, v30
    v_rcp_f32 v30, v30
    """)
    for i in range(16):
        k(f'v_sub_f32 v{12 + i}, v{12 + i}, v28')
    for i in range(8):
        k(f'v_cvt_pk_bf16_f32 v{4 + i}, v{12 + 2 * i}, v{13 + 2 * i}')
    for i in range(8):
        k(f'v_lshlrev_b32 v{12 + 2 * i}, 16, v{4 + i}')
        k(f'v_and_b32 v{13 + 2 * i}, 0xffff0000, v{4 + i}')
    for i in range(16):
        k(f'v_mul_f32 v{12 + i}, v{12 + i}, v30')
    for i in range(8):
        k(f'v_cvt_pk_bf16_f32 v{4 + i}, v{12 + 2 * i}, v{13 + 2 * i}')
    k("""
    buffer_store_dwordx4 v[4:7], v40, s[12:15], s18 offen
    buffer_store_dwordx4 v[8:11], v40, s[12:15], s19 offen
    """)
    if OPT['dbgtest']:
        k('''s_or_b32 s30, s2, s3
        s_cmp_lg_u32 s30, 0
        s_cbranch_scc1 L_ln_end
        s_load_dwordx2 s[32:33], s[0:1], 72
        s_waitcnt lgkmcnt(0)
        s_mov_b32 s34, 256
        s_mov_b32 s35, 0x20000
        v_mov_b32 v50, 0
        buffer_load_dword v51, v50, s[32:35], 0 offen sc0 sc1
        s_waitcnt vmcnt(0)
        v_readfirstlane_b32 s30, v51
        v_mov_b32 v51, 1
        s_nop 3
        buffer_store_dword v51, v50, s[32:35], 0 offen sc0 sc1
        s_cmp_eq_u32 s30, 0
        s_cbranch_scc1 L_ln_end
        s_mov_b32 s30, 60
        L_ln_spin:
        s_sleep 64
        s_sub_u32 s30, s30, 1
        s_cmp_lg_u32 s30, 0
        s_cbranch_scc1 L_ln_spin''')
    span_end(k, 50, 0)
    if OPT['k1w'] and OPT['k1pos'] == 2:
        k('s_mov_b64 exec, -1')
        warm()
    k('L_ln_end:\ns_endpgm')
    return k


LX = 139264
SYB = 4096
CX_O, CO_O, CH_O = 2048, 2304, 2432
DG_O, OR_O = 32, 64
LR, LF, LT = 64, 80, 112


def ln_offsets(k, vld, vst, vex):
    k(f"""v_and_b32 v{vex}, 7, v0
    v_lshrrev_b32 v{vst}, 3, v0
    v_lshlrev_b32 v{vld}, 11, v{vex}
    v_lshl_add_u32 v{vld}, v{vst}, 4, v{vld}      ; tok*2048 + c*16
    v_lshrrev_b32 v{LT}, 2, v{vst}
    v_and_b32 v{vst}, 3, v{vst}
    v_lshlrev_b32 v{vst}, 8, v{vst}
    v_lshl_add_u32 v{vst}, v{LT}, 11, v{vst}
    v_lshl_add_u32 v{vst}, v{vex}, 4, v{vst}      ; (c>>2)*2048 + (c&3)*256 + tok*16
    v_lshlrev_b32 v{vex}, 5, v{vex}
    v_add_u32 v{vex}, {LX}, v{vex}""")


def ln_scalars(k, sj, sld, sst, t):
    k(f"""s_lshl_b32 s{sld}, s{sj}, 14
    s_lshl_b32 s{t}, s3, 9
    s_add_u32 s{sld}, s{sld}, s{t}          ; row0*2048 + w*512
    s_lshr_b32 s{sst}, s{sj}, 2
    s_lshl_b32 s{sst}, s{sst}, 16           ; tb*65536
    s_and_b32 s{t}, s{sj}, 2
    s_lshl_b32 s{t}, s{t}, 9
    s_add_u32 s{sst}, s{sst}, s{t}          ; sub*1024
    s_and_b32 s{t}, s{sj}, 1
    s_lshl_b32 s{t}, s{t}, 7
    s_add_u32 s{sst}, s{sst}, s{t}          ; tok0*16
    s_lshl_b32 s{t}, s3, 14
    s_add_u32 s{sst}, s{sst}, s{t}          ; w*8 k-steps""")


def ln_loads(vld, srd_, sld):
    return [f'buffer_load_dwordx4 {vr(LR + 4 * i, 4)}, v{vld}, s[{srd_}:{srd_ + 3}], s{sld} offen offset:{i * 128} ;#LX' for i in range(4)]


def ln_compute(k0, vex, extra=(), every=12):
    extra = list(extra)
    st = dict(n=0, hold=False)

    def k(text):
        for t in text.strip().split('\n'):
            t = t.strip()
            if not t:
                continue
            k0(t)
            st['n'] += 1
            if 'exec' in t:
                st['hold'] = t.endswith('0xff')
            if extra and st['n'] % every == 0 and not st['hold']:
                for x in extra.pop(0):
                    k0(x)

    def unpack():
        for i in range(16):
            k(f'v_lshlrev_b32 v{LF + 2 * i}, 16, v{LR + i}')
            k(f'v_and_b32 v{LF + 2 * i + 1}, 0xffff0000, v{LR + i}')

    def xsum(r, tmp):
        k('s_nop 1')
        k(f'v_add_f32_dpp v{r}, v{r}, v{r} row_ror:8 row_mask:0xf bank_mask:0xf')
        for sw in ('v_permlane16_swap_b32', 'v_permlane32_swap_b32'):
            k(f'v_mov_b32 v{tmp}, v{r}')
            k('s_nop 1')
            k(f'{sw} v{r}, v{tmp}')
            k(f'v_add_f32 v{r}, v{r}, v{tmp}')
    unpack()
    for i in range(8):
        k(f'v_pk_add_f32 {vr(LT + 2 * i, 2)}, {vr(LF + 4 * i, 2)}, {vr(LF + 4 * i + 2, 2)}')
    for n in (4, 2, 1):
        for i in range(n):
            k(f'v_pk_add_f32 {vr(LT + 2 * i, 2)}, {vr(LT + 4 * i, 2)}, {vr(LT + 4 * i + 2, 2)}')
    MW = LR
    k(f'v_add_f32 v{MW}, v{LT}, v{LT + 1}')
    xsum(MW, MW + 1)
    k(f'v_mul_f32 v{MW + 2}, {f32(-1 / 256)}, v{MW}')
    k(f'v_mul_f32 v{MW}, {f32(1 / 256)}, v{MW}')
    k(f'v_mov_b32 v{MW + 3}, v{MW + 2}')
    for i in range(16):
        k(f'v_pk_add_f32 {vr(LT + 2 * i, 2)}, {vr(LF + 2 * i, 2)}, {vr(MW + 2, 2)}')
    for i in range(4):
        k(f'v_pk_mul_f32 {vr(MW + 4 + 2 * i, 2)}, {vr(LT + 2 * i, 2)}, {vr(LT + 2 * i, 2)}')
    for i in range(4, 16):
        a = vr(MW + 4 + 2 * (i & 3), 2)
        k(f'v_pk_fma_f32 {a}, {vr(LT + 2 * i, 2)}, {vr(LT + 2 * i, 2)}, {a}')
    k(f'v_pk_add_f32 {vr(MW + 4, 2)}, {vr(MW + 4, 2)}, {vr(MW + 6, 2)}')
    k(f'v_pk_add_f32 {vr(MW + 8, 2)}, {vr(MW + 8, 2)}, {vr(MW + 10, 2)}')
    k(f'v_pk_add_f32 {vr(MW + 4, 2)}, {vr(MW + 4, 2)}, {vr(MW + 8, 2)}')
    k(f'v_add_f32 v{MW + 1}, v{MW + 4}, v{MW + 5}')
    xsum(MW + 1, MW + 4)
    E = LT
    k(f"""s_lshl_b32 s48, s3, 3
    v_add_u32 v{MW + 4}, s48, v{vex}
    s_mov_b64 exec, 0xff
    ds_write_b64 v{MW + 4}, {vr(MW, 2)}
    s_mov_b64 exec, -1
    s_waitcnt lgkmcnt(0)
    s_barrier
    ds_read_b128 {vr(E, 4)}, v{vex}
    ds_read_b128 {vr(E + 4, 4)}, v{vex} offset:16
    s_waitcnt lgkmcnt(0)
    v_add_f32 v{MW}, v{E}, v{E + 2}
    v_add_f32 v{MW + 1}, v{E + 4}, v{E + 6}
    v_add_f32 v{MW + 2}, v{E + 1}, v{E + 3}
    v_add_f32 v{MW + 3}, v{E + 5}, v{E + 7}
    v_add_f32 v{MW}, v{MW}, v{MW + 1}
    v_add_f32 v{MW + 2}, v{MW + 2}, v{MW + 3}
    v_mul_f32 v{MW}, 0.25, v{MW}                   ; mean
    v_sub_f32 v{E}, v{E}, v{MW}
    v_sub_f32 v{E + 2}, v{E + 2}, v{MW}
    v_sub_f32 v{E + 4}, v{E + 4}, v{MW}
    v_sub_f32 v{E + 6}, v{E + 6}, v{MW}
    v_mul_f32 v{E}, v{E}, v{E}
    v_mul_f32 v{E + 4}, v{E + 4}, v{E + 4}
    v_fmac_f32 v{E}, v{E + 2}, v{E + 2}
    v_fmac_f32 v{E + 4}, v{E + 6}, v{E + 6}
    v_add_f32 v{E}, v{E}, v{E + 4}
    v_fmac_f32 v{MW + 2}, {f32(256.0)}, v{E}
    v_mul_f32 v{MW + 2}, {f32(1 / 1024)}, v{MW + 2}   ; variance
    v_cvt_pk_bf16_f32 v{MW + 1}, v{MW}, v{MW + 2}
    v_lshlrev_b32 v{MW}, 16, v{MW + 1}
    v_and_b32 v{MW + 2}, 0xffff0000, v{MW + 1}
    v_add_f32 v{MW + 2}, {f32(1e-5)}, v{MW + 2}
    v_cvt_pk_bf16_f32 v{MW + 2}, v{MW + 2}, v{MW + 2}
    v_and_b32 v{MW + 2}, 0xffff0000, v{MW + 2}
    v_sqrt_f32 v{MW + 2}, v{MW + 2}
    v_sub_f32 v{E}, 0, v{MW}
    v_sub_f32 v{E + 1}, 0, v{MW}
    v_cvt_pk_bf16_f32 v{MW + 2}, v{MW + 2}, v{MW + 2}
    v_and_b32 v{MW + 2}, 0xffff0000, v{MW + 2}
    v_rcp_f32 v{E + 2}, v{MW + 2}
    v_rcp_f32 v{E + 3}, v{MW + 2}
    """)
    for i in range(16):
        k(f'v_pk_add_f32 {vr(LF + 2 * i, 2)}, {vr(LF + 2 * i, 2)}, {vr(E, 2)}')
    for i in range(16):
        k(f'v_cvt_pk_bf16_f32 v{LR + i}, v{LF + 2 * i}, v{LF + 2 * i + 1}')
    unpack()
    for i in range(16):
        k(f'v_pk_mul_f32 {vr(LF + 2 * i, 2)}, {vr(LF + 2 * i, 2)}, {vr(E + 2, 2)}')
    for i in range(16):
        k(f'v_cvt_pk_bf16_f32 v{LR + i}, v{LF + 2 * i}, v{LF + 2 * i + 1}')


def ln_stores(vst, sst):
    out = []
    for i in range(4):
        out.append(f'buffer_store_dwordx4 {vr(LR + 4 * i, 4)}, v{vst}, s[4:7], s{sst} offen sc0 sc1 ;#LS')
        if i < 3:
            out.append(f's_add_u32 s{sst}, s{sst}, 4096')
    return out

GSLOT = 45056
ABASE = 32768
KSLOT = lambda i: 4 + ((i + 3) & 3)
VSLOT = lambda i: (i + 1) & 3
S_ = lambda b, kvt, qt: b * 64 + ((kvt >> 1) * 4 + qt) * 8 + (kvt & 1) * 4
P_ = lambda b, u, qt: b * 64 + (u * 4 + qt) * 8
NEGM = lambda qt: 128 + 4 * qt
ONES = 144
VKA = 148
VVA = 152
VKD = 160
VVD = 164
VLN = 166
VPFO = 167
VMT = 168
VL = 204
VT = 208
RPV, RPD = 250, 252
HG = lambda p, tt: (64 + 8 * (2 * p + tt)) if 2 * p + tt < 10 else (172 + 8 * (2 * p + tt - 10))
HACC = lambda nt, tt: HG(nt >> 1, tt) + 4 * (nt & 1)
PWQ, PW1, PQ0, PCQ, P10, PC1 = 2, 6, 13, 21, 29, 31
OACC = lambda dt, qt: (dt * 4 + qt) * 4
QF = lambda qt, s: 128 + (qt * 4 + s) * 4
XN = lambda b, tt, s: 128 + b * 32 + (tt * 2 + s) * 4
RING = 192
LACC = lambda qt: 224 + 4 * qt
NR1 = 11
VD3 = 224
VZR, VONE, VPO, VDG, VOR = range(232, 237)
VB3 = 172
W3 = lambda T: 32768 + ((T + 3) & 3) * 32768
OOB = '0x7fffffff'


def WT():
    return ' sc0 sc1' if OPT['mk3'] else ''


def lane_grc(k, g, r, c, lane=0):
    k(f"""v_lshrrev_b32 v{g}, 4, v{lane}
    v_bfe_u32 v{r}, v{lane}, 2, 2
    v_and_b32 v{c}, 3, v{lane}""")


def p1_dmas(tag, wtag):
    g = []
    for j in range(4):
        g.append((['s_add_u32 m0, s40, s45'] if j == 0 else [],
                  f'buffer_load_dwordx4 v{PWQ + j}, s[8:11], s38 offen offset:{j * 1024} lds',
                  ['s_add_u32 s38, s38, 0x80000'] if j == 3 else []))
    for j in range(7):
        g.append(([f's_add_u32 m0, s40, s{46 + (j >> 2)}'] if j in (0, 4) else [],
                  f'buffer_load_dwordx4 v{PW1 + j}, s[12:15], s39 offen offset:{(j & 3) * 1024} lds',
                  ['s_add_u32 s39, s39, 0x70000', 's_mov_b32 s41, s49', 's_mov_b32 s49, s40', f's_add_u32 s40, s40, {GSLOT}',
                   f's_cmp_lt_u32 s40, {3 * GSLOT}', 's_cselect_b32 s40, s40, 0'] if j == 6 else []))
    return g


def xn_loads(b):
    g = []
    for t in range(2):
        for s in range(2):
            for sub in range(2):
                g.append(([], f'buffer_load_dwordx4 {ar(XN(b, 2 * t + sub, s), 4)}, v{VLN}, s[4:7], s{36 + t} offen '
                              f'offset:{s * 2048 + sub * 1024}{" sc1" if OPT["mln"] and OPT["xsc"] else ""} ;#X',
                          [f's_add_u32 s{36 + t}, s{36 + t}, 4096'] if s and sub else []))
    return g


def kdma(i, tag):
    return [([f's_add_u32 m0, s45, {ABASE + KSLOT(i) * 16384}'] if j == 0 else [],
             f'buffer_load_dwordx4 v{VKD + j}, s[16:19], s43 offen offset:{j * 1024} lds',
             ['s_add_u32 s43, s43, 16384'] if j == 3 else []) for j in range(4)]


def vdma(i, tag):
    return [([f's_add_u32 m0, s45, {ABASE + VSLOT(i) * 16384}'] if j == 0 else [],
             f'buffer_load_dwordx4 v{VVD + (j & 1)}, s[20:23], s44 offen offset:{j * 1024} lds',
             ['s_add_u32 s44, s44, 16384'] if j == 3 else []) for j in range(4)]


def flat(vm):
    out = []
    for pre, v, post in vm:
        out += pre + (['s_nop 0'] if pre else []) + [v] + post
    return out


def sched_vmem(G, fns, gaps):
    prev = -10 ** 6
    for n, (fn, g) in enumerate(zip(fns, gaps)):
        while not G.fits(g, 8):
            g += 1
        pre, _, post = fn(0)
        G.put(g, lambda i, fn=fn: [fn(i)[1]], 8, kind='vm')
        for j in range(len(pre)):
            G.place(max(prev + 1, g - 3, 0), g - 1, g - 1, lambda i, fn=fn, j=j: [fn(i)[0][j]], 4, kind='vm', pack=True)
        lo = g + 1
        nxt = gaps[n + 1] if n + 1 < len(gaps) else g + 8
        for j in range(len(post)):
            lo = G.place(lo, g + 6, lo, lambda i, fn=fn, j=j: [fn(i)[2][j]], 4, kind='vm')
        prev = g


P1_SEQ = ['Q0', 'F0', 'Q1', 'F1', 'Q2', 'F2', 'Q3', 'F3', 'Q4', 'F4', 'Q5', 'F5', 'F6', 'Q6', 'Q7']
P1_GB = 103


def p1_frags():
    fr = []
    for gi, name in enumerate(P1_SEQ):
        g0, x = 8 * gi, int(name[1:])
        if name[0] == 'Q':
            for s in range(2):
                fr.append(('Q', x, s, g0, g0 + 6 + s))
        else:
            for e in range(2):
                for s in range(2):
                    fr.append(('F', 2 * x + e, s, g0, g0 + 4 * e + 2 + s))
    return fr


def p1_mfmas(b):
    mf, n = [], 0
    for name in P1_SEQ:
        x = int(name[1:])
        if name[0] == 'Q':
            for tt in range(4):
                for s in range(2):
                    a = ar(RING + ((n + s) % NR1) * 4, 4)
                    mf.append(f'{MF} {ar(OACC(x, tt), 4)}, {a}, {ar(XN(b, tt, s), 4)}, {ar(OACC(x, tt), 4)}')
            n += 2
        else:
            for e in range(2):
                for tt in range(2):
                    for s in range(2):
                        a = ar(RING + ((n + 2 * e + s) % NR1) * 4, 4)
                        h = vr(HACC(2 * x + e, tt), 4)
                        mf.append(f'{MF} {h}, {a}, {ar(XN(b, tt, s), 4)}, {h}')
            n += 4
    return mf


def p1_read(n, hh):
    kind, x, s, _, _ = p1_frags()[n]
    d = RING + (n % NR1) * 4 + 2 * hh
    if kind == 'Q':
        return f'ds_read_b64_tr_b16 {ar(d, 2)}, v{PCQ + x} offset:{s * 8192 + hh * 1024} ;@R G 0'
    return f'ds_read_b64_tr_b16 {ar(d, 2)}, v{PC1 + (x & 1)} offset:{(x >> 1) * 64 + (s * 32 + hh * 4) * 448} ;@R G 0'


def p1_sched(mode):
    G = Gaps(120)
    fr = p1_frags()
    for gi in range(len(P1_SEQ)):
        regs = [ar(RING + (n % NR1) * 4, 4) for n, f in enumerate(fr) if f[3] == 8 * gi]
        G.put(8 * gi - 1, lambda i, regs=regs: [('need', regs)], 4, prio=9, kind='need')
    G.put(P1_GB, lambda i: [('vmwait', [f'G{(i + 1) & 1}'], ' lgkmcnt(0)'), 's_barrier ;@ROT G'], 8, kind='bar')
    G.put(118, lambda i: [('vmwait', ['X'])], 4, prio=8, kind='bar')
    if mode == 't15' and OPT['mln']:
        G.put(108, lambda i: [('vmwait', ['K0']), 's_barrier'], 8, kind='k0bar')
    upd = {}
    g = P1_GB + 1
    if mode == 't14':
        G.put(90, lambda i: ['s_mov_b32 s41, s49'], 4, kind='bar')
    order = [('Q', 0), ('F', 0), ('F', 1)] + [('Q', d) for d in range(1, 8)]
    for kd, x in order:
        ins = f'v_add_u32 v{PCQ + x}, s41, v{PQ0 + x}' if kd == 'Q' else f'v_add_u32 v{PC1 + x}, s41, v{P10 + x}'
        g = G.place(g, 119, g, lambda i, ins=ins: [ins], 4, kind='bar', prio=1)
        upd[(kd, x)] = g
    if mode == 'loop':
        fns = [lambda i, j=j: xn_loads((i + 1) & 1)[j] for j in range(8)] + \
              [lambda i, j=j: p1_dmas(f'G{i & 1}', '+2')[j] for j in range(11)]
        gaps = [2 + 5 * j for j in range(8)] + [42 + (11 * j) // 2 for j in range(11)]
        if OPT['lpf']:
            fns.append(lambda i: ([], f'buffer_load_dword v{VT + 40}, v{VT + 11}, s[68:71], s56 offen ;#PF', ['s_add_u32 s56, s56, s57']))
            gaps.append(OPT['lpg'])
    elif mode == 't14' and OPT['mln']:
        fns = [lambda i, j=j: xn_loads(1)[j] for j in range(8)] + \
              [lambda i, j=j: (kdma(0, 'K0') + vdma(0, 'V0') + vdma(1, 'V1'))[j] for j in range(12)]
        gaps = [2 + 5 * j for j in range(8)] + [42 + 5 * j for j in range(12)]
    elif mode == 't14':
        fns = [lambda i, j=j: xn_loads(1)[j] for j in range(8)] + \
              [lambda i, j=j: (vdma(0, 'V0') + vdma(1, 'V1'))[j] for j in range(8)]
        gaps = [2 + 6 * j for j in range(8)] + [50 + 6 * j for j in range(8)]
    else:
        fns = [lambda i, j=j: (kdma(1, 'K1') + kdma(2, 'K2') + kdma(3, 'K3'))[j] for j in range(12)]
        gaps = [2 + 9 * j for j in range(12)]
    sched_vmem(G, fns, gaps)
    prev = -10 ** 6
    for n, (kd, x, s, fu, lu) in enumerate(fr):
        pl = fr[n - NR1][4] - (120 if n < NR1 else 0)
        lo = max(pl + 1, prev, upd[(kd, x if kd == 'Q' else x & 1)] - 120 + 1)
        hi = min(fu - 6, P1_GB - 3)
        assert lo <= hi, (n, lo, hi)
        for hh in range(2):
            prev = G.place(lo, hi, fu - OPT['la'], lambda i, n=n, hh=hh: [p1_read(n, hh)], 4, kind='rd', pack=True)
            lo = prev
    return G


def k_read(i, n):
    kvt, s = divmod(n, 4)
    return f'ds_read_b128 {ar(RING + (n & 7) * 4, 4)}, v{VKA + s} offset:{(KSLOT(i) - 4) * 16384 + kvt * 4096} ;@R A {KSLOT(i)}'


def v_read(i, n, hh):
    dt, u = divmod(n - 16, 2)
    return (f'ds_read_b64_tr_b16 {ar(RING + (n & 7) * 4 + 2 * hh, 2)}, v{VVA + dt} '
            f'offset:{VSLOT(i) * 16384 + u * 8192 + hh * 4096} ;@R A {VSLOT(i)}')


def elem_reg(b, e):
    kvt, qt, r = e >> 4, (e >> 2) & 3, e & 3
    return S_(b, kvt, qt) + r


def sm_exp(b, e):
    r = elem_reg(b, e)
    return f'v_exp_f32 v{r}, v{r}'


def sm_add(b, e):
    qt = (e >> 2) & 3
    return f'v_add_f32 v{VL + qt}, v{VL + qt}, v{elem_reg(b, e)}'


def sm_cvt(b, e):
    kvt, qt, r = e >> 4, (e >> 2) & 3, e & 3
    src = elem_reg(b, e)
    return f'v_cvt_pk_bf16_f32 v{P_(b, kvt >> 1, qt) + 2 * (kvt & 1) + (r >> 1)}, v{src - 1}, v{src}'


def qk_mfmas(bS, c0=None):
    mf = []
    for kvt in range(4):
        for qt in range(4):
            for s in range(4):
                d = vr(S_(bS, kvt, qt), 4)
                c = d if s else (c0 if c0 is not None else vr(NEGM(qt), 4))
                mf.append(f'{MF} {d}, {ar(RING + ((kvt * 4 + s) & 7) * 4, 4)}, {ar(QF(qt, s), 4)}, {c}')
    return mf


def pv_mfmas(bS):
    mf = []
    for dt in range(8):
        for qt in range(4):
            for u in range(2):
                o = ar(OACC(dt, qt), 4)
                mf.append(f'{MF} {o}, {ar(RING + ((16 + dt * 2 + u) & 7) * 4, 4)}, {vr(P_(bS, u, qt), 4)}, {o}')
        if OPT['msum']:
            qt, u = dt >> 1, dt & 1
            mf.append(f'{MF} {ar(LACC(qt), 4)}, {vr(ONES, 4)}, {vr(P_(bS, u, qt), 4)}, {ar(LACC(qt), 4)}')
    return mf


def rp_item(i):
    if i & 1 == 0:
        return ([], f'buffer_load_dwordx4 {vr(RPD, 4)}, v{RPV + ((i >> 1) & 1)}, s[68:71], s65 offen ;#RP', ['s_add_u32 s65, s65, 8192'])
    return ([], f'buffer_store_dwordx4 {vr(RPD, 4)}, v{VLN}, s[96:99], s34 offen ;#RS', ['s_add_u32 s34, s34, 1024'])


def att_sched():
    PW = 9 if OPT['msum'] else 8
    NG = 64 + 8 * PW
    G = Gaps(NG)
    fu = [16 * (n >> 2) for n in range(16)] + [64 + PW * (n >> 1) for n in range(16)]
    lu = [16 * (n >> 2) + 12 + (n & 3) for n in range(16)] + [64 + PW * (n >> 1) + 6 + (n & 1) for n in range(16)]
    for g0 in sorted(set(fu)):
        regs = [ar(RING + (n & 7) * 4, 4) for n in range(32) if fu[n] == g0]
        G.put(g0 - 1, lambda i, regs=regs: [('need', regs)], 4, prio=9, kind='need')
    GB = lu[24] - 3
    G.put(GB, lambda i: [('vmwait', [f'V{(i + 1) & 3}', f'K{(i + 2) & 3}']), 's_barrier'], 8, kind='bar')
    fns = [lambda i, j=j: (vdma(i + 2, f'V{(i + 2) & 3}') + kdma(i + 4, f'K{i & 3}'))[j] for j in range(8)]
    gaps = [4 + (NG * j) // 8 for j in range(8)]
    if OPT['rp']:
        fns.append(lambda i: rp_item(i))
        gaps.append(NG - 6)
    elif OPT['warm']:
        fns.append(lambda i: ([], f'buffer_load_dword v{VT + 40}, v{VPFO}, s[68:71], s65 offen ;#PF', ['s_add_u32 s65, s65, 2048'])
                   if (i & 3) == 1 else ([], 's_nop 0', ['s_nop 0']))
        gaps.append(NG - 6)
    sched_vmem(G, fns, gaps)
    X0 = OPT['x0']
    eg = []
    prev = -1
    for e in range(64):
        ready = 16 * (e >> 4) + 4 * ((e >> 2) & 3) + 3 + 5
        prev = G.place(max(ready, prev + 1), NG + 58, X0 + (e * NG) // 64, lambda i, e=e: [sm_exp((i + 1) & 1, e)], 8, kind='exp')
        eg.append(prev)
    prev = -10 ** 6
    for n in range(32):
        pl = lu[n - 8] - (NG if n < 8 else 0)
        lo = max(pl + 1, prev)
        if n < 16:
            lo = max(lo, GB + 1 - NG)
            prev = G.place(lo, fu[n] - 6, fu[n] - OPT['la'], lambda i, n=n: [k_read(i + 1, n)], 4, kind='rd', pack=True)
        else:
            for hh in range(2):
                prev = G.place(lo, fu[n] - 6, fu[n] - OPT['la'], lambda i, n=n, hh=hh: [v_read(i, n, hh)], 4, kind='rd', pack=True)
                lo = prev
    prev = -1
    for e in range(1, 64, 2):
        prev = G.place(max(eg[e] + 1, prev), NG + 61, eg[e] + 1, lambda i, e=e: [sm_cvt((i + 1) & 1, e)], 4, kind='cvt', pack=True, prio=2)
        if not OPT['msum']:
            for x in (e - 1, e):
                G.place(eg[e] + 1, prev, eg[e] + 1, lambda i, x=x: [sm_add((i + 1) & 1, x)], 4, kind='cvt', prio=1)
    return G, NG


def drop(items):
    d = []
    if OPT['nodma']:
        d += ['buffer_load', 's_add_u32']
    if OPT['nobar']:
        d += ['s_barrier']
    if OPT['nolds']:
        d += ['ds_read']
    if OPT['noexp']:
        d += ['v_exp']
    if OPT['nocvt']:
        d += ['v_cvt']
    return [x for x in items if x != 's_nop 0' and (isinstance(x, tuple) or not any(x.startswith(p) for p in d))]


def xgroup(k, op, regs, tmp):
    for sw in ('v_permlane32_swap_b32', 'v_permlane16_swap_b32'):
        for j, r in enumerate(regs):
            k(f'v_mov_b32 v{tmp + j}, v{r}')
        k('s_nop 1')
        for j, r in enumerate(regs):
            k(f'{sw} v{r}, v{tmp + j}')
        for j, r in enumerate(regs):
            k(f'{op} v{r}, v{r}, v{tmp + j}')


def flush(k, lin):
    k('\n'.join(lin.out))
    lin.out = []


def gen_k2():
    k = Kernel('att_kernel')
    span_begin(k)
    stamp2(k, 0)
    C = math.log2(math.e) / math.sqrt(128.0)
    k("""
    s_cmp_ge_u32 s2, 256
    s_cbranch_scc1 L_k2_end
    s_load_dwordx4 s[52:55], s[0:1], 8      ; K, V
    s_load_dwordx2 s[56:57], s[0:1], 24     ; wq
    s_load_dwordx2 s[58:59], s[0:1], 48     ; w1
    s_load_dwordx2 s[60:61], s[0:1], 80     ; ws
    s_load_dwordx2 s[62:63], s[0:1], 72     ; dbg
    s_load_dwordx2 s[96:97], s[0:1], 32     ; wo
    s_load_dwordx2 s[98:99], s[0:1], 56     ; w2
    s_load_dwordx2 s[66:67], s[0:1], 0      ; x
    v_lshrrev_b32 v1, 6, v0
    v_and_b32 v0, 63, v0
    s_and_b32 s32, s2, 7
    v_readfirstlane_b32 s3, v1
    s_lshl_b32 s32, s32, 2
    s_lshr_b32 s33, s2, 3
    s_and_b32 s34, s33, 3
    s_add_u32 s32, s32, s34                 ; head
    s_lshr_b32 s33, s33, 2                  ; q block
    s_and_b32 s34, s32, 1                   ; parity
    s_lshl_b32 s45, s3, 12                  ; w*4096
    s_mul_i32 s46, s3, 7168
    s_add_u32 s46, s46, 16384
    s_add_u32 s47, s46, 4096
    s_lshl_b32 s35, s33, 3
    s_lshl_b32 s50, s3, 1
    s_add_u32 s35, s35, s50
    s_add_u32 s50, s35, s34
    s_xor_b32 s51, s34, 1
    s_add_u32 s51, s35, s51
    s_lshl_b32 s36, s50, 16
    s_lshl_b32 s37, s51, 16
    s_mov_b32 s38, 0
    s_mov_b32 s39, 0
    s_mov_b32 s40, 0
    s_mov_b32 s41, 0
    s_mov_b32 s43, 0
    s_mov_b32 s44, 0
    s_mov_b32 s64, 0
    """)
    stamp(k, 0)
    T0, T1, T2, T3, T4, T5 = range(VT, VT + 6)
    VLD, VST, VEX, VPF, VCK, VZ2, VAT, VCF = range(VT + 8, VT + 16)
    MLN = OPT['mln']
    lin = Lin()

    def srds():
        srd_off(k, 4, 's60', 's61', XN_OFF, 0x400000)
        k('s_lshl_b32 s48, s32, 8')
        srd_off(k, 8, 's56', 's57', 's48', 0)
        k('s_mov_b32 s10, 0x800000\ns_sub_u32 s10, s10, s48')
        k('s_lshr_b32 s48, s32, 1\ns_mul_i32 s48, s48, 448')
        srd_off(k, 12, 's58', 's59', 's48', 0)
        k('s_sub_u32 s14, 0x700000, s48')
        k('s_lshl_b32 s48, s32, 19')
        srd_off(k, 16, 's52', 's53', 's48', 0x80000)
        srd_off(k, 20, 's54', 's55', 's48', 0x80000)

    def pf_rows(row0, rw):
        k(f'''s_lshr_b32 s48, s2, 3
        s_lshl_b32 s48, s48, 1
        s_and_b32 s49, s3, 1
        s_add_u32 s48, s48, s49
        s_mul_i32 s48, s48, {rw // 2}
        s_add_u32 s48, s48, {row0}
        s_mul_i32 s48, s48, s65''')
        for r in range(0, rw // 2, 8):
            if rw // 2 - r < 8:
                m = (1 << (8 * (rw // 2 - r))) - 1
                k(f's_mov_b32 exec_lo, {m & 0xffffffff:#x}\ns_mov_b32 exec_hi, {m >> 32:#x}')
            lin.add(f'buffer_load_dword v{VT + 40}, v{VPF}, s[68:71], s48 offen ;#PF')
            flush(k, lin)
            if rw // 2 - r < 8:
                k('s_mov_b64 exec, -1')
            elif r + 8 < rw // 2:
                k('s_lshl_b32 s49, s65, 3\ns_add_u32 s48, s48, s49')
    if MLN:
        ln_offsets(k, VLD, VST, VEX)
        k(f'''v_lshlrev_b32 v{VCK}, 7, v0
        v_mov_b32 v{VZ2}, 0
        s_mov_b32 s42, s2
        s_waitcnt lgkmcnt(0)''')
        stamp2(k, 1)
        srd(k, 72, 's66', 's67', 0x400000)
        k(f's_lshl_b32 s48, s33, 12\ns_add_u32 s48, s48, {F_OFF}')
        srd_off(k, 28, 's60', 's61', 's48', SYB)
        srd(k, 24, 's62', 's63', 256)
        ln_scalars(k, 42, 66, 67, 48)
        k(f'''s_and_b32 s48, s2, 31
        s_xor_b32 s49, s3, 3
        s_or_b32 s64, s48, s49
        s_cmp_lg_u32 s64, 0
        s_cbranch_scc1 L_nolead1
        s_mov_b64 exec, 0xfffff
        buffer_store_dword v{VZ2}, v{VCK}, s[28:31], 0 offen sc0 sc1
        s_mov_b64 exec, -1
        L_nolead1:''')
        lin.run(ln_loads(VLD, 72, 66))
        flush(k, lin)
        if OPT['pf1'] or OPT['pf2'] or OPT['pf3'] or OPT['pf4']:
            k(f'''
            s_and_b32 s48, s2, 7
            s_cmp_lt_u32 s3, 2
            s_cselect_b32 s68, s56, s58
            s_cselect_b32 s69, s57, s59
            s_mov_b32 s70, 896
            s_cselect_b32 s70, 1024, s70
            s_cselect_b32 s49, 8, 7
            s_mul_i32 s48, s48, s70
            s_add_u32 s68, s68, s48
            s_addc_u32 s69, s69, 0
            s_lshl_b32 s65, s70, 3
            s_lshl_b32 s70, s70, 13
            s_sub_u32 s70, s70, s48
            s_mov_b32 s71, 0x20000
            v_lshrrev_b32 v{T2}, 3, v0
            v_mul_lo_u32 v{VPF}, v{T2}, s65
            v_and_b32 v{T5}, 7, v0
            v_lshl_add_u32 v{VPF}, v{T5}, 7, v{VPF}
            v_mov_b32 v{T2}, 0x7fffffff
            v_cmp_le_u32 vcc, s49, v{T5}
            s_nop 1
            v_cndmask_b32 v{VPF}, v{VPF}, v{T2}, vcc
            ''')
        if OPT['pf1']:
            pf_rows(0, OPT['pf1'])
        srds()
        k('s_mov_b32 s52, s72\ns_mov_b32 s53, s73\ns_load_dwordx2 s[54:55], s[0:1], 64')
    k(f"""
    v_lshlrev_b32 v{VLN}, 4, v0
    v_lshrrev_b32 v{T0}, 4, v0              ; l>>4
    v_and_b32 v{T1}, 15, v0                 ; l&15
    s_lshl_b32 s48, s3, 4
    v_add_u32 v{T3}, s48, v{T0}             ; row = 16w + (l>>4)
    """)
    for j in range(4):
        k(f"""v_or_b32 v{T2}, {(j >> 1) << 2}, v{T0}
        v_lshlrev_b32 v{T2}, 1, v{T2}
        v_xor_b32 v{T2}, v{T2}, v{T1}
        v_lshlrev_b32 v{T2}, 4, v{T2}
        v_lshl_add_u32 v{PWQ + j}, v{T3}, 13, v{T2}""")
        if j:
            k(f'v_add_u32 v{PWQ + j}, {j * 31744}, v{PWQ + j}')
    k('s_mul_i32 s48, s3, 114688')
    for j in range(7):
        k(f"""v_add_u32 v{T2}, {64 * j}, v0
        v_mul_u32_u24 v{T4}, 2341, v{T2}
        v_lshrrev_b32 v{T4}, 16, v{T4}          ; row = x/28
        v_mul_u32_u24 v{T5}, 28, v{T4}
        v_sub_u32 v{T2}, v{T2}, v{T5}           ; pos
        v_lshrrev_b32 v{T5}, 2, v{T4}
        v_and_b32 v{T5}, 2, v{T5}
        v_xor_b32 v{T2}, v{T2}, v{T5}
        v_mul_u32_u24 v{PW1 + j}, 7168, v{T4}
        v_lshl_add_u32 v{PW1 + j}, v{T2}, 4, v{PW1 + j}
        v_add_u32 v{PW1 + j}, s48, v{PW1 + j}""")
        if j & 3:
            k(f'v_subrev_u32 v{PW1 + j}, {(j & 3) * 1024}, v{PW1 + j}')
    for j in range(4):
        k(f"""v_add_u32 v{T2}, {4 * j}, v{T0}
        v_xor_b32 v{T2}, v{T2}, v{T1}
        v_lshlrev_b32 v{T2}, 4, v{T2}
        v_lshl_add_u32 v{VKD + j}, v{T3}, 8, v{T2}""")
    if MLN:
        npf = sum(1 for t, _ in lin.vm if t == 'PF')
        k(f'''s_cmp_lg_u32 s64, 0
        s_cbranch_scc1 L_nolead2
        s_waitcnt vmcnt({4 + npf})
        v_mov_b32 v{VAT}, 1
        s_lshl_b32 s48, s33, 2
        s_mov_b64 exec, 1
        buffer_store_dword v{VAT}, v{VZ2}, s[24:27], s48 offen sc0 sc1
        s_mov_b64 exec, -1
        L_nolead2:
        s_mov_b32 s64, 0''')
    else:
        k('s_waitcnt lgkmcnt(0)')
        srds()
        lin.run(flat(p1_dmas('G0', '+0')))
        lin.run(flat(xn_loads(0)))
        lin.run(flat(p1_dmas('G1', '+1')))
        lin.run(flat(kdma(0, 'K0')))
        flush(k, lin)
    if OPT['p1pf']:
        k(f'''
        s_and_b32 s48, s2, 7
        s_cmp_lt_u32 s3, 2
        s_cselect_b32 s68, s56, s58
        s_cselect_b32 s69, s57, s59
        s_mov_b32 s70, 896
        s_cselect_b32 s70, 1024, s70
        s_mul_i32 s48, s48, s70
        s_add_u32 s68, s68, s48
        s_addc_u32 s69, s69, 0
        s_lshl_b32 s65, s70, 3
        s_lshl_b32 s70, s70, 13
        s_sub_u32 s70, s70, s48
        s_mov_b32 s71, 0x20000
        s_lshr_b32 s48, s2, 3
        s_lshl_b32 s48, s48, 1
        s_and_b32 s49, s3, 1
        s_add_u32 s48, s48, s49
        s_mul_i32 s48, s48, 7
        s_add_u32 s48, s48, 128
        v_lshrrev_b32 v{T2}, 3, v0
        v_add_u32 v{T4}, s48, v{T2}
        v_mul_lo_u32 v{T4}, v{T4}, s65
        v_and_b32 v{T5}, 7, v0
        v_lshl_add_u32 v{T4}, v{T5}, 7, v{T4}
        v_cmp_lt_u32 vcc, 6, v{T2}
        v_mov_b32 v{T2}, 0x7fffffff
        s_mul_i32 s65, s65, 448
        v_cndmask_b32 v{T4}, v{T4}, v{T2}, vcc
        ''')
        lin.add(f'buffer_load_dword v{VT + 40}, v{T4}, s[68:71], 0 offen ;#PF')
        if OPT['p1pf'] == 1:
            lin.add(f'buffer_load_dword v{VT + 40}, v{T4}, s[68:71], s65 offen ;#PF')
        flush(k, lin)
    if not MLN:
        srd_off(k, 24, 's60', 's61', H_OFF, 0xE00000)
        srd_off(k, 28, 's60', 's61', O_OFF, 0x1000000)
    for j in range(2):
        k(f"""v_add_u32 v{T2}, {4 * j}, v{T0}
        v_lshlrev_b32 v{T2}, 1, v{T2}
        v_xor_b32 v{T2}, v{T2}, v{T1}
        v_lshlrev_b32 v{T2}, 4, v{T2}
        v_lshl_add_u32 v{VVD + j}, v{T3}, 8, v{T2}""")
    for s in range(4):
        k(f"""v_add_u32 v{T2}, {4 * s}, v{T0}
        v_xor_b32 v{T2}, v{T2}, v{T1}
        v_lshlrev_b32 v{T2}, 4, v{T2}
        v_lshl_add_u32 v{VKA + s}, v{T1}, 8, v{T2}
        v_add_u32 v{VKA + s}, {ABASE + 4 * 16384}, v{VKA + s}""")
    lane_grc(k, T0, T1, T2)
    k(f"""
    v_lshlrev_b32 v{T2}, 3, v{T2}           ; c*8
    v_lshl_add_u32 v{T3}, v{T0}, 2, v{T1}   ; V row = 4g + r
    v_and_b32 v{T4}, 7, v{T3}
    v_lshl_add_u32 v{T3}, v{T3}, 8, v{T2}
    v_add_u32 v{T3}, {ABASE}, v{T3}
    """)
    for dt in range(8):
        k(f"""v_xor_b32 v{T5}, {dt}, v{T4}
        v_lshl_add_u32 v{VVA + dt}, v{T5}, 5, v{T3}""")
    k(f"""
    v_lshl_add_u32 v{T3}, v{T0}, 3, v{T1}   ; w row = 8g + r
    v_and_b32 v{T0}, 1, v{T0}               ; g&1
    v_lshl_or_b32 v{T4}, v{T0}, 2, v{T1}    ; f
    v_mul_u32_u24 v{T1}, 448, v{T3}
    v_add_u32 v{T1}, v{T1}, v{T2}
    v_add_u32 v{T1}, 16384, v{T1}
    v_lshl_add_u32 v{T3}, v{T3}, 8, v{T2}
    """)
    for dt in range(8):
        k(f"""v_xor_b32 v{T5}, {dt}, v{T4}
        v_lshl_add_u32 v{PQ0 + dt}, v{T5}, 5, v{T3}
        v_mov_b32 v{PCQ + dt}, v{PQ0 + dt}""")
    for p in range(2):
        k(f"""v_xor_b32 v{T5}, {p}, v{T0}
        v_lshl_add_u32 v{P10 + p}, v{T5}, 5, v{T1}
        v_mov_b32 v{PC1 + p}, v{P10 + p}""")
    def rp_setup():
        if OPT['rp']:
            k(f'''
            v_lshrrev_b32 v{T0}, 4, v0
            v_and_b32 v{T1}, 15, v0
            s_and_b32 s49, s3, 1
            s_lshl_b32 s48, s2, 1
            s_add_u32 s48, s48, s49
            s_and_b32 s49, s48, 7            ; nb
            s_lshr_b32 s48, s48, 3
            s_cmp_lt_u32 s3, 2
            s_cselect_b32 s35, 16, 14        ; pieces
            s_cselect_b32 s68, s96, s98
            s_cselect_b32 s69, s97, s99
            s_mov_b32 s34, {WP_OFF}
            s_cselect_b32 s34, s34, {WP_OFF + 0x800000}
            s_mul_i32 s48, s48, s35
            s_lshl_b32 s65, s48, 13
            s_lshl_b32 s70, s49, 8
            s_add_u32 s65, s65, s70
            s_add_u32 s68, s68, s65
            s_addc_u32 s69, s69, 0
            s_lshl_b32 s70, s35, 13
            s_sub_u32 s70, s70, 1792
            s_mov_b32 s71, 0x20000
            s_mul_i32 s49, s49, s35
            s_lshl_b32 s49, s49, 6
            s_add_u32 s48, s48, s49
            s_lshl_b32 s48, s48, 10
            s_add_u32 s34, s34, s48
            s_add_u32 s96, s60, s34
            s_addc_u32 s97, s61, 0
            s_lshl_b32 s98, s35, 10
            s_mov_b32 s99, 0x20000
            s_mov_b32 s65, 0
            s_mov_b32 s34, 0
            ''')
            for j in range(2):
                k(f'''v_add_u32 v{T2}, {4 * j}, v{T0}
                v_lshlrev_b32 v{T2}, 1, v{T2}
                v_xor_b32 v{T2}, v{T2}, v{T1}
                v_lshlrev_b32 v{T2}, 4, v{T2}
                v_lshl_add_u32 v{RPV + j}, v{T0}, 11, v{T2}''')
        elif OPT['warm']:
            k(f'''
            v_lshlrev_b32 v{VPFO}, 6, v0
            v_mov_b32 v{T5}, 0x7fffffff
            v_cmp_lt_u32 vcc, 31, v0
            s_and_b32 s49, s3, 1
            s_lshl_b32 s48, s2, 1
            v_cndmask_b32 v{VPFO}, v{VPFO}, v{T5}, vcc
            s_add_u32 s48, s48, s49          ; 2*wg + (w&1)
            s_cmp_lt_u32 s3, 2
            s_mov_b32 s70, 14336
            s_cselect_b32 s70, 16384, s70
            s_cselect_b32 s68, s96, s98
            s_cselect_b32 s69, s97, s99
            s_mul_i32 s48, s48, s70
            s_add_u32 s68, s68, s48
            s_addc_u32 s69, s69, 0
            s_mov_b32 s71, 0x20000
            s_mov_b32 s65, 0
            ''')

    def zero_h(lo=0):
        for p in range(7):
            for tt in range(2):
                for i in range(8):
                    if HG(p, tt) >= lo:
                        k(f'v_mov_b32 v{HG(p, tt) + i}, 0')
    if MLN:
        k(f'''s_and_b32 s48, s2, 3
        s_lshl_b32 s48, s48, 1
        s_bfe_u32 s49, s2, 0x10004
        s_add_u32 s48, s48, s49
        s_lshl_b32 s49, s48, 2
        v_mov_b32 v{VCF}, s49
        s_lshl_b32 s49, s33, 2
        v_and_b32 v{T0}, 1, v0
        v_mov_b32 v{T1}, s49
        v_cmp_eq_u32 vcc, 0, v{T0}
        s_lshl_b32 s48, s48, 12
        s_mov_b32 s49, {CH_O}
        s_bitcmp1_b32 s2, 2
        s_cselect_b32 s49, s49, {CO_O}
        v_cndmask_b32 v{VCF}, v{VCF}, v{T1}, vcc
        s_add_u32 s48, s48, s49
        v_mov_b32 v{VPO}, s48
        v_mov_b32 v{VONE}, 1
        v_mov_b32 v{VZR}, 0
        s_mov_b32 s59, 0
        s_mov_b32 s95, 99
        s_mov_b32 s94, 0
        ''')
    if OPT['mk3']:
        k(f'''v_lshrrev_b32 v{T0}, 4, v0
        v_and_b32 v{T1}, 15, v0
        s_lshl_b32 s48, s3, 5
        v_add_u32 v{T3}, s48, v{T0}             ; row = 32w + (l>>4)''')
        for j in range(2):
            k(f"""v_add_u32 v{T2}, {4 * j}, v{T0}
            v_lshlrev_b32 v{T2}, 1, v{T2}
            v_xor_b32 v{T2}, v{T2}, v{T1}
            v_lshlrev_b32 v{T2}, 4, v{T2}
            v_lshl_add_u32 v{VD3 + j}, v{T3}, 11, v{T2}""")
        for j in range(7, 0, -1):
            k(f'v_add_u32 v{VD3 + j}, {j * 8192 - (j & 3) * 1024}, v{VD3 + (j & 1)}')
    if not MLN:
        rp_setup()
    for i in range(4):
        k(f'v_mov_b32 v{ONES + i}, 0x3f803f80')
    for i in range(128):
        k(f'v_accvgpr_write_b32 a{i}, 0')
    zero_h(144 if MLN else 0)
    GL = p1_sched('loop')
    print('p1 overflow', GL.over)
    if MLN:
        if OPT['g0e'] == 1:
            lin.run(flat(p1_dmas('G0', '+0')))
            flush(k, lin)
        stamp2(k, 2)
        lin.add(('vmwait', ['LX']))
        flush(k, lin)
        stamp(k, 6)
        stamp2(k, 3)

        def kl(t):
            lin.add(t)
            flush(k, lin)
        ln_compute(kl, VEX, [flat([x]) for x in p1_dmas('G0', '+0')] if OPT['g0e'] == 2 else [])
        stamp2(k, 4)
        k(f'''s_cmp_lg_u32 s3, 0
        s_cbranch_scc1 L_nock
        buffer_load_dword v{VCK}, v{VCF}, s[24:27], 0 offen sc0 sc1
        L_nock:''')
        lin.run(ln_stores(VST, 67))
        flush(k, lin)
        if OPT['pf2']:
            pf_rows(OPT['pfr'], OPT['pf2'])
        if OPT['g0e'] == 3:
            lin.run(flat(p1_dmas('G0', '+0')))
            flush(k, lin)
        for i in list(range(80, 144)) + list(range(64, 80)):
            k(f'v_mov_b32 v{i}, 0')
        stamp2(k, 5)
        lin.add(('vmwait', ['LS']))
        flush(k, lin)
        stamp2(k, 6)
        lin.add('s_barrier')
        flush(k, lin)
        stamp(k, 7)
        stamp2(k, 7)
        k(f'''s_cmp_lg_u32 s3, 0
        s_cbranch_scc1 L_noatom
        s_mov_b32 s35, 256
        v_mov_b32 v{VAT}, 1
        L_ckl:
        v_cmp_ne_u32 vcc, 0, v{VCK}
        s_nop 1
        s_cmp_eq_u64 vcc, exec
        s_cbranch_scc1 L_ckok
        buffer_load_dword v{VCK}, v{VCF}, s[24:27], 0 offen sc0 sc1
        s_sub_u32 s35, s35, 1
        s_waitcnt vmcnt(0)
        s_cmp_lg_u32 s35, 0
        s_cbranch_scc1 L_ckl
        s_branch L_noatom
        L_ckok:''')
        if OPT['lnto']:
            k(f's_and_b32 s48, s2, 31\ns_cmp_eq_u32 s48, 5\ns_cselect_b32 s48, 0, 1\nv_mov_b32 v{VAT}, s48')
        k(f'''s_mov_b64 exec, 1
        buffer_atomic_add v{VAT}, v{VZ2}, s[28:31], 0 offen offset:{CX_O} sc0 sc1
        s_mov_b64 exec, -1
        s_mov_b32 s59, 1
        s_mov_b32 s95, 7
        L_noatom:''')
        stamp2(k, 8)
        n0 = len(lin.vm)
        if OPT['g0e'] == 0:
            lin.run(flat(p1_dmas('G0', '+0')))
        if OPT['g1e']:
            lin.run(flat(p1_dmas('G1', '+1')))
        flush(k, lin)
        if OPT['pf3']:
            pf_rows(OPT['pfr'] + 32 * OPT['pf2'], OPT['pf3'])
        k(f'''s_cmp_lg_u32 s3, 0
        s_cbranch_scc1 L_pollend
        s_cmp_eq_u32 s35, 0
        s_cbranch_scc1 L_pollto
        s_waitcnt vmcnt({len(lin.vm) - n0})''')
        stamp2(k, 9)
        if OPT['pf4']:
            r0 = OPT['pfr'] + 32 * (OPT['pf2'] + OPT['pf3'])
            k(f'''v_readfirstlane_b32 s48, v{VAT}
            v_lshrrev_b32 v{T2}, 3, v0
            s_cmp_ge_u32 s48, {OPT['thr']}
            s_cbranch_scc1 L_nopf4
            s_and_b32 s48, s2, 7
            s_mul_i32 s48, s48, 896
            s_add_u32 s72, s58, s48
            s_addc_u32 s73, s59, 0
            s_sub_u32 s74, 0x700000, s48
            v_mul_u32_u24 v{T4}, 7168, v{T2}
            v_and_b32 v{T5}, 7, v0
            v_lshl_add_u32 v{T4}, v{T5}, 7, v{T4}
            v_mov_b32 v{T2}, 0x7fffffff
            v_cmp_le_u32 vcc, 7, v{T5}
            s_lshr_b32 s48, s2, 3
            s_mul_i32 s48, s48, {OPT['pf4']}
            v_cndmask_b32 v{T4}, v{T4}, v{T2}, vcc
            s_add_u32 s48, s48, {r0}
            s_mul_i32 s49, s48, 7168
            s_lshl_b32 s48, s48, 13''')
            for r in range(0, OPT['pf4'], 8):
                if OPT['pf4'] - r < 8:
                    m = (1 << (8 * (OPT['pf4'] - r))) - 1
                    k(f's_mov_b32 exec_lo, {m & 0xffffffff:#x}\ns_mov_b32 exec_hi, {m >> 32:#x}')
                k(f'''buffer_load_dword v{VT + 40}, v{VPF}, s[68:71], s48 offen ;#PF
                buffer_load_dword v{VT + 40}, v{T4}, s[72:75], s49 offen ;#PF
                s_add_u32 s48, s48, 65536
                s_add_u32 s49, s49, 57344''')
            k('s_mov_b64 exec, -1\nL_nopf4:')
        k(f'''v_add_u32 v{VAT}, 1, v{VAT}
        L_poll:
        s_nop 0
        v_readfirstlane_b32 s48, v{VAT}
        s_nop 1
        s_cmp_ge_u32 s48, 32
        s_cbranch_scc1 L_polled
        buffer_load_dword v{VAT}, v{VZ2}, s[28:31], 0 offen offset:{CX_O} sc0 sc1
        s_sub_u32 s35, s35, 1
        s_waitcnt vmcnt(0)
        s_cmp_lg_u32 s35, 0
        s_cbranch_scc1 L_poll
        L_pollto:
        v_mov_b32 v{VAT}, 0
        L_polled:
        s_mov_b64 exec, 1
        ds_write_b32 v{VEX}, v{VAT} offset:512
        s_mov_b64 exec, -1
        s_waitcnt lgkmcnt(0)''')
        k('L_pollend:')
        if OPT['st2'] == 1:
            k('s_mov_b32 s91, s35')
        stamp2(k, 10)
        lin.add(('vmwait', ['G0']))
        flush(k, lin)
        stamp2(k, 11)
        lin.add('s_barrier')
        flush(k, lin)
        stamp2(k, 12)
        k(f'''ds_read_b32 v{VAT}, v{VZ2} offset:{0}
        '''.replace(f'v{VZ2} offset:0', f'v{VEX} offset:512'))
        srd_off(k, 24, 's60', 's61', H_OFF, 0xE00000)
        srd_off(k, 28, 's60', 's61', O_OFF, 0x1000000)
        k(f'''s_waitcnt lgkmcnt(0)
        v_readfirstlane_b32 s48, v{VAT}
        s_nop 1
        s_cmp_lt_u32 s48, 32
        s_cbranch_scc1 L_lnfb
        L_xn_go:''')
        lin.run(flat(xn_loads(0)))
        if not OPT['g1e']:
            lin.run(flat(p1_dmas('G1', '+1')))
        flush(k, lin)
        if OPT['lpf']:
            n = OPT['lpf'] // 2
            k(f'''s_lshr_b32 s48, s2, 3
            s_lshl_b32 s48, s48, 1
            s_and_b32 s49, s3, 1
            s_add_u32 s48, s48, s49
            s_mul_i32 s48, s48, {n}
            s_add_u32 s48, s48, {OPT['pfr'] + 32 * (OPT['pf2'] + OPT['pf3'])}
            s_mul_i32 s56, s48, s65
            s_mul_i32 s57, s65, {64 * n}
            v_mov_b32 v{T2}, 0x7fffffff
            v_cmp_le_u32 vcc, {8 * n}, v0
            s_nop 1
            v_cndmask_b32 v{VPF}, v{VPF}, v{T2}, vcc''')
            if OPT['lpg'] > 60:
                lin.run([f'buffer_load_dword v{VT + 40}, v{VPF}, s[68:71], s56 offen ;#PF', 's_add_u32 s56, s56, s57'])
        else:
            rp_setup()
        lin.run(GL.only(0, lambda kk, kind, g: kk < 0 and kind in ('rd', 'need')))
        lin.add(('vmwait', ['X']))
    else:
        lin.add(('vmwait', ['G0', 'X']))
        lin.add('s_barrier')
        lin.run(GL.only(0, lambda kk, kind, g: kk < 0 and kind in ('rd', 'need')))
    flush(k, lin)
    k(f's_mov_b32 s49, {GSLOT}')
    k('s_mov_b32 s42, 7')
    stamp(k, 1)
    stamp2(k, 13)
    stamp2(k, 1, 2)
    fix_until(k, 1)
    st = steady(drop(GL.emit(p1_mfmas(0), 0)) + drop(GL.emit(p1_mfmas(1), 1)))
    k('L_p1:')
    k('\n'.join(st.out))
    k('s_sub_u32 s42, s42, 1\ns_cmp_lg_u32 s42, 0\ns_cbranch_scc1 L_p1')
    lin = Lin(st.lg, st.vm)
    lin.run(p1_sched('t14').emit(p1_mfmas(0), 14))
    lin.run(p1_sched('t15').emit(p1_mfmas(1), 15, keep=lambda kk, kind, g: kk >= 0 and kind != 'bar'))
    flush(k, lin)
    stamp(k, 2)
    stamp2(k, 14)
    stamp2(k, 2, 2)
    k(f's_mov_b32 s66, {f32(C)}\ns_mov_b32 s67, {f32(C)}')
    if OPT['lpf']:
        k(f'v_lshrrev_b32 v0, 4, v{VLN}')
        rp_setup()
    if OPT['mk3']:
        srd_off(k, 4, 's60', 's61', F_OFF, 8 * SYB)
    else:
        k('s_nop 3')
    for n in range(8):
        lin.add(k_read(0, n))
    n = 0
    for tt in range(4):
        for s in range(4):
            tb = VT + (n & 1) * 8
            n += 1
            for e in range(2):
                for i in range(4):
                    lin.add(f'v_accvgpr_read_b32 v{tb + 4 * e + i}, a{OACC(2 * s + e, tt) + i}')
            for i in range(0, 8, 2):
                lin.add(f'v_pk_mul_f32 {vr(tb + i, 2)}, {vr(tb + i, 2)}, s[66:67]')
            for i in range(4):
                lin.add(f'v_cvt_pk_bf16_f32 v{tb + i}, v{tb + 2 * i}, v{tb + 2 * i + 1}')
            lin.add('s_nop 0')
            lin.add(f'v_permlane32_swap_b32 v{tb}, v{tb + 2}')
            lin.add(f'v_permlane32_swap_b32 v{tb + 1}, v{tb + 3}')
            lin.add('s_nop 0')
            lin.add(f'v_permlane16_swap_b32 v{tb}, v{tb + 2}')
            lin.add(f'v_permlane16_swap_b32 v{tb + 1}, v{tb + 3}')
            for i in range(4):
                lin.add(f'v_accvgpr_write_b32 a{QF(tt, s) + i}, v{tb + i}')
    flush(k, lin)
    if OPT['dumpq']:
        k('s_lshl_b32 s48, s2, 16\ns_lshl_b32 s49, s3, 14\ns_add_u32 s48, s48, s49\ns_add_u32 s48, s48, 0x6000000')
        srd_off(k, 72, 's60', 's61', 's48', 16384)
        for n in range(16):
            k(f's_mov_b32 s48, {n * 1024}')
            lin.add(f'buffer_store_dwordx4 {ar(128 + 4 * n, 4)}, v{VLN}, s[72:75], s48 offen')
            flush(k, lin)
    k("""s_mul_i32 s48, s50, 229376
    s_lshr_b32 s49, s32, 1
    s_mul_i32 s49, s49, 14336
    s_add_u32 s48, s48, s49""")
    hep = []
    for p in range(7):
        for tt in range(2):
            b = HG(p, tt)
            for i in range(4):
                hep.append(f'v_cvt_pk_bf16_f32 v{b + i}, v{b + 2 * i}, v{b + 2 * i + 1}')
            for i in range(4):
                hep.append(f'v_pk_max_i16 v{b + i}, v{b + i}, 0')
            ks = p * 2 + tt
            if ks % 4 == 0 and ks:
                hep.append('s_add_u32 s48, s48, 4096')
            hep.append(f'buffer_store_dwordx4 {vr(b, 4)}, v{VLN}, s[24:27], s48 offen offset:{(ks & 3) * 1024}{WT()} ;#H')

    def qk0(extra):
        mf = qk_mfmas(0, c0='0')
        fill = {}
        add = lambda g, it: fill.setdefault(g, []).extend(it)
        per = (len(extra) + 63) // 64
        for n, it in enumerate(extra):
            add(n // per, [it])
        for n in range(8, 16):
            add(16 * ((n - 8) >> 2) + 13 + (n & 3), [k_read(0, n)])
        return weave(mf, fill)
    zero_o = [f'v_accvgpr_write_b32 a{i}, 0' for i in list(range(128)) + list(range(LACC(0), LACC(0) + 16))]
    mix = []
    for i in range(max(len(hep), len(zero_o))):
        if i < len(hep):
            mix.append(hep[i])
        if i < len(zero_o):
            mix.append(zero_o[i])
    lin.run(qk0(mix))
    flush(k, lin)
    GA, NG = att_sched()
    print('att overflow', GA.over, 'NG', NG)
    k('L_att_go:')
    lin.add(('vmwait', ['K1', 'V0']))
    lin.add('s_barrier')
    lin.run(GA.only(0, lambda kk, kind, g: kk < 0 and kind == 'rd'))
    flush(k, lin)
    k('s_nop 4')
    for qt in range(4):
        m = VT + qt
        regs = [S_(0, kvt, qt) + i for kvt in range(4) for i in range(4)]
        k(f'v_max3_f32 v{m}, v{regs[0]}, v{regs[1]}, v{regs[2]}')
        for i in range(3, 15, 2):
            k(f'v_max3_f32 v{m}, v{m}, v{regs[i]}, v{regs[i + 1]}')
        k(f'v_max_f32 v{m}, v{m}, v{regs[15]}')
    xgroup(k, 'v_max_f32', [VT + q for q in range(4)], VT + 4)
    k('s_cmp_eq_u32 s64, 0\ns_cbranch_scc1 L_use_m0')
    for qt in range(4):
        k(f'v_mov_b32 v{VT + qt}, v{VMT + qt}')
    k('L_use_m0:')
    for qt in range(4):
        for i in range(4):
            k(f'v_sub_f32 v{NEGM(qt) + i}, 0, v{VT + qt}')
        k(f'v_mov_b32 v{VL + qt}, 0')
    for kvt in range(4):
        for qt in range(4):
            for i in range(0, 4, 2):
                r = S_(0, kvt, qt) + i
                k(f'v_pk_add_f32 {vr(r, 2)}, {vr(r, 2)}, {vr(NEGM(qt), 2)}')
    pre = GA.only(-1, lambda kk, kind, g: kk == 0 and kind in ('exp', 'cvt'))
    for a, b in zip(pre, pre[1:] + ['']):
        k(a)
        if a.startswith('v_exp') and not b.startswith('v_exp') and a.split()[1].strip(',') in b:
            k('s_nop 0')
    lin.run(GA.only(0, lambda kk, kind, g: kk < 0 and kind == 'need'))
    flush(k, lin)
    k('s_mov_b32 s42, 8')
    stamp(k, 3)
    stamp2(k, 3, 2)
    fix_until(k, 3)
    it = lambda i: drop(GA.emit(qk_mfmas((i + 1) & 1) + pv_mfmas(i & 1), i))
    body = []
    for i in range(4):
        if i == 3:
            body += ['s_sub_u32 s42, s42, 1', 's_cmp_eq_u32 s42, 0', 's_cbranch_scc1 L_att_tail']
            if OPT['mk3']:
                body += ['s_cmp_eq_u32 s42, s95', 's_cbranch_scc1 L_chpost', 'L_chback:']
        body += it(i)
    st = steady(body)
    k('L_att:')
    k('\n'.join(st.out))
    k('s_branch L_att')
    k('L_att_tail:')
    l3 = Lin(st.lg, st.vm)
    for i in range(3):
        l3.run(it(i))
    lin = Lin(l3.lg, l3.vm)
    tail = GA.emit([None] * 64 + pv_mfmas(1), 3,
                   keep=lambda kk, kind, g: (kk == 1 and kind in ('exp', 'cvt')) or
                   (kk == 0 and kind in ('rd', 'need') and g >= 40))
    tail = [x for x in tail if isinstance(x, tuple) or not x.startswith('ds_read_b128')]
    t2 = []
    for a, b in zip(tail, tail[1:] + ['']):
        t2.append(a)
        if isinstance(a, str) and isinstance(b, str) and a.startswith('v_exp') and b.startswith('v_') and not b.startswith('v_exp'):
            t2.append('s_nop 0')
        if isinstance(a, str) and a.startswith('v_cvt') and (isinstance(b, tuple) or b.startswith('v_mfma')):
            t2.append('s_nop 1')
    if OPT['rp']:
        t2.insert(len(t2) // 2, rp_item(3)[1])
    if OPT['mk3']:
        ex = [[x] for x in ['s_mov_b32 s34, s2'] + k3_scalars()] + [flat([x]) for x in k3_loads(0, 'w')]
        mi = [n for n, x in enumerate(t2) if isinstance(x, str) and x.startswith('v_mfma')]
        nsc = len(ex) - 8
        pos = [mi[(n * 30) // nsc] for n in range(nsc)] + [mi[31 + 5 * j] for j in range(8)]
        for p, e in sorted(zip(pos, range(len(ex))), reverse=True):
            t2[p + 1:p + 1] = ex[e]
    lin.run(t2)
    flush(k, lin)
    stamp(k, 4)
    stamp2(k, 4, 2)
    k('s_nop 7')
    if OPT['msum']:
        for qt in range(4):
            k(f'v_accvgpr_read_b32 v{VL + qt}, a{LACC(qt)}')
    else:
        xgroup(k, 'v_add_f32', [VL + q for q in range(4)], VT + 4)
    k(f"""
    v_add_f32 v{VT}, v{VL}, v{VL + 1}
    v_add_f32 v{VT + 1}, v{VL + 2}, v{VL + 3}
    v_add_f32 v{VT + 1}, v{VT}, v{VT + 1}
    s_mov_b32 s48, 0x4e800000
    v_cmp_nle_f32 vcc, v{VT + 1}, s48
    s_nop 1
    s_cmp_lg_u64 vcc, 0
    s_cselect_b32 s48, 1, 0
    s_andn2_b32 s48, s48, s64
    v_mov_b32 v{VT + 2}, s48
    s_lshl_b32 s49, s3, 2
    v_mov_b32 v{VT + 3}, s49
    ds_write_b32 v{VT + 3}, v{VT + 2}
    v_rcp_f32 v{VL}, v{VL}
    v_rcp_f32 v{VL + 1}, v{VL + 1}
    v_rcp_f32 v{VL + 2}, v{VL + 2}
    v_rcp_f32 v{VL + 3}, v{VL + 3}
    s_waitcnt {'vmcnt(8) ' if OPT['mk3'] else ''}lgkmcnt(0)
    s_barrier
    v_mov_b32 v{VT + 3}, 0
    ds_read_b128 {vr(VT + 4, 4)}, v{VT + 3}
    s_waitcnt lgkmcnt(0)
    v_or_b32 v{VT + 4}, v{VT + 4}, v{VT + 5}
    v_or_b32 v{VT + 6}, v{VT + 6}, v{VT + 7}
    v_or_b32 v{VT + 4}, v{VT + 4}, v{VT + 6}
    s_nop 0
    v_readfirstlane_b32 s48, v{VT + 4}
    s_nop 1
    s_cmp_lg_u32 s48, 0
    s_cbranch_scc1 L_fallback
    s_lshl_b32 s50, s50, 18
    s_lshl_b32 s51, s51, 18
    s_lshl_b32 s48, s32, 13
    s_add_u32 s50, s50, s48
    s_add_u32 s51, s51, s48
    s_add_u32 s66, s50, 4096
    s_add_u32 s67, s51, 4096
    """)
    if OPT['mk3']:
        k(f'''s_cmp_lg_u32 s3, 0
        s_cbranch_scc1 L_nopo
        buffer_load_dword v{VT}, v{VPO}, s[4:7], 0 offen sc0 sc1
        L_nopo:''')
    n = 0
    for qt in range(4):
        k(f'v_mov_b32 v{VT + 32}, v{VL + qt}\nv_mov_b32 v{VT + 33}, v{VL + qt}')
        for s in range(4):
            tb = (n & 3) * 8
            n += 1
            for e in range(2):
                for i in range(4):
                    k(f'v_accvgpr_read_b32 v{tb + 4 * e + i}, a{OACC(2 * s + e, qt) + i}')
            for i in range(0, 8, 2):
                k(f'v_pk_mul_f32 {vr(tb + i, 2)}, {vr(tb + i, 2)}, {vr(VT + 32, 2)}')
            for i in range(4):
                k(f'v_cvt_pk_bf16_f32 v{tb + i}, v{tb + 2 * i}, v{tb + 2 * i + 1}')
            k(f'buffer_store_dwordx4 {vr(tb, 4)}, v{VLN}, s[28:31], s{50 + (qt >> 1) + 16 * (s >> 1)} offen '
              f'offset:{(s & 1) * 2048 + (qt & 1) * 1024}{WT()}')
    if OPT['stamp']:
        stamp(k, 5)
        stamp_out(k, 'L_k2_end', 's62', 's63')
    if OPT['mk3']:
        k3_merged(k)
    else:
        stamp2_out(k, 0)
        span_end(k, 40, 1)
    k('L_k2_end:\ns_endpgm')
    if OPT['mk3']:
        k(f'''L_chpost:
        s_lshl_b32 s48, s33, 12
        s_mov_b32 s95, 99
        s_mov_b64 exec, 1
        buffer_atomic_add v{VONE}, v{VZR}, s[4:7], s48 offen offset:{CH_O} sc1
        s_mov_b64 exec, -1
        s_branch L_chback''')
    k(f"""L_fallback:
    s_mov_b32 s64, 1
    s_mov_b32 s43, 0
    s_mov_b32 s42, 32
    s_waitcnt vmcnt(0)""")
    for qt in range(4):
        k(f'v_mov_b32 v{VMT + qt}, 0xff800000')
    k('L_fb_loop:\ns_barrier')
    lin = Lin()
    lin.run(flat(kdma(0, 'K0')))
    lin.run(['s_waitcnt vmcnt(0)', 's_barrier'])
    for n in range(8):
        lin.add(k_read(0, n))
    lin.run(qk0([]))
    lin.add('s_nop 15')
    for qt in range(4):
        for kvt in range(4):
            for i in range(0, 4, 2):
                r = S_(0, kvt, qt) + i
                lin.add(f'v_max3_f32 v{VMT + qt}, v{VMT + qt}, v{r}, v{r + 1}')
    flush(k, lin)
    k('s_sub_u32 s42, s42, 1\ns_cmp_lg_u32 s42, 0\ns_cbranch_scc1 L_fb_loop')
    xgroup(k, 'v_max_f32', [VMT + q for q in range(4)], VT)
    k('s_mov_b32 s43, 0\ns_mov_b32 s44, 0\ns_barrier')
    lin.run(flat(kdma(0, 'K0') + vdma(0, 'V0') + vdma(1, 'V1') + kdma(1, 'K1') + kdma(2, 'K2') + kdma(3, 'K3')))
    lin.run(['s_waitcnt vmcnt(0)', 's_barrier'])
    for n in range(8):
        lin.add(k_read(0, n))
    lin.run(qk0(zero_o))
    lin.add('s_branch L_att_go')
    flush(k, lin)
    if MLN:
        k(f'''L_lnfb:
        s_lshl_b32 s42, s33, 5
        s_mov_b32 s35, 32
        s_waitcnt vmcnt(0)''')
        srd(k, 72, 's52', 's53', 0x400000)
        k('L_lnfb_loop:')
        ln_scalars(k, 42, 66, 67, 48)
        k('\n'.join(ln_loads(VLD, 72, 66)))
        k('s_waitcnt vmcnt(0)')
        ln_compute(k, VEX)
        k('\n'.join(ln_stores(VST, 67)))
        k('''s_add_u32 s42, s42, 1
        s_sub_u32 s35, s35, 1
        s_barrier
        s_cmp_lg_u32 s35, 0
        s_cbranch_scc1 L_lnfb_loop
        s_waitcnt vmcnt(0)''')
        for i in range(64, 144):
            k(f'v_mov_b32 v{i}, 0')
        k('s_barrier\ns_branch L_xn_go')
    rings = {'G': (3, lambda n: (n * GSLOT, (n + 1) * GSLOT)),
             'A': (8, lambda n: (ABASE + n * 16384, ABASE + (n + 1) * 16384)),
             'W': (4, lambda n: (W3(n), W3(n) + 32768))}
    pol = [{'L_p1': [1] * 6 + [0], 'L_att_tail': [0, 0, 1], 'L_use_m0': [1]},
           {'L_p1': [1] * 6 + [0], 'L_att_tail': [0, 1, 0, 1], 'L_use_m0': [1, 0], 'L_fallback': [1, 0]}]
    if MLN:
        base = pol[0]
        pol = [dict(base, L_ckok=[1], L_polled=[0, 1]),
               dict(base, L_nolead1=[1], L_nolead2=[1], L_ckok=[0, 1], L_polled=[1]),
               dict(base, L_nolead1=[1], L_nolead2=[1], L_pollto=[1], L_lnfb=[1]),
               dict(base, L_nolead1=[1], L_nolead2=[1], L_nock=[1], L_noatom=[1], L_pollend=[1], L_lnfb=[1]),
               dict(pol[1], L_nolead1=[1], L_nolead2=[1], L_nock=[1], L_noatom=[1], L_pollend=[1])]
    if OPT['mk3']:
        w0 = dict(L_ckok=[1], L_polled=[1], L_nolead1=[1], L_nolead2=[1], L_chpost=[1])
        wn = dict(L_nolead1=[1], L_nolead2=[1], L_nock=[1], L_noatom=[1], L_pollend=[1], L_nopo=[1], L3_nosig=[1], L3_pollend=[1],
                  L3_pub_wait=[1, 1], L3_poll_done=[1, 1], L3_fin1=[1], L3_fin2=[1])
        pol += [dict(base, **w0, L3_oproj=[1], L3_polled=[0, 1], L3_exit=[1]),
                dict(base, **w0, L3_oproj=[1], L3_publish=[1], L3_end=[1], L3_exit=[1]),
                dict(base, **w0, L3_giveup=[1], L3_end=[1], L3_take=[0, 1], L3_orph=[1], L3_exit=[0, 0, 0, 0, 1]),
                dict(base, **wn, L3_giveup=[1], L3_oproj=[1], L3_take=[1], L3_orph=[1], L3_exit=[0, 0, 0, 1]),
                dict(base, **wn, L3_exit=[1])]
        for p in pol:
            p.setdefault('L3_exit', [1])
            p.setdefault('L3_polled', [1])
    bufs = {0: 4 << 20, 8: 16 << 20, 16: 16 << 20, 24: 8 << 20, 32: 8 << 20, 40: 4 << 20, 48: 7 << 20, 56: 7 << 20, 64: 4 << 20, 72: 256, 80: 256 << 20}
    sp = []
    for p in pol:
        tr = k.trace(p)
        for wg in (0, 7, 37, 100, 224, 251, 255):
            for w in (0, 1, 3):
                sp += check_srds(tr, wg, w, bufs, k.name)
    for x in sorted(set(sp))[:5]:
        print('PROBLEM', x)
    return k, [p for p in k.check(pol, rings=rings) if not ('WAR granule 36 ' in p and '#L0 @W W 0' in p)]


def k3_scalars():
    return f'''s_bfe_u32 s35, s34, 0x10002
    s_and_b32 s39, s34, 3
    s_lshl_b32 s39, s39, 2
    s_bfe_u32 s48, s34, 0x20003
    s_add_u32 s39, s39, s48
    s_lshr_b32 s40, s34, 5
    s_lshl_b32 s41, s39, 2
    s_add_u32 s41, s41, s3
    s_lshl_b32 s46, s3, 13
    s_add_u32 s47, s46, 4096
    s_lshl_b32 s56, s39, 3
    s_add_u32 s56, s56, s40
    s_cmp_eq_u32 s35, 0
    s_cselect_b32 s8, s96, s98
    s_cselect_b32 s9, s97, s99
    s_mov_b32 s10, 0x800000
    s_mov_b32 s14, 0x40000
    s_mov_b32 s57, {O_OFF}
    s_cselect_b32 s10, s10, 0x700000
    s_cselect_b32 s14, s14, 0x38000
    s_cselect_b32 s57, s57, {H_OFF}
    s_cselect_b32 s58, 8, 7
    s_lshl_b32 s48, s40, 8
    s_add_u32 s8, s8, s48
    s_addc_u32 s9, s9, 0
    s_sub_u32 s10, s10, s48
    s_mov_b32 s11, 0x20000
    s_mul_i32 s48, s41, s14
    s_add_u32 s48, s48, s57
    s_add_u32 s12, s60, s48
    s_addc_u32 s13, s61, 0
    s_mov_b32 s15, 0x20000
    s_mov_b32 s38, 0
    s_mov_b32 s36, 0
    s_mov_b32 s37, 4096'''.replace('    ', '').split('\n')


ACT3 = lambda T, j: (T & 3) * 32 + j * 4


def k3_loads(T, which='wa'):
    tag = f'L{T & 3}'
    gs = []
    for j in range(8):
        if 'w' in which:
            gs.append(([f's_add_u32 m0, s{46 + (j >> 2)}, {W3(T)}'] if j in (0, 4) else [],
                       f'buffer_load_dwordx4 v{VD3 + j}, s[8:11], s38 offen offset:{(j & 3) * 1024} lds ;#{tag} @W W {T & 3}',
                       ['s_add_u32 s38, s38, 0x40000'] if j == 7 else []))
        if 'a' in which:
            gs.append(([], f'buffer_load_dwordx4 {ar(ACT3(T, j), 4)}, v{VLN}, s[12:15], s{36 + (j >> 2)} offen offset:{(j & 3) * 1024} sc1 ;#{tag}',
                       [f's_add_u32 s{36 + (j >> 2)}, s{36 + (j >> 2)}, 8192'] if (j & 3) == 3 else []))
    return gs


def k3_merged(k):
    AG = lambda p, tt: (p * 2 + tt) * 8
    ACC = lambda nt, tt: AG(nt >> 1, tt) + 4 * (nt & 1)
    R3 = 128
    VX, VZ, T0, T1, T2, T3 = range(180, 186)
    LF3 = 64

    def wread(T, n, hh):
        nt, ks = divmod(n, 4)
        sl = (W3(T) - 32768) >> 15
        a = (VB3 if sl >> 1 else VVA) + nt
        return (f'ds_read_b64_tr_b16 {ar(R3 + (n & 15) * 4 + 2 * hh, 2)}, v{a} '
                f'offset:{(sl & 1) * 32768 + ks * 8192 + hh * 4096} ;@R W {T & 3}')

    def bcast(src, off, dst):
        k(f'''ds_read_b32 v{src}, v{VZ} offset:{off}
        s_waitcnt lgkmcnt(0)
        v_readfirstlane_b32 s{dst}, v{src}
        s_nop 1''')
    stamp2(k, 5, 2)
    for nt in range(8):
        k(f'v_add_u32 v{VB3 + nt}, 0x10000, v{VVA + nt}')
    k(f'''v_bfe_u32 v{T1}, v{VLN}, 4, 4
    v_lshrrev_b32 v{T0}, 8, v{VLN}
    v_lshlrev_b32 v{VX}, 11, v{T1}
    v_lshl_add_u32 v{VX}, v{T0}, 4, v{VX}
    v_mov_b32 v{VZ}, 0
    v_mov_b32 v{VDG}, 1''')
    srd(k, 72, 's62', 's63', 256)
    for i in list(range(32, 64)) + list(range(32)):
        k(f'v_mov_b32 v{i}, 0')
    k('s_waitcnt vmcnt(0)')
    stamp2(k, 6, 2)
    k(f'''s_barrier
    s_cmp_lg_u32 s3, 0
    s_cbranch_scc1 L3_nosig
    s_lshl_b32 s48, s33, 12
    s_mov_b64 exec, 1
    s_cmp_eq_u32 s59, 0
    s_cbranch_scc1 L3_noco
    buffer_atomic_add v{VONE}, v{VZR}, s[4:7], s48 offen offset:{CO_O} sc1
    L3_noco:
    buffer_atomic_add v{VDG}, v{VZR}, s[72:75], 0 offen offset:{DG_O} sc0 sc1
    s_mov_b64 exec, -1
    L3_nosig:''')
    lin = Lin()
    lin.run(flat(k3_loads(1, 'w')))
    flush(k, lin)
    k(f'''s_cmp_lg_u32 s3, 0
    s_cbranch_scc1 L3_pollend
    s_mov_b32 s49, {1 if OPT['orto'] else 1024}
    s_cmp_eq_u32 s59, 0
    s_cbranch_scc1 L3_pollto
    L3_poll:
    v_readfirstlane_b32 s48, v{VT}
    s_nop 1
    s_cmp_ge_u32 s48, {9999 if OPT['orto'] == 2 else 32}
    s_cbranch_scc1 L3_polled
    buffer_load_dword v{VT}, v{VPO}, s[4:7], 0 offen sc0 sc1
    s_sub_u32 s49, s49, 1
    s_waitcnt vmcnt(0)
    s_cmp_lg_u32 s49, 0
    s_cbranch_scc1 L3_poll
    L3_pollto:
    v_mov_b32 v{VT}, 0
    L3_polled:
    {'s_mov_b32 s91, s49' if OPT['st2'] == 2 else ''}
    ds_write_b32 v{VZ}, v{VT} offset:{LF3}
    s_waitcnt lgkmcnt(0)
    L3_pollend:
    s_barrier''')
    bcast(T0, LF3, 48)
    k(f'''s_cmp_lt_u32 s48, 32
    s_cbranch_scc1 L3_giveup
    L3_go:''')
    stamp2(k, 7, 2)
    lin.run(flat(k3_loads(0, 'a') + k3_loads(1, 'a')))
    G = Gaps(64)
    GB = 46
    for nt in range(8):
        regs = [ar(R3 + ((nt * 4 + ks) & 15) * 4, 4) for ks in range(4)]
        G.put(8 * nt - 1, lambda i, regs=regs: [('need', regs)], 4, prio=9, kind='need')
    G.put(GB, lambda i: [('vmwait', [f'L{(i + 1) & 3}'], ''), 's_barrier'], 8, kind='bar')
    sched_vmem(G, [lambda i, j=j: k3_loads(i + 2)[j] for j in range(16)], [1 + 4 * j for j in range(16)])
    prev = -10 ** 6
    for n in range(32):
        fu, lu16 = 8 * (n >> 2), 8 * ((n - 16) >> 2) + 4 + (n & 3)
        lo = max(lu16 + 1, prev, GB + 1 - 64)
        for hh in range(2):
            prev = G.place(lo, fu - 5, fu - OPT['la'], lambda i, n=n, hh=hh: [wread(i, n, hh)], 4, kind='rd', pack=True)
            lo = prev
    print('k3 overflow', G.over)

    def mfs(T):
        return [f'{MF} {vr(ACC(nt, tt), 4)}, {ar(R3 + ((nt * 4 + ks) & 15) * 4, 4)}, {ar(ACT3(T, ks * 2 + tt), 4)}, {vr(ACC(nt, tt), 4)}'
                for nt in range(8) for tt in range(2) for ks in range(4)]
    lin.run(G.only(0, lambda kk, kind, g: kk < 0))
    lin.add(('vmwait', ['L0']))
    flush(k, lin)
    k('s_mov_b32 s67, 0\ns_mov_b32 s68, 4096\ns_mov_b32 s69, 32768')
    stamp2(k, 8, 2)
    fix_until(k, 8)
    body = []
    for T in range(4):
        body += G.emit(mfs(T), T)
    st = steady(body)
    k('L3_loop:')
    k('\n'.join(st.out))
    k('s_sub_u32 s58, s58, 1\ns_cmp_lg_u32 s58, 0\ns_cbranch_scc1 L3_loop')
    stamp2(k, 9, 2)
    k(f"""
    s_lshl_b32 s48, s56, 15
    s_lshl_b32 s49, s3, 13
    s_add_u32 s48, s48, s49                 ; tile*32768 + w*8192
    s_cmp_eq_u32 s35, 0
    s_mov_b32 s49, {S_OFF}
    s_mov_b32 s50, {G_OFF}
    s_cselect_b32 s49, s49, {G_OFF}
    s_cselect_b32 s50, s50, {S_OFF}
    s_add_u32 s49, s49, s48
    s_add_u32 s50, s50, s48
    """)
    srd_off(k, 12, 's60', 's61', 's49', 8192)
    srd_off(k, 16, 's60', 's61', 's50', 8192)
    k(f's_lshr_b32 s48, s56, 4\ns_lshl_b32 s48, s48, 12\ns_and_b32 s49, s56, 15\ns_lshl_b32 s49, s49, 7\n'
      f's_add_u32 s48, s48, s49\ns_add_u32 s48, s48, {F_OFF}')
    srd_off(k, 20, 's60', 's61', 's48', 128)
    k('s_lshl_b32 s48, s41, 16\ns_lshl_b32 s49, s40, 8\ns_add_u32 s48, s48, s49')
    srd_off(k, 24, 's52', 's53', 's48', 65536)
    srd_off(k, 28, 's54', 's55', 's48', 65536)
    k('s_sub_u32 s26, s26, s49\ns_sub_u32 s30, s30, s49')
    XR, PK, OT = 64, 96, 188
    xo = lambda q: f'{"s69" if q & 1 else "0"} offen offset:{(q >> 1) * 64}'
    k('s_waitcnt vmcnt(0) lgkmcnt(0)')
    for q in range(8):
        k(f'buffer_load_dwordx4 {vr(XR + 4 * q, 4)}, v{VX}, s[24:27], {xo(q)}')
    for i in range(32):
        k(f'v_cvt_pk_bf16_f32 v{PK + i}, v{2 * i}, v{2 * i + 1}')
    k('s_cmp_eq_u32 s35, 0\ns_cbranch_scc1 L3_oproj')
    k(f's_mov_b32 s48, {f32(-math.log2(math.e))}')
    for i in range(32):
        k(f'v_lshlrev_b32 v{2 * i}, 16, v{PK + i}\nv_and_b32 v{2 * i + 1}, 0xffff0000, v{PK + i}')
    for c in range(0, 64, 16):
        for i in range(16):
            k(f'v_mul_f32 v{OT + i}, s48, v{c + i}')
        for i in range(16):
            k(f'v_exp_f32 v{OT + i}, v{OT + i}')
        for i in range(16):
            k(f'v_add_f32 v{OT + i}, 1.0, v{OT + i}')
        for i in range(16):
            k(f'v_rcp_f32 v{OT + i}, v{OT + i}')
        for i in range(16):
            k(f'v_mul_f32 v{c + i}, v{c + i}, v{OT + i}')
        for i in range(8):
            k(f'v_cvt_pk_bf16_f32 v{PK + c // 2 + i}, v{c + 2 * i}, v{c + 2 * i + 1}')
    k('L3_publish:')
    for q in range(8):
        k(f'buffer_store_dwordx4 {vr(PK + 4 * q, 4)}, v{VLN}, s[12:15], s{67 + (q >> 2)} offen offset:{(q & 3) * 1024} sc0 sc1')
    k(f"""
    s_waitcnt vmcnt(0)
    s_barrier
    s_cmp_lg_u32 s3, 0
    s_cbranch_scc1 L3_pub_wait
    v_mov_b32 v{T0}, 1
    s_mov_b64 exec, 1
    buffer_atomic_add v{T0}, v{VZ}, s[20:23], 0 offen sc0 sc1
    s_waitcnt vmcnt(0)
    ds_write_b32 v{VZ}, v{T0} offset:{LF3 + 4}
    s_mov_b64 exec, -1
    s_waitcnt lgkmcnt(0)
    L3_pub_wait:
    s_barrier
    """)
    bcast(T0, LF3 + 4, 48)
    k(f"""s_cmp_eq_u32 s48, 0
    s_cbranch_scc1 L3_end
    s_branch L3_finish
    L3_oproj:
    s_mov_b32 s49, 1024
    s_cmp_lg_u32 s3, 0
    s_cbranch_scc1 L3_poll_done
    L3_poll2:
    buffer_load_dword v{T0}, v{VZ}, s[20:23], 0 offen sc0 sc1
    s_waitcnt vmcnt(0)
    v_readfirstlane_b32 s48, v{T0}
    s_nop 1
    s_cmp_lg_u32 s48, 0
    s_cbranch_scc1 L3_poll_end
    s_sleep 2
    s_sub_u32 s49, s49, 1
    s_cmp_lg_u32 s49, 0
    s_cbranch_scc1 L3_poll2
    L3_poll_end:
    ds_write_b32 v{VZ}, v{T0} offset:{LF3 + 8}
    s_waitcnt lgkmcnt(0)
    L3_poll_done:
    s_barrier
    """)
    bcast(T0, LF3 + 8, 48)
    k(f"""s_cmp_eq_u32 s48, 0
    s_cbranch_scc1 L3_publish
    L3_finish:
    """)
    for q in range(8):
        k(f'buffer_load_dwordx4 {vr(OT + 4 * q, 4)}, v{VLN}, s[16:19], s{67 + (q >> 2)} offen offset:{(q & 3) * 1024} sc0 sc1')
    for i in range(32):
        k(f'v_lshlrev_b32 v{2 * i}, 16, v{PK + i}\nv_and_b32 v{2 * i + 1}, 0xffff0000, v{PK + i}')
    for q in range(8):
        k('s_waitcnt vmcnt(7)')
        o = OT + 4 * q
        for i in range(4):
            j = 4 * q + i
            k(f"""v_lshlrev_b32 v{T0}, 16, v{OT + j}
            v_and_b32 v{T1}, 0xffff0000, v{OT + j}
            v_mul_f32 v{T0}, v{T0}, v{2 * j}
            v_mul_f32 v{T1}, v{T1}, v{2 * j + 1}
            v_cvt_pk_bf16_f32 v{OT + j}, v{T0}, v{T1}""")
        k(f"""s_nop 0
        v_permlane32_swap_b32 v{o}, v{o + 2}
        v_permlane32_swap_b32 v{o + 1}, v{o + 3}
        s_nop 0
        v_permlane16_swap_b32 v{o}, v{o + 2}
        v_permlane16_swap_b32 v{o + 1}, v{o + 3}""")
        for i in range(4):
            j = 4 * q + i
            k(f"""v_lshlrev_b32 v{T2}, 16, v{XR + j}
            v_and_b32 v{T3}, 0xffff0000, v{XR + j}
            v_lshlrev_b32 v{T0}, 16, v{OT + j}
            v_and_b32 v{T1}, 0xffff0000, v{OT + j}
            v_add_f32 v{T0}, v{T0}, v{T2}
            v_add_f32 v{T1}, v{T1}, v{T3}
            v_cvt_pk_bf16_f32 v{OT + j}, v{T0}, v{T1}""")
        k(f'buffer_store_dwordx4 {vr(o, 4)}, v{VX}, s[28:31], {xo(q)}{["", " sc0 sc1", " nt", " sc1 nt"][OPT["owt"]]}')
    k(f"""L3_end:
    s_cmp_lg_u32 s94, 0
    s_cbranch_scc1 L3_orph
    s_cmp_lg_u32 s3, 0
    s_cbranch_scc1 L3_fin1
    ds_write_b32 v{VZ}, v{VDG} offset:{LF3 + 12}
    s_waitcnt lgkmcnt(0)
    L3_fin1:
    s_barrier""".replace(f'ds_write_b32 v{VZ}, v{VDG} offset:{LF3 + 12}',
                          f's_mov_b64 exec, 1\nds_write_b32 v{VZ}, v{VDG} offset:{LF3 + 12}\ns_mov_b64 exec, -1'))
    bcast(T0, LF3 + 12, 48)
    k(f"""s_cmp_lg_u32 s48, 255
    s_cbranch_scc1 L3_exit
    v_lshrrev_b32 v{T1}, 2, v{VLN}          ; lane*4
    s_cmp_lg_u32 s3, 0
    s_cbranch_scc1 L3_fin2
    v_mov_b32 v{VOR}, 0xaaaaaaaa
    s_mov_b64 exec, 0xffff
    buffer_atomic_or v{VOR}, v{T1}, s[72:75], 0 offen offset:{OR_O} sc0 sc1
    s_waitcnt vmcnt(0)
    ds_write_b32 v{T1}, v{VOR} offset:{LF3 + 64}
    s_mov_b64 exec, -1
    s_waitcnt lgkmcnt(0)
    L3_fin2:
    s_barrier
    ds_read_b32 v{VOR}, v{T1} offset:{LF3 + 64}
    s_waitcnt lgkmcnt(0)
    v_and_b32 v{T0}, 0x55555555, v{VOR}
    v_cmp_ne_u32 vcc, 0, v{T0}
    s_nop 1
    s_and_b32 s48, vcc_lo, 0xffff
    s_cbranch_scc0 L3_exit
    L3_orph:
    s_cmp_ge_u32 s94, 256
    s_cbranch_scc1 L3_exit
    s_xor_b32 s34, s94, 4
    s_add_u32 s94, s94, 1
    s_lshr_b32 s48, s34, 4
    s_and_b32 s49, s34, 15
    s_lshl_b32 s49, s49, 1
    s_nop 2
    v_readlane_b32 s48, v{VOR}, s48
    s_nop 1
    s_bitcmp1_b32 s48, s49
    s_cbranch_scc1 L3_take
    s_branch L3_orph
    L3_take:
    s_waitcnt vmcnt(0) lgkmcnt(0)
    s_barrier""")
    k('\n'.join(k3_scalars()))
    lin = Lin()
    lin.run(flat(k3_loads(0, 'w') + k3_loads(1, 'w')))
    flush(k, lin)
    for i in range(64):
        k(f'v_mov_b32 v{i}, 0')
    k(f"""s_waitcnt vmcnt(0)
    s_barrier
    s_branch L3_go
    L3_giveup:
    s_cmp_lg_u32 s3, 0
    s_cbranch_scc1 L3_gu1
    s_lshr_b32 s48, s34, 4
    s_lshl_b32 s48, s48, 2
    s_and_b32 s49, s34, 15
    s_lshl_b32 s49, s49, 1
    s_lshl_b32 s50, 1, s49
    v_mov_b32 v{T0}, s50
    s_mov_b64 exec, 1
    buffer_atomic_or v{T0}, v{VZ}, s[72:75], s48 offen offset:{OR_O} sc0 sc1
    s_waitcnt vmcnt(0)
    v_lshrrev_b32 v{T0}, s49, v{T0}
    v_and_b32 v{T0}, 2, v{T0}
    ds_write_b32 v{VZ}, v{T0} offset:{LF3 + 16}
    s_mov_b64 exec, -1
    s_waitcnt lgkmcnt(0)
    L3_gu1:
    s_waitcnt vmcnt(0)
    s_barrier""")
    bcast(T0, LF3 + 16, 48)
    k("""s_cmp_eq_u32 s48, 0
    s_cbranch_scc1 L3_end
    s_branch L3_go
    L3_exit:""")
    fix_until(k, 9)
    stamp2(k, 10, 2)
    stamp2_out(k, 0)
    span_end(k, 40, 1)


def gen_k3():
    k = Kernel('fin_kernel')
    span_begin(k)
    AG = lambda p, tt: (p * 2 + tt) * 8
    ACC = lambda nt, tt: AG(nt >> 1, tt) + 4 * (nt & 1)
    ACT = lambda T, j: (T & 3) * 32 + j * 4
    R3 = 128
    VA = 64
    VD = 80
    VLN3, VX, VZ = 88, 89, 90
    T0, T1, T2, T3, T4, T5 = 91, 92, 93, 94, 95, 96
    LOOK = OPT['look3']
    k("""
    s_cmp_ge_u32 s2, 256
    s_cbranch_scc1 L_k3_end
    s_load_dwordx2 s[52:53], s[0:1], 0      ; x
    s_load_dwordx2 s[54:55], s[0:1], 32     ; wo
    s_load_dwordx2 s[56:57], s[0:1], 56     ; w2
    s_load_dwordx2 s[58:59], s[0:1], 64     ; out
    s_load_dwordx2 s[60:61], s[0:1], 80     ; ws
    s_load_dwordx2 s[62:63], s[0:1], 72     ; dbg
    v_lshrrev_b32 v1, 6, v0
    v_and_b32 v0, 63, v0
    s_and_b32 s32, s2, 7
    v_readfirstlane_b32 s3, v1
    s_lshr_b32 s33, s2, 3
    s_lshr_b32 s34, s32, 2
    s_and_b32 s32, s32, 3
    s_lshl_b32 s32, s32, 2
    s_and_b32 s35, s33, 3
    s_add_u32 s32, s32, s35                 ; mb (0..15)
    s_lshr_b32 s33, s33, 2                  ; nb (0..7)
    s_lshl_b32 s35, s32, 2
    s_add_u32 s35, s35, s3
    s_lshl_b32 s45, s3, 13                  ; w*8192 (LDS)
    s_add_u32 s46, s45, 4096
    s_lshl_b32 s47, s32, 3
    s_add_u32 s47, s47, s33
    """)
    stamp(k, 0)
    k(f"""
    v_lshlrev_b32 v{VLN3}, 4, v0
    v_lshrrev_b32 v{T0}, 4, v0
    v_and_b32 v{T1}, 15, v0
    s_lshl_b32 s48, s3, 5
    v_add_u32 v{T3}, s48, v{T0}             ; row = 32w + (l>>4)
    """)
    if OPT['rp']:
        k(f'v_add_u32 v{VD}, s45, v{VLN3}\nv_add_u32 v{VD + 4}, s46, v{VLN3}')
    else:
        for j in range(2):
            k(f"""v_add_u32 v{T2}, {4 * j}, v{T0}
            v_lshlrev_b32 v{T2}, 1, v{T2}
            v_xor_b32 v{T2}, v{T2}, v{T1}
            v_lshlrev_b32 v{T2}, 4, v{T2}
            v_lshl_add_u32 v{VD + j}, v{T3}, 11, v{T2}""")
        for j in range(7, 0, -1):
            k(f'v_add_u32 v{VD + j}, {j * 8192 - (j & 3) * 1024}, v{VD + (j & 1)}')
    k(f"""
    s_waitcnt lgkmcnt(0)
    s_cmp_eq_u32 s34, 0
    s_cselect_b32 s54, s54, s56
    s_cselect_b32 s55, s55, s57
    s_mov_b32 s64, 0x800000
    s_mov_b32 s65, 0x40000
    s_mov_b32 s66, {O_OFF}
    s_cselect_b32 s64, s64, 0x700000
    s_cselect_b32 s65, s65, 0x38000
    s_cselect_b32 s66, s66, {H_OFF}
    s_cselect_b32 s42, 8, 7
    s_lshl_b32 s48, s33, 8
    """)
    if OPT['rp']:
        k(f'''s_lshr_b32 s64, s64, 3
        s_mul_i32 s48, s33, s64
        s_lshl_b32 s49, s34, 23
        s_add_u32 s48, s48, s49
        s_add_u32 s48, s48, {WP_OFF}''')
        srd_off(k, 8, 's60', 's61', 's48', 0)
        k('s_mov_b32 s10, s64')
    else:
        srd_off(k, 8, 's54', 's55', 's48', 0)
        k('s_sub_u32 s10, s64, s48')
    k('s_mul_i32 s48, s35, s65\ns_add_u32 s48, s48, s66')
    srd_off(k, 4, 's60', 's61', 's48', 0)
    k('s_mov_b32 s6, s65\ns_mov_b32 s38, 0\ns_mov_b32 s36, 0\ns_mov_b32 s37, 4096')

    def loads(T):
        tag = f'L{T & 3}'
        gs = []
        for j in range(8):
            gs.append(([f's_add_u32 m0, s{45 + (j >> 2)}, {(T & 3) * 32768}'] if j in (0, 4) else [],
                       f'buffer_load_dwordx4 v{VD + (j & 4 if OPT["rp"] else j)}, s[8:11], s38 offen offset:{(j & 3) * 1024} lds ;#{tag} @W W {T & 3}',
                       [f's_add_u32 s38, s38, {0x8000 if OPT["rp"] else 0x40000}'] if j == 7 else []))
            gs.append(([], f'buffer_load_dwordx4 {ar(ACT(T, j), 4)}, v{VLN3}, s[4:7], s{36 + (j >> 2)} offen offset:{(j & 3) * 1024} ;#{tag}',
                       [f's_add_u32 s{36 + (j >> 2)}, s{36 + (j >> 2)}, 8192'] if (j & 3) == 3 else []))
        return gs

    def wread(T, n, hh):
        nt, ks = divmod(n, 4)
        a = VA + ((T >> 1) & 1) * 8 + nt
        return (f'ds_read_b64_tr_b16 {ar(R3 + (n & 15) * 4 + 2 * hh, 2)}, v{a} '
                f'offset:{(T & 1) * 32768 + ks * 8192 + hh * 4096} ;@R W {T & 3}')
    lin = Lin()
    for T in range(LOOK):
        lin.run(flat(loads(T)))
    flush(k, lin)
    k(f"""
    v_lshlrev_b32 v{VX}, 11, v{T1}
    v_lshl_add_u32 v{VX}, v{T0}, 4, v{VX}
    v_mov_b32 v{VZ}, 0
    """)
    lane_grc(k, T0, T1, T2)
    k(f"""
    v_lshlrev_b32 v{T2}, 3, v{T2}
    v_lshl_add_u32 v{T3}, v{T0}, 2, v{T1}   ; row = 4g + r
    v_and_b32 v{T4}, 7, v{T3}
    v_lshl_add_u32 v{T3}, v{T3}, 8, v{T2}
    """)
    for nt in range(8):
        k(f"""v_xor_b32 v{T5}, {nt}, v{T4}
        v_lshl_add_u32 v{VA + nt}, v{T5}, 5, v{T3}
        v_add_u32 v{VA + 8 + nt}, 0x10000, v{VA + nt}""")
    for i in range(64):
        k(f'v_mov_b32 v{i}, 0')
    G = Gaps(64)
    GB = 46
    for nt in range(8):
        regs = [ar(R3 + ((nt * 4 + ks) & 15) * 4, 4) for ks in range(4)]
        G.put(8 * nt - 1, lambda i, regs=regs: [('need', regs)], 4, prio=9, kind='need')
    G.put(GB, lambda i: [('vmwait', [f'L{(i + 1) & 3}'], ' lgkmcnt(0)' if LOOK == 3 else ''), 's_barrier'], 8, kind='bar')
    sched_vmem(G, [lambda i, j=j: loads(i + LOOK)[j] for j in range(16)],
               [1 + 4 * j for j in range(16)] if LOOK == 2 else [1 + (j * 11) // 4 for j in range(16)])
    prev = -10 ** 6
    for n in range(32):
        fu, lu16 = 8 * (n >> 2), 8 * ((n - 16) >> 2) + 4 + (n & 3)
        lo = max(lu16 + 1, prev, GB + 1 - 64)
        hi = fu - 5 if LOOK == 2 else min(fu - 5, GB - 2)
        for hh in range(2):
            prev = G.place(lo, hi, fu - OPT['la'], lambda i, n=n, hh=hh: [wread(i, n, hh)], 4, kind='rd', pack=True)
            lo = prev
    print('k3 overflow', G.over)

    def mfs(T):
        return [f'{MF} {vr(ACC(nt, tt), 4)}, {ar(R3 + ((nt * 4 + ks) & 15) * 4, 4)}, {ar(ACT(T, ks * 2 + tt), 4)}, {vr(ACC(nt, tt), 4)}'
                for nt in range(8) for tt in range(2) for ks in range(4)]
    lin.add(('vmwait', ['L0']))
    lin.add('s_barrier')
    lin.run(G.only(0, lambda kk, kind, g: kk < 0))
    flush(k, lin)
    k('s_mov_b32 s67, 0\ns_mov_b32 s68, 4096\ns_mov_b32 s69, 32768')
    stamp(k, 1)
    body = []
    for T in range(4):
        body += G.emit(mfs(T), T)
    st = steady(body)
    k('L_k3:')
    k('\n'.join(st.out))
    k('s_sub_u32 s42, s42, 1\ns_cmp_lg_u32 s42, 0\ns_cbranch_scc1 L_k3')
    stamp(k, 2)
    k(f"""
    s_lshl_b32 s48, s47, 15
    s_lshl_b32 s49, s3, 13
    s_add_u32 s48, s48, s49                 ; tile*32768 + w*8192
    s_cmp_eq_u32 s34, 0
    s_mov_b32 s49, {S_OFF}
    s_mov_b32 s50, {G_OFF}
    s_cselect_b32 s49, s49, {G_OFF}
    s_cselect_b32 s50, s50, {S_OFF}
    s_add_u32 s49, s49, s48
    s_add_u32 s50, s50, s48
    """)
    srd_off(k, 12, 's60', 's61', 's49', 8192)
    srd_off(k, 16, 's60', 's61', 's50', 8192)
    k(f's_lshr_b32 s48, s47, 4\ns_lshl_b32 s48, s48, 12\ns_and_b32 s49, s47, 15\ns_lshl_b32 s49, s49, 7\n'
      f's_add_u32 s48, s48, s49\ns_add_u32 s48, s48, {F_OFF}')
    srd_off(k, 20, 's60', 's61', 's48', 128)
    k('s_lshl_b32 s48, s35, 16\ns_lshl_b32 s49, s33, 8\ns_add_u32 s48, s48, s49')
    srd_off(k, 24, 's52', 's53', 's48', 65536)
    srd_off(k, 28, 's58', 's59', 's48', 65536)
    k('s_sub_u32 s26, s26, s49\ns_sub_u32 s30, s30, s49')
    XR, PK, OT = 100, 132, 164
    xo = lambda q: f'{"s69" if q & 1 else "0"} offen offset:{(q >> 1) * 64}'
    k('s_waitcnt vmcnt(0) lgkmcnt(0)')
    for q in range(8):
        k(f'buffer_load_dwordx4 {vr(XR + 4 * q, 4)}, v{VX}, s[24:27], {xo(q)}')
    for i in range(32):
        k(f'v_cvt_pk_bf16_f32 v{PK + i}, v{2 * i}, v{2 * i + 1}')
    k('s_cmp_eq_u32 s34, 0\ns_cbranch_scc1 L_k3_oproj')
    k(f's_mov_b32 s48, {f32(-math.log2(math.e))}')
    for i in range(32):
        k(f'v_lshlrev_b32 v{2 * i}, 16, v{PK + i}\nv_and_b32 v{2 * i + 1}, 0xffff0000, v{PK + i}')
    for c in range(0, 64, 16):
        for i in range(16):
            k(f'v_mul_f32 v{OT + i}, s48, v{c + i}')
        for i in range(16):
            k(f'v_exp_f32 v{OT + i}, v{OT + i}')
        for i in range(16):
            k(f'v_add_f32 v{OT + i}, 1.0, v{OT + i}')
        for i in range(16):
            k(f'v_rcp_f32 v{OT + i}, v{OT + i}')
        for i in range(16):
            k(f'v_mul_f32 v{c + i}, v{c + i}, v{OT + i}')
        for i in range(8):
            k(f'v_cvt_pk_bf16_f32 v{PK + c // 2 + i}, v{c + 2 * i}, v{c + 2 * i + 1}')
    k('L_k3_publish:')
    for q in range(8):
        k(f'buffer_store_dwordx4 {vr(PK + 4 * q, 4)}, v{VLN3}, s[12:15], s{67 + (q >> 2)} offen offset:{(q & 3) * 1024} sc0 sc1')
    k(f"""
    s_waitcnt vmcnt(0)
    s_barrier
    s_cmp_lg_u32 s3, 0
    s_cbranch_scc1 L_k3_pub_wait
    v_mov_b32 v{T0}, 1
    s_mov_b64 exec, 1
    buffer_atomic_add v{T0}, v{VZ}, s[20:23], 0 offen sc0 sc1
    s_waitcnt vmcnt(0)
    ds_write_b32 v{VZ}, v{T0}
    s_mov_b64 exec, -1
    s_waitcnt lgkmcnt(0)
    L_k3_pub_wait:
    s_barrier
    ds_read_b32 v{T0}, v{VZ}
    s_waitcnt lgkmcnt(0)
    v_readfirstlane_b32 s48, v{T0}
    s_nop 1
    s_cmp_eq_u32 s48, 0
    s_cbranch_scc1 L_k3_end
    s_branch L_k3_finish
    L_k3_oproj:
    s_mov_b32 s49, 4096
    s_cmp_lg_u32 s3, 0
    s_cbranch_scc1 L_k3_poll_done
    L_k3_poll:
    buffer_load_dword v{T0}, v{VZ}, s[20:23], 0 offen sc0 sc1
    s_waitcnt vmcnt(0)
    v_readfirstlane_b32 s48, v{T0}
    s_nop 1
    s_cmp_lg_u32 s48, 0
    s_cbranch_scc1 L_k3_poll_end
    s_sleep 4
    s_sub_u32 s49, s49, 1
    s_cmp_lg_u32 s49, 0
    s_cbranch_scc1 L_k3_poll
    L_k3_poll_end:
    ds_write_b32 v{VZ}, v{T0} offset:64
    s_waitcnt lgkmcnt(0)
    L_k3_poll_done:
    s_barrier
    ds_read_b32 v{T0}, v{VZ} offset:64
    s_waitcnt lgkmcnt(0)
    v_readfirstlane_b32 s48, v{T0}
    s_nop 1
    s_cmp_eq_u32 s48, 0
    s_cbranch_scc1 L_k3_publish
    L_k3_finish:
    """)
    for q in range(8):
        k(f'buffer_load_dwordx4 {vr(OT + 4 * q, 4)}, v{VLN3}, s[16:19], s{67 + (q >> 2)} offen offset:{(q & 3) * 1024} sc0 sc1')
    for i in range(32):
        k(f'v_lshlrev_b32 v{2 * i}, 16, v{PK + i}\nv_and_b32 v{2 * i + 1}, 0xffff0000, v{PK + i}')
    for q in range(8):
        k('s_waitcnt vmcnt(7)')
        o = OT + 4 * q
        for i in range(4):
            j = 4 * q + i
            k(f"""v_lshlrev_b32 v{T0}, 16, v{OT + j}
            v_and_b32 v{T1}, 0xffff0000, v{OT + j}
            v_mul_f32 v{T0}, v{T0}, v{2 * j}
            v_mul_f32 v{T1}, v{T1}, v{2 * j + 1}
            v_cvt_pk_bf16_f32 v{OT + j}, v{T0}, v{T1}""")
        k(f"""s_nop 0
        v_permlane32_swap_b32 v{o}, v{o + 2}
        v_permlane32_swap_b32 v{o + 1}, v{o + 3}
        s_nop 0
        v_permlane16_swap_b32 v{o}, v{o + 2}
        v_permlane16_swap_b32 v{o + 1}, v{o + 3}""")
        for i in range(4):
            j = 4 * q + i
            k(f"""v_lshlrev_b32 v{T2}, 16, v{XR + j}
            v_and_b32 v{T3}, 0xffff0000, v{XR + j}
            v_lshlrev_b32 v{T0}, 16, v{OT + j}
            v_and_b32 v{T1}, 0xffff0000, v{OT + j}
            v_add_f32 v{T0}, v{T0}, v{T2}
            v_add_f32 v{T1}, v{T1}, v{T3}
            v_cvt_pk_bf16_f32 v{OT + j}, v{T0}, v{T1}""")
        k(f'buffer_store_dwordx4 {vr(o, 4)}, v{VX}, s[28:31], {xo(q)}')
    if OPT['stamp']:
        stamp(k, 3)
        stamp_out(k, 'L_k3_end', 's62', 's63')
    if OPT['span']:
        k('L_k3_end:')
        span_end(k, 70, 2)
        k('s_endpgm')
    else:
        k('L_k3_end:\ns_endpgm')
    rings = {'W': (4, lambda n: (n * 32768, (n + 1) * 32768))}
    pol = [{}, {'L_k3_oproj': [1]}, {'L_k3_oproj': [1], 'L_k3_publish': [1]},
           {'L_k3_oproj': [1], 'L_k3_poll_done': [1]}, {'L_k3_pub_wait': [1]}]
    return k, k.check(pol, rings=rings)


def main():
    out = 'cdna_kernels/' + NAME + '.s'
    for a in sys.argv[1:]:
        if '=' in a:
            kk, v = a.split('=')
            assert kk in OPT, kk
            OPT[kk] = int(v)
        else:
            out = a
    ref = open('cdna_kernels/' + NAME + '.s.ref').read()
    header = '\n'.join(l for l in ref.split('\n')[:12])
    k1 = gen_ln()
    p = k1.check([{}, {'L_ln_noflag': [1]}])
    k2, p2 = gen_k2()
    k3, p3 = gen_k3()
    for x in (p + p2 + p3)[:5]:
        print('PROBLEM', x)
    ks = [k1, k2, k3]
    ls = [('ln_kernel', 256, 512, 0), ('att_kernel', 256, 256, 163840), ('fin_kernel', 256, 256, 131072)]
    if OPT['mln']:
        ks, ls = ks[1:], ls[1:]
    if OPT['mk3']:
        assert not OPT['pf4'] and OPT['mln'] and not OPT['rp'] and OPT['warm'] and not OPT['stamp']
        ks, ls = ks[:1], ls[:1]
    s = build_file(header, ks, ls)
    if OPT['single'] and len(ks) == 1:
        s = s.replace('; @launch kernel=att_kernel ', '; @launch ').replace('att_kernel', NAME + '_kernel')
    open(out, 'w').write(s)
    for k in ks:
        print(k.name, 'instrs', sum(1 for t, _ in k.lines if t == 'I'), 'regs', k.max_regs(),
              'autowaits', sum(1 for t, v in k.lines if t == 'I' and '; auto' in v.text))


if __name__ == '__main__':
    main()
```
